```python
import torch

def _softmax(x, axis=-1):
    return torch.softmax(x, dim=axis)

def _gelu(x):
    return torch.nn.functional.gelu(x, approximate='tanh')

def _silu(x):
    return torch.nn.functional.silu(x)

def _sigmoid(x):
    return torch.sigmoid(x)

def _layernorm(x, axis=-1, eps=1e-05):
    m = x.mean(dim=axis, keepdim=True)
    v = x.var(dim=axis, keepdim=True, unbiased=False)
    return (x - m) / torch.sqrt(v + eps)

def _scatter_add(tgt, idx, src, axis=0):
    return tgt.clone().index_add_(axis, idx, src)

def _segment_sum(src, seg, n):
    out = torch.zeros((n,) + src.shape[1:], dtype=src.dtype)
    return out.index_add_(0, seg, src)

def _pad(x, pw):
    flat = tuple((v for pair in reversed(pw) for v in pair))
    return torch.nn.functional.pad(x, flat)
kernel_name = 'gated_mix__sliding_local_dilated__memory_aug_recurrent_mem_tr__prompt'

def setup_inputs():

    _w = lambda a: (lambda t: t.to(torch.bfloat16) if t.is_floating_point() else t)(torch.as_tensor(a))

    def _A_setup():
        B, S, D = (1, 2048, 576)
        return {'x': _w((lambda *s: torch.randn(*s, dtype=torch.bfloat16) * 0.05)(B, S, D)), 'wqkv': _w((lambda *s: torch.randn(*s, dtype=torch.bfloat16) * 0.8)(D, 3 * D)), 'wo': _w((lambda *s: torch.randn(*s, dtype=torch.bfloat16) * 0.05)(D, D))}
    _A_in = _A_setup()

    def _B_setup():
        B, S, Dm = (1, 2048, 576)
        H, Dh = (32, 128)
        M, seg = (8, 32)
        seg = min(seg, S)
        S = S // seg * seg
        return {'x': _w((lambda *s: torch.randn(*s, dtype=torch.bfloat16) * 0.05)(B, S, Dm)), 'mem0': _w((lambda *s: torch.randn(*s, dtype=torch.bfloat16) * 1.6)(B, M, Dm)), 'Wq': _w((lambda *s: torch.randn(*s, dtype=torch.bfloat16) * 0.8)(Dm, H, Dh) * Dm ** (-0.5)), 'Wk': _w((lambda *s: torch.randn(*s, dtype=torch.bfloat16) * 0.8)(Dm, H, Dh) * Dm ** (-0.5)), 'Wv': _w((lambda *s: torch.randn(*s, dtype=torch.bfloat16) * 1.6)(Dm, H, Dh) * Dm ** (-0.5)), 'Wo': _w((lambda *s: torch.randn(*s, dtype=torch.bfloat16) * 1.6)(H, Dh, Dm) * (H * Dh) ** (-0.5)), 'seg_len': seg}
    _B_in = _B_setup()
    return {'A_x': _A_in['x'], 'A_wqkv': _A_in['wqkv'], 'A_wo': _A_in['wo'], 'B_x': _B_in['x'], 'B_mem0': _B_in['mem0'], 'B_Wq': _B_in['Wq'], 'B_Wk': _B_in['Wk'], 'B_Wv': _B_in['Wv'], 'B_Wo': _B_in['Wo'], 'B_seg_len': _B_in['seg_len'], 'gate_w': _w((lambda *s: torch.randn(*s, dtype=torch.bfloat16) * 0.05)(576) * 16.0)}

def reference(A_x, A_wqkv, A_wo, B_x, B_mem0, B_Wq, B_Wk, B_Wv, B_Wo, B_seg_len, gate_w):

    def _A_ref(x, wqkv, wo):
        B, S, D = x.shape
        H = 32
        Dh = D // H
        W, dil = (8, 2)
        qkv = (lambda x, *d: x.permute(*d))((x @ wqkv).reshape(B, S, 3, H, Dh), 2, 0, 3, 1, 4)
        q, k, v = (qkv[0], qkv[1], qkv[2])
        scale = Dh ** (-0.5)
        pos = torch.arange(S)
        off = torch.arange(W) * dil
        idx = pos[:, None] - off[None, :]
        mask = idx >= 0
        idx_c = torch.where(mask, idx, 0).reshape(-1)
        kg = k[:, :, idx_c, :].reshape(B, H, S, W, Dh)
        vg = v[:, :, idx_c, :].reshape(B, H, S, W, Dh)
        logits = torch.einsum('bhsd,bhswd->bhsw', q, kg) * scale
        logits = torch.where(mask[None, None, :, :], logits, -1000000000.0)
        attn = _softmax(logits, axis=-1)
        o = torch.einsum('bhsw,bhswd->bhsd', attn, vg)
        return (lambda x, *d: x.permute(*d))(o, 0, 2, 1, 3).reshape(B, S, D) @ wo

    def _B_ref(x, mem0, Wq, Wk, Wv, Wo, seg_len):
        B, S, Dm = x.shape
        H, Dh = (Wq.shape[1], Wq.shape[2])
        M = mem0.shape[1]
        scale = Dh ** (-0.5)
        n_seg = S // seg_len
        L = M + seg_len
        idx = torch.arange(L)
        mask = (idx[:, None] < M) | (idx[:, None] >= idx[None, :])
        mem = mem0
        outs = []
        for s in range(n_seg):
            xs = x[:, s * seg_len:(s + 1) * seg_len, :].clone()
            h = torch.concatenate([mem, xs], axis=1)
            q = torch.einsum('btd,dhe->bhte', h, Wq)
            k = torch.einsum('btd,dhe->bhte', h, Wk)
            v = torch.einsum('btd,dhe->bhte', h, Wv)
            scores = torch.einsum('bhqe,bhke->bhqk', q, k) * scale
            scores = torch.where(mask[None, None], scores, -1000000000.0)
            p = _softmax(scores, axis=-1)
            o = torch.einsum('bhqk,bhke->bhqe', p, v)
            o = torch.einsum('bhte,hed->btd', o, Wo)
            mem = o[:, :M, :].clone()
            outs.append(o[:, M:, :])
        return torch.concatenate(outs, axis=1)
    x = A_x
    g = _sigmoid((x * gate_w).sum(-1, keepdims=True))
    a = _A_ref(x, A_wqkv, A_wo)
    b = _B_ref(x, B_mem0, B_Wq, B_Wk, B_Wv, B_Wo, B_seg_len)
    return g * a + (1 - g) * b
```

```python
import re

REG = re.compile(r'(?<![\w.])([vas])(?:\[(\d+):(\d+)\]|(\d+))(?![\w])')
TRANS = ('v_exp_', 'v_log_', 'v_rcp_', 'v_rsq_', 'v_sqrt_', 'v_sin_', 'v_cos_')

def regs_of(op):
    op = op.strip()
    out = []
    for m in REG.finditer(op):
        k = m.group(1)
        if m.group(2) is not None:
            out += [(k, i) for i in range(int(m.group(2)), int(m.group(3)) + 1)]
        else:
            out.append((k, int(m.group(4))))
    if re.search(r'\bvcc\b', op): out += [('s', 106), ('s', 107)]
    if re.search(r'\bvcc_lo\b', op): out += [('s', 106)]
    if re.search(r'\bvcc_hi\b', op): out += [('s', 107)]
    if re.search(r'\bexec\b', op): out += [('s', 126), ('s', 127)]
    if re.search(r'\bm0\b', op): out += [('s', 124)]
    return out

def split_ops(s):
    out, depth, cur = [], 0, ''
    for ch in s:
        if ch in '[(': depth += 1
        if ch in '])': depth -= 1
        if ch == ',' and depth == 0:
            out.append(cur); cur = ''
        else: cur += ch
    if cur.strip(): out.append(cur)
    return [o.strip() for o in out]

class Ins:
    def __init__(self, text):
        self.text = text
        t = text.split(';')[0].strip()
        p = t.split(None, 1)
        self.op = p[0]; rest = p[1] if len(p) > 1 else ''
        ops = split_ops(rest)
        self.ops = ops
        op = self.op
        self.states = 1
        self.kind = 'salu'; self.w = []; self.r = []
        self.passes = 0; self.C = []; self.AB = []
        R = lambda i: regs_of(ops[i]) if i < len(ops) else []
        allr = lambda a: [x for o in ops[a:] for x in regs_of(o)]
        if op.startswith('v_mfma') or op.startswith('v_smfmac'):
            self.kind = 'mfma'
            self.sparse = op.startswith('v_smfmac')
            self.passes = 8 if '32x32' in op else 4
            self.w = R(0)
            if self.sparse:
                self.C = R(0); self.AB = R(1) + R(2) + R(3)
            else:
                self.C = R(3); self.AB = R(1) + R(2)
            self.r = self.C + self.AB
        elif op.startswith('v_'):
            self.kind = 'valu'
            self.dpp = ('quad_perm' in t or 'row_' in t or 'wave_' in t)
            if op.startswith('v_cmpx'):
                self.w = R(0) + [('s', 126), ('s', 127)]; self.r = allr(1)
            elif op.startswith('v_permlane') and 'swap' in op or op.startswith('v_swap'):
                self.w = R(0) + R(1); self.r = R(0) + R(1)
            elif re.match(r'v_(add|sub|subrev|addc|subb)_co', op) or op.startswith('v_mad_u64'):
                self.w = R(0) + R(1); self.r = allr(2)
            elif op == 'v_nop':
                pass
            else:
                self.w = R(0); self.r = allr(1)
                if op.startswith(('v_fmac', 'v_dot2c', 'v_writelane', 'v_pk_fmac')) or self.dpp or 'UNUSED_PRESERVE' in t or 'op_sel' in t and op.startswith('v_cvt'):
                    self.r = self.r + R(0)
        elif op.startswith('ds_'):
            self.kind = 'ds'
            if op.startswith(('ds_read', 'ds_bpermute', 'ds_permute', 'ds_swizzle')) or '_rtn' in op:
                self.w = R(0); self.r = allr(1)
            else:
                self.r = allr(0)
        elif op.startswith(('buffer_', 'global_')):
            self.kind = 'vmem'
            lds = bool(re.search(r'\blds\b', t)) or '_lds_' in op
            self.ldsdma = lds
            if op.startswith(('buffer_inv', 'buffer_wbl2')):
                pass
            elif lds:
                self.r = allr(0) + [('s', 124)]
            elif 'load' in op:
                self.w = R(0); self.r = allr(1)
                if 'd16' in op: self.r = self.r + R(0)
            elif 'atomic' in op:
                self.r = allr(0)
                if re.search(r'\bsc0\b', t): self.w = R(0)
            else:
                self.r = allr(0)
                self.wide = ('x3' in op or 'x4' in op)
                self.data = R(0) if op.startswith('buffer_') else R(1)
        elif op.startswith(('s_load', 's_buffer_load', 's_memtime', 's_memrealtime', 's_atomic')):
            self.kind = 'smem'; self.w = R(0); self.r = allr(1)
        elif op == 's_nop':
            self.kind = 'nop'; self.states = int(ops[0], 0) + 1
        elif op == 's_waitcnt':
            self.kind = 'wait'
        elif op.startswith(('s_cmp', 's_bitcmp', 's_cbranch', 's_branch', 's_barrier', 's_sleep', 's_setprio', 's_endpgm')):
            self.r = allr(0)
            if 'vcc' in op: self.r += [('s', 106), ('s', 107)]
        else:
            self.w = R(0); self.r = allr(1)
            if 'saveexec' in op: self.w += [('s', 126), ('s', 127)]
        self.ws = set(self.w); self.rs = set(self.r)

class Prog:
    def __init__(self):
        self.lines = []; self.hist = []
        self.vm = []; self.lg = []
        self.smem = set()
        self.t = 0; self.tm = -999; self.tmh = 0; self.tmp = 0
        self.annot = False
        self.uid = 0
    def raw(self, s): self.lines.append(s)
    def c(self, s): self.lines.append('; ' + s)
    def newlabel(self, base):
        self.uid += 1; return f'{base}_{self.uid}'
    def label(self, name, keep=False, vm=None, lg=None):
        self.lines.append(name + ':')
        if not keep:
            self.hist = []
            self.vm = list(vm) if vm else []
            self.lg = list(lg) if lg else []
            self.smem = set()
    def snapshot(self): return (list(self.hist), list(self.vm), list(self.lg), set(self.smem), self.t, self.tm, self.tmh, self.tmp)
    def restore(self, s):
        self.hist, self.vm, self.lg, self.smem = list(s[0]), list(s[1]), list(s[2]), set(s[3])
        self.t, self.tm, self.tmh, self.tmp = s[4:]
    def _put(self, i):
        t = self.t
        if i.kind == 'mfma': t = max(t, self.tm + self.tmp)
        elif i.kind == 'valu': t = max(t, self.tm + self.tmh)
        if i.kind == 'mfma':
            self.tm = t; self.tmp = 4 * i.passes; self.tmh = 12 if i.sparse else 8
        cost = 4 * i.states
        if i.kind == 'valu' and i.op.startswith(TRANS): cost = 8
        if i.kind in ('ds', 'vmem'): cost = 8
        if i.op == 's_barrier' or i.op.startswith('s_cbranch'): cost = 12
        self.t = t + cost
        self.lines.append('  ' + i.text + (f'   ; t={t}' if self.annot else ''))
        self.hist.append(i)
        if len(self.hist) > 40: self.hist.pop(0)
        if i.kind == 'vmem': self.vm.append(i.ws)
        elif i.kind == 'ds': self.lg.append(i.ws)
        elif i.kind == 'smem': self.smem |= i.ws | {('x', 0)}
        elif i.kind == 'wait':
            m = re.search(r'vmcnt\((\d+)\)', i.text)
            if m:
                n = int(m.group(1)); self.vm = self.vm[len(self.vm) - n:] if n < len(self.vm) and n > 0 else ([] if n == 0 else self.vm)
            m = re.search(r'lgkmcnt\((\d+)\)', i.text)
            if m:
                n = int(m.group(1))
                if n == 0: self.lg = []; self.smem = set()
                elif not self.smem and n < len(self.lg): self.lg = self.lg[len(self.lg) - n:]
    def _need(self, p, c):
        n = 0; timed = False
        touch = c.rs | c.ws
        if p.kind == 'mfma':
            if p.ws & touch:
                full = {4: 8, 8: 12}[p.passes]
                if c.kind == 'mfma':
                    timed = True
                    if p.ws & set(c.AB): n = full
                    elif p.ws & set(c.C):
                        n = 0 if (set(c.C) == p.ws and c.passes == p.passes) else {4: 6, 8: 10}[p.passes]
                    else:
                        n = 0 if (c.ws == p.ws and c.passes == p.passes) else {4: 6, 8: 10}[p.passes]
                elif c.kind == 'valu': n = full; timed = True
                elif c.kind in ('ds', 'vmem'): n = full
            elif c.kind == 'valu' and set(p.C) & c.ws:
                n = {4: 3, 8: 7}[p.passes]; timed = True
        elif p.kind == 'valu':
            vw = {x for x in p.ws if x[0] != 's'}; sw = {x for x in p.ws if x[0] == 's'}
            if c.kind == 'mfma':
                if vw & c.rs: n = 2
                if ('s', 126) in sw: n = max(n, 4)
            elif c.kind == 'valu':
                if vw & c.rs:
                    if c.dpp and vw & set(regs_of(c.ops[1])): n = 2
                    if c.op.startswith('v_permlane'): n = 2
                    if c.op.startswith(('v_readlane', 'v_readfirstlane')): n = max(n, 1)
                    if p.op.startswith(TRANS): n = max(n, 1)
                    if 'sdwa' in p.op or 'op_sel' in p.text: n = max(n, 1)
                    if p.op.startswith('v_dot') and not (c.op == p.op and not (vw & set(regs_of(c.ops[1]) + regs_of(c.ops[2])))): n = max(n, 3)
                if p.op.startswith('v_dot') and vw & c.ws and c.op != p.op: n = max(n, 3)
                if sw & c.rs:
                    n = max(n, 4 if c.op.startswith(('v_readlane', 'v_writelane', 'v_div_fmas')) else 2)
                if ('s', 126) in sw:
                    if c.dpp: n = max(n, 5)
                    if c.op.startswith(('v_readlane', 'v_readfirstlane', 'v_writelane', 'v_permlane')): n = max(n, 4)
            elif c.kind == 'vmem':
                if sw & c.rs: n = 5
            elif c.kind in ('salu', 'smem'):
                if sw & c.rs and not c.op.startswith('s_cbranch'): n = 1
        elif p.kind == 'vmem':
            if getattr(p, 'wide', False) and set(p.data) & c.ws: n = 2 if c.kind == 'valu' else 1
        elif p.kind == 'salu':
            if ('s', 124) in p.ws and c.kind == 'vmem' and c.ldsdma: n = 1
        return n, timed
    def _dist(self, k, c, timed):
        if not timed:
            return sum(i.states for i in self.hist[k + 1:])
        t = 0; tm = None
        seq = self.hist[k:] + [c]
        for j, i in enumerate(seq):
            if j > 0:
                t += 8 if seq[j - 1].op.startswith(TRANS) else 4 * seq[j - 1].states
                if tm is not None:
                    if i.kind == 'mfma': t = max(t, tm + tp)
                    elif i.kind == 'valu': t = max(t, tm + th)
            if i.kind == 'mfma': tm = t; tp = 4 * i.passes; th = 12 if i.sparse else 8
        return t // 4 - 1
    def __call__(self, text, nowait=False):
        for line in text.split('\n'):
            line = line.strip()
            if not line: continue
            if line.startswith(';'): self.raw(line); continue
            self._one(Ins(line), nowait)
    def wait_writes(self):
        k = max([j for j, x in enumerate(self.lg) if not x], default=-1)
        if k >= 0: self(f's_waitcnt lgkmcnt({0 if self.smem else min(15, len(self.lg) - 1 - k)})')
    def prewait(self, text):
        self._waits(Ins(text))
    def _waits(self, i):
        w = []
        tv = i.rs | (i.ws if i.kind != 'vmem' else set())
        k = max([j for j, s in enumerate(self.vm) if s & tv], default=-1)
        if k >= 0: w.append(f'vmcnt({min(63, len(self.vm) - 1 - k)})')
        tl = i.rs | (i.ws if i.kind != 'ds' else set())
        k = max([j for j, s in enumerate(self.lg) if s & tl], default=-1)
        if self.smem & (i.rs | i.ws) or (k >= 0 and self.smem): w.append('lgkmcnt(0)')
        elif k >= 0: w.append(f'lgkmcnt({min(15, len(self.lg) - 1 - k)})')
        if w: self._put(Ins('s_waitcnt ' + ' '.join(w)))
    def _one(self, i, nowait):
        if not nowait and i.kind not in ('wait', 'nop'): self._waits(i)
        while True:
            short = 0
            for k, p in enumerate(self.hist):
                n, timed = self._need(p, i)
                if n:
                    d = self._dist(k, i, timed)
                    if d < n:
                        add = 1
                        while True:
                            self.hist.append(Ins(f's_nop {add - 1}'))
                            d2 = self._dist(k, i, timed)
                            self.hist.pop()
                            if d2 >= n or add >= 16: break
                            add += 1
                        short = max(short, add)
            if not short: break
            self._put(Ins(f's_nop {short - 1}'))
        self._put(i)
    def text(self): return '\n'.join(self.lines) + '\n'

def vr(b, n=1, k='v'):
    return f'{k}{b}' if n == 1 else f'{k}[{b}:{b + n - 1}]'
```

```python
from asmgen import *
from layout import *

QA, QB, QC, QD, QE = 0, 4, 8, 12, 16
ACQ, ACK, ACV, KX, VX, QOP, ONES, VM = 20, 28, 36, 44, 52, 60, 68, 72
IDX, A1, A2, R1, R2, R3 = 74, 75, 76, 77, 78, 79
A3, A5, A5X, TT = ONES, ONES + 1, ONES + 2, ONES + 3
sW, sH, sT0, sT1, sT2, sT3 = 's52', 's53', 's54', 's55', 's56', 's57'
sKV, sKV2, sPR, sPRX, sMW, sMWX, sMR, sM8, sSTEP, sSPIN, sEXP, sCB, sPF, sFLG, sTAG = ['s%d' % i for i in range(58, 73)]
sPW = ['s73', 's74', 's75', 's76', 's77']
L_MEM, L_ROW, PITCH = 0, 9216, 576
L_TAB = L_ROW + 8 * PITCH
L_SEL = L_TAB + 1024
L_SCR = L_SEL + 1024
L_W = 16384
SM = 'v_smfmac_f32_16x16x64_bf16'
MF = 'v_mfma_f32_16x16x32_bf16'
MF16 = 'v_mfma_f32_16x16x16_bf16'

blocks_lds = [('q', 0), ('k', 0), ('k', 2), ('k', 8), ('k', 4), ('d', 1, 1), ('d', 2, 1), ('d', 3, 1), ('x',)]
blocks_reg = [b for b in [(m, t) for m in 'qkv' for t in range(9)] + [('d', d, b) for d in range(4) for b in (0, 1)] if b not in blocks_lds]
def block_ops(b):
    if b[0] in 'qkv': return [(b[0], b[1], 0), (b[0], b[1], 1)]
    if b[0] == 'x': return [('x', c) for c in range(4)]
    return [('d', b[1], 2 * b[2]), ('d', b[1], 2 * b[2] + 1)]
HOME = {}
_free = [('v', 80 + 8 * i) for i in range(22)] + [('a', 8 * i) for i in range(32)]
for b in blocks_reg:
    for o in block_ops(b): HOME[o] = _free.pop(0)
assert not _free
for j, b in enumerate(blocks_lds):
    for x, o in enumerate(block_ops(b)): HOME[o] = ('lds', j, x)

def lds_fetch(o, dst, w):
    _, j, x = HOME[o]
    off = L_W + j * 16384 + (w * 4096 if o[0] != 'x' else (w - 2) * 8192) + x * 2048
    if off < 0x10000: base = A2
    elif off < 0x18000: base = A1; off -= 0x10000
    else: base = A1; off -= 0x18000
    return [f'ds_read_b128 {vr(dst, 4)}, v{base} offset:{off}', f'ds_read_b128 {vr(dst + 4, 4)}, v{base} offset:{off + 1024}']

def prologue(P):
    P.c('---- chain prologue: per-lane constants')
    L, N, G, T0, T1, T2, T3 = 0, 1, 2, 3, 4, 5, 6
    DQ, DX, DD, RQ0, RQ1, RX0, RD, RA, RB = 8, 9, 10, 11, 12, 13, 14, 15, 16
    P(f'''v_and_b32 v{L}, 63, v0
    v_and_b32 v{N}, 15, v{L}
    v_lshrrev_b32 v{G}, 4, v{L}
    v_lshlrev_b32 v{A2}, 4, v{L}
    v_add_u32 v{A1}, 0x10000, v{A2}
    ; i(n) = 2*(n>>2) + (n&1), half = (n>>1)&1
    v_lshrrev_b32 v{T0}, 2, v{N}
    v_and_b32 v{T1}, 1, v{N}
    v_lshl_add_u32 v{T0}, v{T0}, 1, v{T1}
    v_bfe_u32 v{T1}, v{N}, 1, 1
    v_mul_u32_u24 v{IDX}, 0xaaaa, v{T1}
    v_add_u32 v{IDX}, 0x4444, v{IDX}
    v_mul_u32_u24 v{T2}, {PITCH}, v{T0}
    v_add_u32 v{T2}, {L_ROW}, v{T2}
    v_lshl_add_u32 v{R2}, v{G}, 4, v{T2}
    v_lshl_add_u32 v{R1}, v{G}, 5, v{T2}
    v_lshl_add_u32 v{R1}, v{T1}, 4, v{R1}
    v_mul_u32_u24 v{RA}, 1152, v{T0}
    v_lshl_add_u32 v{RA}, v{G}, 5, v{RA}
    v_lshl_add_u32 v{RA}, v{T1}, 4, v{RA}
    s_lshl_b32 {sT0}, {sW}, 8
    buffer_load_dwordx4 v[20:23], v{RA}, {SMEM0}, {sT0} offen
    buffer_load_dwordx4 v[24:27], v{RA}, {SMEM0}, {sT0} offen offset:128
    buffer_load_dwordx4 v[28:31], v{RA}, {SMEM0}, 0 offen offset:1024
    ; R3
    v_mul_u32_u24 v{R3}, {2 * PITCH}, v{G}
    v_lshl_add_u32 v{R3}, v{N}, 2, v{R3}
    s_lshl_b32 {sT0}, {sW}, 6
    s_add_u32 {sT0}, {sT0}, {L_ROW}
    v_add_u32 v{R3}, {sT0}, v{R3}
    v_lshrrev_b32 v{T2}, 3, v{L}
    v_mul_u32_u24 v{A3}, {PART_DEST}, v{T2}
    v_and_b32 v{T2}, 7, v{L}
    v_lshl_add_u32 v{A3}, v{T2}, 3, v{A3}
    v_and_b32 v{T2}, 1, v{G}
    v_lshlrev_b32 v{T2}, 4, v{T2}
    v_lshl_add_u32 v{T2}, v{N}, 2, v{T2}
    v_mov_b32 v{T3}, 0x40000000
    v_cmp_lt_u32 vcc, 3, v{N}
    v_cndmask_b32 v{T2}, v{T2}, v{T3}, vcc
    v_lshrrev_b32 v{T3}, 1, v{G}
    v_lshl_add_u32 v{A5}, v{T3}, 10, v{T2}
    v_lshl_add_u32 v{A5X}, v{T3}, 8, v{T2}
    v_mov_b32 v{TT}, -1
    ds_write_b128 v{A2}, {vr(ONES, 4)} offset:{L_TAB}
    v_and_b32 v{T2}, 3, v{N}
    v_lshrrev_b32 v{T3}, 2, v{N}
    v_lshl_add_u32 v{T2}, v{T2}, 2, v{T3}
    v_and_b32 v{T3}, 1, v{T2}
    v_lshlrev_b32 v{T3}, 4, v{T3}
    v_mov_b32 v7, 0x3f80
    v_lshlrev_b32 v{T3}, v{T3}, v7
    v_lshrrev_b32 v{T2}, 1, v{T2}''')
    for q in range(4):
        P(f'v_cmp_eq_u32 vcc, {q}, v{T2}\nv_cndmask_b32 v{32 + q}, 0, v{T3}, vcc')
    P(f'ds_write_b128 v{A2}, v[32:35] offset:{L_SEL}')
    P.c('DMA source offsets')
    P(f'''v_and_b32 v{T0}, 1, v{G}
    s_lshl_b32 {sT0}, {sW}, 1
    v_add_u32 v{T0}, {sT0}, v{T0}
    v_lshlrev_b32 v{T0}, 1, v{T0}
    v_xor_b32 v{T0}, v{T0}, v{N}
    v_lshlrev_b32 v{T0}, 4, v{T0}
    v_lshl_add_u32 v{DQ}, v{G}, 13, v{T0}
    s_and_b32 {sT0}, {sW}, 1
    s_lshr_b32 {sT1}, {sW}, 1
    v_lshrrev_b32 v{T0}, 3, v{L}
    v_and_b32 v{T1}, 1, v{T0}
    v_lshlrev_b32 v{T1}, 4, v{T1}
    v_and_b32 v{T2}, 6, v{T0}
    v_add_u32 v{T1}, v{T1}, v{T2}
    s_lshl_b32 {sT2}, {sT1}, 3
    s_add_u32 {sT2}, {sT2}, {sT0}
    v_add_u32 v{T1}, {sT2}, v{T1}
    v_mul_u32_u24 v{T1}, 1152, v{T1}
    v_and_b32 v{T2}, 2, v{T0}
    v_lshlrev_b32 v{T2}, 1, v{T2}
    v_and_b32 v{T3}, 7, v{L}
    v_xor_b32 v{T3}, v{T3}, v{T2}
    v_lshl_add_u32 v{DX}, v{T3}, 4, v{T1}
    v_and_b32 v{T1}, 1, v{G}
    v_lshlrev_b32 v{T1}, 4, v{T1}
    v_and_b32 v{T2}, 2, v{G}
    v_add_u32 v{T1}, v{T1}, v{T2}
    s_lshl_b32 {sT2}, {sT1}, 2
    s_add_u32 {sT2}, {sT2}, {sT0}
    v_add_u32 v{T1}, {sT2}, v{T1}
    v_mul_u32_u24 v{T1}, 1152, v{T1}
    v_lshlrev_b32 v{T3}, 1, v{G}
    v_xor_b32 v{T3}, v{T3}, v{N}
    v_lshl_add_u32 v{DD}, v{T3}, 4, v{T1}''')
    P.c('transposing-read addresses; r = n>>2, c = n&3')
    B0, B1, G0, G1, C = 17, 18, 19, 72, 73
    P(f'''v_bfe_u32 v{B0}, v{N}, 2, 1
    v_bfe_u32 v{B1}, v{N}, 3, 1
    v_and_b32 v{G0}, 1, v{G}
    v_lshrrev_b32 v{G1}, 1, v{G}
    v_and_b32 v{C}, 3, v{N}
    v_lshl_add_u32 v{T0}, v{G0}, 1, v{B0}
    v_lshl_add_u32 v{T3}, v{B1}, 2, v{T0}
    ; qkv: row = 16*g1 + 4*g0 + b0 + 8*b1 ; byte = (64w + 8c) ^ (32*rho3)
    v_lshl_add_u32 v{T1}, v{G1}, 4, v{B0}
    v_lshl_add_u32 v{T1}, v{G0}, 2, v{T1}
    v_lshl_add_u32 v{T1}, v{B1}, 3, v{T1}
    v_lshlrev_b32 v{T1}, 8, v{T1}
    s_lshl_b32 {sT0}, {sW}, 6
    v_lshl_add_u32 v{T2}, v{C}, 3, {sT0}
    v_lshlrev_b32 v7, 5, v{T3}
    v_xor_b32 v{T2}, v{T2}, v7
    v_add_u32 v{RQ0}, v{T1}, v{T2}
    v_xor_b32 v{RQ1}, 32, v{RQ0}
    ; x: (rho2 + 4*g1)*128 + ((2*(w&1) + b1) ^ (2*g0))*32 + 8c
    v_lshl_add_u32 v{T1}, v{G1}, 2, v{T0}
    v_lshlrev_b32 v{T1}, 7, v{T1}
    v_lshl_add_u32 v{T1}, v{C}, 3, v{T1}
    s_and_b32 {sT0}, {sW}, 1
    v_xor_b32 v7, {sT0}, v{G0}
    v_lshl_add_u32 v7, v7, 1, v{B1}
    v_lshl_add_u32 v{RX0}, v7, 5, v{T1}
    v_lshlrev_b32 v{T1}, 11, v{G1}
    v_lshl_add_u32 v{T1}, v{C}, 3, v{T1}
    v_lshl_add_u32 v{T2}, v{T0}, 8, v{T1}
    v_lshl_add_u32 v7, v{B1}, 2, {sW}
    v_xor_b32 v7, v7, v{T0}
    v_lshl_add_u32 v{RD}, v7, 5, v{T2}''')
    P.c('scalar bases')
    P(f'''s_lshl_b32 {sT0}, {sH}, 14
    s_lshl_b32 {sT1}, {sW}, 11
    s_add_u32 {sKV}, {sT0}, {sT1}
    s_add_u32 {sKV2}, {sKV}, 8192
    s_lshl_b32 {sT1}, {sW}, 12
    s_add_u32 {sPF}, {sT0}, {sT1}
    s_add_u32 {sPF}, {sPF}, {32 * 16384}
    s_lshl_b32 {sT0}, {sH}, 12
    s_lshl_b32 {sT1}, {sW}, 10
    s_add_u32 {sT0}, {sT0}, {sT1}
    s_add_u32 {sEXP}, {sT0}, {WS_KVM - 32 * 4096}
    s_lshl_b32 {sT0}, {sH}, 7
    s_add_u32 {sFLG}, {sT0}, {WS_FLAG}
    s_lshl_b32 {sT0}, {sH}, 6
    s_mul_i32 {sT1}, {sW}, {8 * PART_DEST}
    s_add_u32 {sT1}, {sT0}, {sT1}
    s_add_u32 {sPW[0]}, {sT1}, {WS_PART}
    s_add_u32 {sPW[1]}, {sT1}, {WS_PART + PART_CHUNK}
    s_add_u32 {sPW[2]}, {sT1}, {WS_PART + 2 * PART_CHUNK}
    s_add_u32 {sPW[3]}, {sT1}, {WS_PART + 3 * PART_CHUNK}
    s_and_b32 {sT2}, {sW}, 1
    s_mul_i32 {sT1}, {sT2}, {8 * PART_DEST}
    s_add_u32 {sT1}, {sT0}, {sT1}
    s_add_u32 {sPW[4]}, {sT1}, {WS_PART + 4 * PART_CHUNK}
    s_mul_i32 {sT0}, {sW}, {PART_CHUNK}
    s_mul_i32 {sT1}, {sH}, {PART_DEST}
    s_add_u32 {sT0}, {sT0}, {sT1}
    s_add_u32 {sPR}, {sT0}, {WS_PART}
    s_and_b32 {sT2}, {sH}, 15
    s_mul_i32 {sT1}, {sT2}, {PART_DEST}
    s_add_u32 {sPRX}, {sT1}, {WS_PART + 4 * PART_CHUNK}
    s_lshl_b32 {sT0}, {sW}, 11
    s_add_u32 {sMR}, {sT0}, {WS_MEM}
    s_mov_b32 {sM8}, {WS_MEM + 8192}
    s_lshl_b32 {sT1}, {sH}, 5
    s_add_u32 {sT0}, {sT0}, {sT1}
    s_add_u32 {sMW}, {sT0}, {WS_MEM + MEM_SLOT}
    s_lshr_b32 {sT0}, {sT2}, 3
    s_lshl_b32 {sT0}, {sT0}, 9
    s_and_b32 {sT1}, {sT2}, 7
    s_lshl_b32 {sT1}, {sT1}, 5
    s_add_u32 {sT0}, {sT0}, {sT1}
    s_add_u32 {sMWX}, {sT0}, {WS_MEM + MEM_SLOT + 8192}
    s_mov_b32 {sSTEP}, 0
    s_mov_b32 {sSPIN}, 0
    s_mov_b32 {sTAG}, 0
    s_mov_b32 {sCB}, {f32bits(CB)}''')
    blocks = blocks_reg + blocks_lds
    sHQ, sHO, sM = 's78', 's79', sT3
    P(f'''s_lshl_b32 {sHQ}, {sH}, 8
    s_lshl_b32 {sT0}, {sW}, 15
    s_add_u32 {sHQ}, {sHQ}, {sT0}
    s_mul_i32 {sHO}, {sH}, 147456
    s_lshl_b32 {sM}, {sW}, 10
    s_add_u32 {sM}, {sM}, {L_W}''')
    def dma(j):
        b = blocks[j]; slot = j % 9
        for y in range(4):
            if b[0] in 'qkv':
                srd, va, base, off = {'q': SWQ, 'k': SWK, 'v': SWV}[b[0]], DQ, sHQ, (64 * b[1] + 16 * y) * 8192
            elif b[0] == 'x':
                srd, va, base, off = SWO, DX, sHO, 32 * y * 1152 + 1024
            else:
                srd, va, base, off = SWO, DD, sHO, (64 * b[2] + 8 * (y & 1) + 32 * (y >> 1)) * 1152 + 256 * b[1]
            P(f'''s_add_u32 m0, {sM}, {slot * 16384 + y * 4096}
            s_add_u32 {sT0}, {base}, {off}
            buffer_load_dwordx4 v{va}, {srd}, {sT0} offen lds {P.wfl}''')
    marks = {}
    cnt = [0]
    def note(n): cnt[0] += n
    for j in range(8):
        dma(j); note(4); marks[j] = cnt[0]
    TMP = [36, 52]
    pend = None
    for j, b in enumerate(blocks):
        P(f's_waitcnt vmcnt({cnt[0] - marks[j]}) lgkmcnt(0)')
        P('s_barrier')
        if pend: pend(); pend = None
        if j + 8 < 36:
            dma(j + 8); note(4); marks[j + 8] = cnt[0]
        if j == 27:
            P.c('mem0 into ring slot 0; arm ring slot 1 and the partial-sum buffers')
            P(f'''buffer_store_dwordx4 v[20:23], v{A2}, {SWS}, {sMR} offen {P.stf}
            buffer_store_dwordx4 v[24:27], v{A2}, {SWS}, {sMR} offen offset:1024 {P.stf}
            buffer_store_dwordx4 v[28:31], v{A2}, {SWS}, {sM8} offen {P.stf}
            v_mov_b32 v32, -1
            v_mov_b32 v33, -1''')
            for s in sPW: P(f'buffer_store_dwordx2 v[32:33], v{A3}, {SWS}, {s} offen {P.stf}')
            P(f'buffer_store_dword v32, v{A5}, {SWS}, {sMW} offen {P.stf}\nbuffer_store_dword v32, v{A5X}, {SWS}, {sMWX} offen {P.stf}')
            P(f'v_mov_b32 v34, 0\ns_mov_b64 exec, 1\nbuffer_store_dword v34, v34, {SWS}, {sFLG} offen sc1\ns_mov_b64 exec, -1')
        sb = L_W + (j % 9) * 16384
        if b[0] in 'qkv':
            P(f'v_add_u32 v{RA}, {sb}, v{RQ0}\nv_add_u32 v{RB}, {sb}, v{RQ1}')
        else:
            P(f'v_add_u32 v{RA}, {sb}, v{RX0 if b[0] == "x" else RD}')
        if b[0] == 'x': P('s_waitcnt lgkmcnt(0)')
        acts = []
        for x, o in enumerate(block_ops(b)):
            hm = HOME[o]
            k, r = hm if hm[0] in 'va' else ('v', (TMP[j % 2] if b[0] != 'x' else 36) + 8 * x)
            for q in (0, 2, 4, 6):
                if b[0] in 'qkv': ad, off = (RA, RB)[x], (32 * (q // 4) + 2 * ((q % 4) // 2)) * 256
                elif b[0] == 'x': ad, off = RA, ((q % 4) // 2 + 2 * (q // 4) + 4 * x) * 1024
                else: ad, off = RA, ((q % 4) // 2 + 4 * (q // 4) + 8 * x) * 1024
                P(f'ds_read_b64_tr_b16 {vr(r + q, 2, k)}, v{ad} offset:{off}')
            if hm[0] == 'lds': acts.append((x, r))
        if acts:
            def mk(acts=acts, sb=sb, b=b):
                if b[0] == 'x': P(f's_and_b32 {sT0}, {sW}, 1\ns_lshl_b32 {sT0}, {sT0}, 13')
                else: P(f's_lshl_b32 {sT0}, {sW}, 12')
                P(f's_add_u32 {sT0}, {sT0}, {sb}\nv_add_u32 v7, {sT0}, v{A2}')
                for x, r in acts:
                    for hf in range(2): P(f'ds_write_b128 v7, {vr(r + 4 * hf, 4)} offset:{x * 2048 + hf * 1024}')
            pend = mk
    P('s_waitcnt vmcnt(0) lgkmcnt(0)\ns_barrier')
    pend()
    P('s_waitcnt lgkmcnt(0)')

def is_valu(s): return s.startswith('v_')

def step_loop(P, w, tag, opt=(), T=None):
    T = T or {}
    stf = P.stf
    heavy = w >= 2
    DIAG = 's_add_u32 s84, s84, 1' if 'diag' in opt else ''
    Lb = lambda s: f'C{tag}{w}_{s}'
    DPP = lambda p: f'{p} row_mask:0xf bank_mask:0xf'
    def mark(name):
        if 'marks' in opt and name in T.get('marks', ()):
            k = T['marks'].index(name)
            P.raw(f'  s_memtime s[{16 + 2 * k}:{17 + 2 * k}]   ; {name}')
    def run(mf, side, pre):
        for i, m in enumerate(mf):
            P(m)
            mark(f'{pre}{i}')
            waited = False
            for s in side.get(i, []):
                if callable(s): s(); continue
                if is_valu(s) and not waited and i + 1 < len(mf):
                    P.prewait(mf[i + 1]); waited = True
                P(s)
    def addside(side, i, *ins):
        cur = side.get(i, []) + list(ins)
        side[i] = [s for s in cur if callable(s) or not is_valu(s)] + [s for s in cur if not callable(s) and is_valu(s)]
    def dly(n):
        while n > 0:
            P(f's_nop {min(n, 16) - 1}'); n -= 16
    bufs = {('q', 0, 0): QOP, ('q', 0, 1): KX}
    for t in (0, 2, 8, 4): bufs[('k', t, 0)] = ACV; bufs[('k', t, 1)] = QOP
    bufs.update({('d', 1, 2): KX, ('d', 1, 3): QOP, ('d', 2, 2): VX, ('d', 2, 3): ACV, ('d', 3, 2): KX, ('d', 3, 3): QOP,
                 ('x', 0): KX, ('x', 1): QOP, ('x', 2): VX, ('x', 3): ACV})
    def bsrc(o, buf=None):
        hm = HOME[o]
        return vr(hm[1], 8, hm[0]) if hm[0] in 'va' else vr(buf or bufs[o], 8)
    F = lambda o: lds_fetch(o, bufs[o], w)
    AQ = [QA, QB, QC, QD, QB, QE, QD, QC, QA]
    rdA = lambda t: f'ds_read_b128 {vr(AQ[t], 4)}, v{A2} offset:{L_MEM + 1024 * t}'
    ACC = {'q': ACQ, 'k': ACK, 'v': ACV}
    def sm(s, buf=None):
        m, t, x = s[0], int(s[1]), 'ab'.index(s[2])
        return f'{SM} {vr(ACC[m] + 4 * x, 4)}, {vr(AQ[t], 4)}, {bsrc((m, t, x), buf)}, v{IDX}'
    add = lambda d, a: f'v_add_f32 v{d}, v{d}, v{a}'
    cvt = lambda d, a, b: f'v_cvt_pk_bf16_f32 v{d}, v{a}, v{b}'
    z2 = lambda d: f'v_mov_b64 {vr(d, 2)}, 0'
    flip = f'v_xor_b32 v{A1}, 0x8000, v{A1}'
    BAR = [P.wait_writes, 's_barrier']
    quad = lambda r: set(('v', r + j) for j in range(4))
    retry = []
    CK, CK2 = VM, VM + 1
    def maxtree(regs):
        out = [f'v_max3_u32 v{CK}, v{regs[0]}, v{regs[1]}, v{regs[2]}']
        for j in range(3, len(regs) - 1, 2): out.append(f'v_max3_u32 v{CK}, v{CK}, v{regs[j]}, v{regs[j + 1]}')
        return out + [f'v_max_u32 v{CK}, v{CK}, v{regs[-1]}']
    tight = w in T.get('tight', (0, 1))
    DMA = ('d', 0)
    def dma():
        for q in range(2):
            P(f'buffer_load_dwordx4 v{A2}, {SWS}, {sMR} offen offset:{1024 * q} sc1 lds')
            P.vm[-1] = {DMA}
    def dma_wait():
        k = max(j for j, x in enumerate(P.vm) if DMA in x)
        P(f's_waitcnt vmcnt({len(P.vm) - 1 - k})')
    def hop2_entry(arm, fill):
        if not tight:
            P(f's_mov_b32 m0, {L_MEM + 2048 * w}')
            for x in arm: P(x)
            P(f's_waitcnt vmcnt({2 * len(arm)})')
            for x in fill: P(x, nowait=True)
            return
        HD = [(VX, sMR, 0, 2 * w), (VX + 4, sMR, 1024, 2 * w + 1)] + ([(QD, sM8, 0, 8)] if w == 0 else [])
        nl = len(HD)
        ld = [f'buffer_load_dwordx4 {vr(r, 4)}, v{A2}, {SWS}, {sb} offen offset:{o} sc1' for r, sb, o, t in HD]
        wr = [f'ds_write_b128 v{A2}, {vr(r, 4)} offset:{L_MEM + 1024 * t}' for r, sb, o, t in HD]
        ck = maxtree([h[0] + j for h in HD for j in range(4)]) + [f'v_cmp_eq_u32 vcc, -1, v{CK}']
        n2, gap = T.get('n2', (3, 3, 3, 3))[w], T.get('gap2', 18)
        for j in range(n2):
            for x in ld: P(x, nowait=True)
            if j == 0: mark('h2i')
            if j == n2 - 1:
                P(f's_waitcnt vmcnt({len(arm) + nl * n2})')
                for x in fill: P(x, nowait=True)
            else: dly(gap)
        P(f's_waitcnt vmcnt({nl * (n2 - 1)})')
        wf = T.get('wfirst', 1)
        for x in ck[:-1] + (wr if wf else []) + ck[-1:]: P(x, nowait=True)
        P(f's_cbranch_vccnz {Lb("h2r")}')
        if not wf:
            P.label(Lb('h2ok'), keep=True)
            for x in wr: P(x, nowait=True)
        P.label(Lb('h2w'), keep=True)
        mark('h2w')
        for x in arm: P(x)
        def r2():
            nr = T.get('nr', 3)
            P.label(Lb('h2r'))
            for j in range(nr - n2):
                P('s_mov_b64 exec, vcc')
                for x in ld: P(x, nowait=True)
                P('s_mov_b64 exec, -1')
                if n2 - 2 - j >= 0:
                    P(f's_waitcnt vmcnt({nl * (n2 - 1)})')
                    for x in ck: P(x, nowait=True)
                    P(f's_cbranch_vccz {Lb("h2ok")}')
                    P('s_mov_b64 exec, vcc')
                    for x in ld: P(x, nowait=True)
                    P('s_mov_b64 exec, -1')
                dly(gap)
            P.label(Lb('h2s'))
            for j in range(4):
                P('s_mov_b64 exec, vcc')
                for x in ld: P(x, nowait=True)
                P(f's_mov_b64 exec, -1\ns_add_u32 {sSPIN}, {sSPIN}, 1\ns_waitcnt vmcnt({nl * (max(nr, n2) - 1)})')
                for x in ck: P(x, nowait=True)
                P(f's_cbranch_vccz {Lb("h2ok")}')
            P(f's_cmp_lt_u32 {sSPIN}, {SPIN_MAX}\ns_cbranch_scc1 {Lb("h2s")}')
            if wf:
                P.label(Lb('h2ok'))
                for x in wr: P(x, nowait=True)
                P(f's_branch {Lb("h2w")}')
            else: P(f's_branch {Lb("h2ok")}')
        retry.append(r2)

    P.c(f'---- chain wave {w}')
    for r in range(0, 16, 2): P(z2(ACQ + r))
    P(f's_mov_b32 m0, {L_SCR}')
    P(f's_branch {Lb("h2")}')
    P.raw('.p2align 6')
    P.label(Lb('top'), lg=[set()], vm=[quad(QD), set(), set()] if w == 0 else [])
    P.t = 0; P.tm = -999
    P('s_waitcnt lgkmcnt(0)\ns_barrier')
    mark('top')
    P(rdA(0)); P(rdA(1))
    if not tight: dma()
    seq = 'q0a q0b q1a k0a q1b k1a k1b q2a k0b q2b q3a k2a q3b k3a k3b k2b q8a q8b k8a q4a q4b q5a k8b q5b q6a k4a q7a q6b q7b k4b k5a k6a k7a k5b k6b k7b'.split()
    seq = T.get('seq', 'q0a q0b q1a k0a q1b k1a k1b k0b q2a q2b k2a q3a q3b k2b k3a k3b q8a k8a q8b k8b q4a q4b q5a q5b k4a q6a q7a q6b q7b k4b k5a k6a k7a k5b k6b k7b').split()
    mf = [sm(s) for s in seq]
    side = {}
    at = {s: i for i, s in enumerate(seq)}
    ds_busy = set()
    def put_ds(i, x):
        while i in ds_busy: i += 1
        ds_busy.add(i); addside(side, i, x)
    bl = T.get('bl', 15)
    if not tight:
        addside(side, bl - 1, dma_wait); addside(side, 1, f's_mov_b32 m0, {L_SCR}')
    if 'nobl' not in opt: addside(side, bl, 's_barrier')
    ds_busy.add(bl)
    last = lambda t: max(i for s, i in at.items() if s[1] == str(t))
    todo = [(at[p], x) for p, o in (('q0a', ('k', 0, 1)), ('k0a', ('k', 2, 0)), ('k0b', ('k', 2, 1)), ('k2a', ('k', 8, 0)), ('k2b', ('k', 8, 1)),
                                    ('k8a', ('k', 4, 0)), ('k8b', ('k', 4, 1))) for x in F(o)]
    todo = [(bl + 1, rdA(4)), (bl + 2, rdA(5))] + todo[:-2] + [(2, rdA(2)), (5, rdA(3)), (last(0), rdA(8)), (bl + 1, rdA(6)), (bl + 1, rdA(7))] + todo[-2:]
    for i, x in todo:
        if 'nostream' in opt and x not in [rdA(t) for t in range(9)]: continue
        put_ds(i, x)
    kx = [f'buffer_load_dwordx4 {vr(KX + 4 * c, 4)}, v{A2}, {SWS}, {sKV} offen offset:{1024 * c} sc1' for c in range(2)]
    vx = [f'buffer_load_dwordx4 {vr(VX + 4 * c, 4)}, v{A2}, {SWS}, {sKV2} offen offset:{1024 * c} sc1' for c in range(2)]
    exp_ = f'buffer_store_dwordx4 {vr(QE, 4)}, v{A2}, {SWS}, {sEXP} offen sc1'
    touch = f'buffer_load_dword v{VM + 1}, {SWS}, {sPF} offen lds'
    for i, s in zip(T.get('vm_at', (2, 4, 6, 8, 9 + 2 * w, 12 if w != 2 else 14)), (kx[0], kx[1], vx[0], vx[1], exp_, touch)):
        if 'noexp' in opt and s is exp_: continue
        if 'notouch' in opt and s is touch: continue
        if 'nokv' in opt and (s in kx or s in vx): continue
        side[i] = [s] + side.get(i, [])
    if w == 1 and 'noexp' not in opt:
        addside(side, 33, 's_mov_b64 exec, 1', f'buffer_store_dword v{VM}, v{A2}, {SWS}, {sFLG} offen sc1', 's_mov_b64 exec, -1')
    addside(side, 18, f'v_mov_b32 v{ONES}, 0x3f803f80'); addside(side, 20, f'v_mov_b32 v{ONES + 1}, 0x3f803f80')
    addside(side, 22, f'v_mov_b64 {vr(ONES + 2, 2)}, {vr(ONES, 2)}')
    for j, i in enumerate((24, 25, 26, 27)): addside(side, i, z2(ACV + 2 * j))
    dw = lambda r, o: f'ds_write_b32 v{R3}, v{r} offset:{o}'
    qv = [add(ACQ, ACQ + 2), add(ACQ + 1, ACQ + 3), add(ACQ + 4, ACQ + 6), cvt(ACQ + 2, ACQ, ACQ + 4), dw(ACQ + 2, 0),
          add(ACQ + 5, ACQ + 7), cvt(ACQ + 3, ACQ + 1, ACQ + 5), dw(ACQ + 3, PITCH)]
    addside(side, 28, qv[0]); addside(side, 29, qv[1]); addside(side, 30, qv[2], qv[3]); addside(side, 31, *qv[4:7])
    addside(side, 32, qv[7], f'v_cmp_u_f32 vcc, v{ACQ}, v{ACQ + 1}')
    ka = [add(ACK, ACK + 2), add(ACK + 1, ACK + 3)]
    addside(side, 34, *ka)
    def nanbr():
        P(f's_cbranch_vccnz {Lb("rec")}')
        P.label(Lb('recok'), keep=True)
    addside(side, 35, nanbr)
    run(mf, side, 'q')
    def recover():
        P.label(Lb('rec'))
        P('s_nop 7\ns_waitcnt vmcnt(0) lgkmcnt(0)')
        for x in maxtree(list(range(QA, QE + 4))): P(x)
        P(f'v_cmp_eq_u32 vcc, -1, v{CK}\ns_cbranch_vccz {Lb("recok")}')
        P('s_barrier')
        if not tight:
            HD = [QOP, QOP + 4]
            P.label(Lb('recp'))
            for q, r in enumerate(HD): P(f'buffer_load_dwordx4 {vr(r, 4)}, v{A2}, {SWS}, {sMR} offen offset:{1024 * q} sc1')
            P(f's_add_u32 {sSPIN}, {sSPIN}, 1\ns_cmp_lt_u32 {sSPIN}, {SPIN_MAX}\ns_cselect_b32 {sT0}, -2, -1')
            for x in maxtree([r + j for r in HD for j in range(4)]): P(x)
            P(f'v_cmp_lt_u32 vcc, {sT0}, v{CK}\ns_cbranch_vccnz {Lb("recp")}')
            for q, r in enumerate(HD): P(f'ds_write_b128 v{A2}, {vr(r, 4)} offset:{L_MEM + 1024 * (2 * w + q)}')
        for r in range(0, 16, 2): P(z2(ACQ + r))
        P('s_waitcnt lgkmcnt(0)\ns_barrier')
        for t in range(9):
            P(rdA(t))
            for s in (f'q{t}a', f'q{t}b', f'k{t}a', f'k{t}b'):
                o = (s[0], t, 'ab'.index(s[2]))
                if HOME[o][0] == 'lds':
                    for x in lds_fetch(o, QOP, w): P(x)
                P(sm(s, QOP))
        for x in qv + ka: P(x)
        P(f's_waitcnt lgkmcnt(0)\ns_nop 1\ns_branch {Lb("recok")}')
    retry.append(recover)
    W0, W1 = (('x', 0), ('x', 1)) if heavy else (('d', 1, 2), ('d', 1, 3))
    KOP = ACQ; PX = ACK + 4; PM = ACK; OD = QA; LD = QC; OO = QD
    S0, S1 = KOP + 4, KOP + 5
    sx = [f'{MF} {vr(KX, 4)}, {vr(KX, 4)}, {vr(QOP, 4)}, 0', f'{MF} {vr(KX, 4)}, {vr(KX + 4, 4)}, {vr(QOP + 4, 4)}, {vr(KX, 4)}']
    smm = [f'{MF} {vr(KOP, 4)}, {vr(KOP, 4)}, {vr(QOP, 4)}, 0', f'{MF} {vr(KOP, 4)}, {vr(KOP + 4, 4)}, {vr(QOP + 4, 4)}, {vr(KOP, 4)}']
    pvx = [f'{MF} {vr(LD, 4)}, {vr(PX, 4)}, {vr(ONES, 4)}, 0', f'{MF} {vr(OD, 4)}, {vr(PX, 4)}, {vr(VX, 4)}, 0', f'{MF} {vr(OD + 4, 4)}, {vr(PX, 4)}, {vr(VX + 4, 4)}, 0']
    pvm = [f'{MF16} {vr(LD, 4)}, {vr(PM, 2)}, {vr(ONES, 2)}, {vr(LD, 4)}', f'{MF16} {vr(OD, 4)}, {vr(PM, 2)}, {vr(VM, 2)}, {vr(OD, 4)}',
           f'{MF16} {vr(OD + 4, 4)}, {vr(PM + 2, 2)}, {vr(VM, 2)}, {vr(OD + 4, 4)}']
    v = [sm(s) for s in 'v5a v5b v8a v8b v4a v4b v7a v7b v6a v6b v0a v0b v1a v2a v3a v1b v2b v3b'.split()]
    mf = v[:6] + sx + v[6:11] + smm + v[11:] + pvx + pvm
    QP = lambda p: DPP(f'quad_perm:{p}')
    WW = P.wait_writes
    side = {0: [WW, 's_barrier', f'ds_read_b128 {vr(QOP, 4)}, v{R1}'],
            1: [f'ds_read_b128 {vr(QOP + 4, 4)}, v{R1} offset:128', add(ACK + 4, ACK + 6), cvt(ACK + 2, ACK, ACK + 4)],
            2: [dw(ACK + 2, 256), add(ACK + 5, ACK + 7), cvt(ACK + 3, ACK + 1, ACK + 5)],
            3: [dw(ACK + 3, 256 + PITCH), flip],
            4: [rdA(0), f'v_mov_b32 v{PM + 1}, 0'],
            5: [f's_waitcnt vmcnt(99) lgkmcnt(3)', f'v_mov_b32 v{PM + 2}, 0'],
            6: [rdA(1), WW],
            7: ['s_barrier'],
            8: [f'ds_read_b128 {vr(KOP, 4)}, v{R1} offset:256', f'ds_read_b128 {vr(KOP + 4, 4)}, v{R1} offset:384'],
            9: [rdA(2), f'v_add_f32_dpp v{VM}, v{KX + 2}, v{KX} {QP("[2,3,0,1]")}', f'v_add_f32_dpp v{VM + 1}, v{KX + 3}, v{KX + 1} {QP("[2,3,0,1]")}'],
            10: [F(W0)[0], f'v_exp_f32_dpp v{VM}, v{VM} {QP("[0,1,0,1]")}'],
            11: [rdA(3), f'v_exp_f32_dpp v{VM + 1}, v{VM + 1} {QP("[0,1,0,1]")}'],
            12: ['s_waitcnt lgkmcnt(3)', cvt(VM, VM, VM + 1)],
            13: [f'ds_write_b32 v{R2}, v{VM} offset:{512 + 4 * w}'],
            14: [F(W0)[1]],
            15: [F(W1)[0]],
            16: [f'v_add_f32_dpp v{S0}, v{KOP + 2}, v{KOP} {QP("[2,3,0,1]")}', f'v_add_f32_dpp v{S1}, v{KOP + 3}, v{KOP + 1} {QP("[2,3,0,1]")}'],
            17: [WW, 's_barrier', f'ds_read_b128 {vr(PX, 4)}, v{R2} offset:512'],
            18: [F(W1)[1], f'v_mul_f32 v{S0}, {sCB}, v{S0}'],
            19: [f'v_mul_f32 v{S1}, {sCB}, v{S1}'],
            20: [f'v_exp_f32_dpp v{S0}, v{S0} {QP("[0,1,0,1]")}'],
            21: [f's_waitcnt vmcnt(98) lgkmcnt(1)', f'v_exp_f32_dpp v{S1}, v{S1} {QP("[0,1,0,1]")}'],
            22: [add(ACV, ACV + 2), add(ACV + 1, ACV + 3)],
            23: [add(ACV + 4, ACV + 6), add(ACV + 5, ACV + 7)],
            24: [cvt(PM, S0, S1), cvt(VM, ACV, ACV + 1), cvt(VM + 1, ACV + 4, ACV + 5)],
            25: [cvt(PM + 3, S0, S1)],
            26: [f'ds_read_b128 {vr(ONES, 4)}, v{A2} offset:{L_TAB}']}
    def vmw(regs, lg):
        def f():
            k = max([j for j, x in enumerate(P.vm) if x & regs], default=-1)
            P('s_waitcnt ' + (f'vmcnt({len(P.vm) - 1 - k}) ' if k >= 0 else '') + f'lgkmcnt({lg})')
        return f
    side[5][0] = vmw(quad(KX) | quad(KX + 4), 3)
    side[21][0] = vmw(quad(VX) | quad(VX + 4), 1)
    run(mf, side, 'v')
    P(f'v_rcp_f32 v{LD + 2}, v{LD}\nv_rcp_f32 v{LD + 3}, v{LD + 1}')
    for r in (0, 1, 4, 5): P(f'v_mul_f32 v{OD + r}, v{LD + 2 + r % 2}, v{OD + r}')
    P(cvt(OD + 2, OD, OD + 4)); P(dw(OD + 2, 0)); P(cvt(OD + 3, OD + 1, OD + 5)); P(dw(OD + 3, PITCH))
    mark('owr')
    for r in range(QE, ACK + 8, 2): P(z2(r))
    P('s_waitcnt lgkmcnt(0)\ns_barrier')
    mark('obar1')
    ODUP = QA
    for c in range(4): P(f'ds_read_b128 {vr(ODUP + 4 * c, 4)}, v{R2} offset:{64 * c}')
    P(f's_cmp_eq_u32 {sSTEP}, {NSEG - 1}\ns_cbranch_scc1 {Lb("last")}')
    mark('obar')
    inc = 0 if 'samekv' in opt else 32 * 16384
    book = (f"""s_add_u32 {sKV}, {sKV}, {inc}
    s_add_u32 {sKV2}, {sKV2}, {inc}
    s_add_u32 {sPF}, {sPF}, {inc}
    s_add_u32 {sEXP}, {sEXP}, {32 * 4096}
    s_add_u32 {sSTEP}, {sSTEP}, 1
    s_xor_b32 {sMR}, {sMR}, {0 if 'nocomm' in opt else MEM_SLOT}
    s_xor_b32 {sM8}, {sM8}, {0 if 'nocomm' in opt else MEM_SLOT}""")
    W = [QE, ACQ, ACQ + 4, ACK, ACK + 4]
    order = [0, 4, 1, 2, 3] if heavy else [0, 1, 2, 3]
    nd = len(order)
    mf = [f'{SM} {vr(W[d], 4)}, {vr(ODUP + 4 * c, 4)}, {bsrc(("d", d, c) if d < 4 else ("x", c))}, v{IDX}' for d in order for c in range(4)]
    side = {}
    fl = (F(('x', 2)) + F(('x', 3)) + F(('d', 1, 2)) + F(('d', 1, 3)) if heavy else []) + F(('d', 2, 2)) + F(('d', 2, 3)) + F(('d', 3, 2)) + F(('d', 3, 3))
    slots = [0, 0, 1, 2, 4, 4, 5, 6, 7, 8, 9, 10, 11, 12, 13, 14] if heavy else [2, 3, 4, 5, 6, 7, 8, 9]
    for i, x in zip(slots, fl): addside(side, i, x)
    tagi = lambda d: f'v_bfi_b32 v{W[d]}, 1, {sTAG}, v{W[d]}'
    pst = lambda d: f'buffer_store_dwordx2 {vr(W[d], 2)}, v{A3}, {SWS}, {sPW[d]} offen {stf}'
    for j, d in enumerate(order[:-1]):
        i = max(4 * j + 5, T.get('d0', 5))
        addside(side, i, cvt(W[d], W[d], W[d] + 1), cvt(W[d] + 1, W[d] + 2, W[d] + 3), tagi(d))
        addside(side, i + 1, pst(d))
    kmrd = f'ds_read_b64 {vr(QE, 2)}, v{R1} offset:{256 + 128 * (w // 2) + 8 * (w % 2)}'
    addside(side, 15, kmrd, flip)
    addside(side, 10, f'v_mov_b64 {vr(QE + 2, 2)}, {vr(VM, 2)}')
    addside(side, 11, z2(W[order[1]])); addside(side, 12, z2(W[order[1]] + 2))
    n1 = T.get('n1', (2, 2, 2, 2))[w]
    if w > 0:
        SELR, RDS, sets = QA, [QB], [[VX], [ACV], [KX], [QOP]][:n1]
    else:
        SELR, RDS, sets = VX, [VX + 4, ACV], [[QA, QC], [KX, QOP]][:n1]
    srcs = [sPR, sPRX]
    h1ld = [[f'buffer_load_dwordx4 {vr(dat + 4 * q, 4)}, v{A2}, {SWS}, {srcs[u]} offen offset:{1024 * q} sc1' for u, dat in enumerate(st_) for q in range(2)] for st_ in sets]
    run(mf, side, 'w')
    d = order[-1]
    P(f'ds_read_b128 {vr(SELR, 4)}, v{A2} offset:{L_SEL}')
    P(cvt(W[d], W[d], W[d] + 1)); P(cvt(W[d] + 1, W[d] + 2, W[d] + 3)); P(tagi(d)); P(pst(d))
    mark('wend')
    for dd in order[2:]: P(z2(W[dd])); P(z2(W[dd] + 2))
    P(book)
    fill = F(('q', 0, 0)) + F(('q', 0, 1)) + F(('k', 0, 0))
    post = [f'v_lshlrev_b32 v{VM + 1}, 2, v{A2}'] + ([f'v_mov_b32 v{VM}, {sSTEP}'] if w == 1 else [])
    if 'nocomm' in opt:
        for x in fill + post: P(x)
        dly(100)
        if not tight: P(f's_mov_b32 m0, {L_MEM + 2048 * w}')
        P(f's_branch {Lb("top")}')
    dly(T.get('h1dly', (24, 40, 40, 56))[w])
    for j in range(n1):
        for x in h1ld[j]: P(x)
        if j == 0: mark('h1i')
        if j + 1 < n1: dly(T.get('gap1', 28))
    pub = [(A5, sMW), (A5X, sMWX)]
    def reduce_check(st_, mk=False):
        for u, dat in enumerate(st_):
            rd = RDS[u]
            P(f'{MF} {vr(rd, 4)}, {vr(SELR, 4)}, {vr(dat, 4)}, 0')
            if mk and u == 0: mark('h1d')
            P(f'v_bitop3_b32 v{CK if u == 0 else CK2}, v{dat}, v{dat + 2}, {sTAG} bitop3:0x7e')
            if u: P(f'v_or_b32 v{CK}, v{CK}, v{CK2}')
            P(f'{MF} {vr(rd, 4)}, {vr(SELR, 4)}, {vr(dat + 4, 4)}, {vr(rd, 4)}')
            P(f'v_bitop3_b32 v{CK2}, v{dat + 4}, v{dat + 6}, {sTAG} bitop3:0x7e')
            if u + 1 < len(st_): P(f'v_or_b32 v{CK}, v{CK}, v{CK2}')
        P(f'v_bitop3_b32 v{CK}, v{CK}, v{CK2}, 1 bitop3:0xa8')
        P(f'v_cmp_ne_u32 vcc, 0, v{CK}')
    spec = (T.get('spec', 1) and n1 == 1)
    def publish(spec):
        if spec:
            P('s_cmp_eq_u64 vcc, 0')
            for u in range(len(RDS)): P(f's_cselect_b32 {(sT0, sT1)[u]}, {pub[u][1]}, {WS_SIZE}')
        for u, rd in enumerate(RDS):
            for rot in (4, 8):
                for r in range(2): P(f'v_add_f32_dpp v{rd + r}, v{rd + r}, v{rd + r} {DPP(f"row_ror:{rot}")}')
            P(cvt(rd, rd, rd + 1))
            P(f'buffer_store_dword v{rd}, v{pub[u][0]}, {SWS}, {(sT0, sT1)[u] if spec else pub[u][1]} offen {stf}')
    reduce_check(sets[0], True)
    if spec: publish(True)
    P(f's_cbranch_vccnz {Lb("h1r")}')
    if not spec:
        P.label(Lb('h1p'), keep=True)
        publish(False)
    P.label(Lb('h1ok'), keep=True)
    mark('pub')
    def r1():
        regsets = [[Ins(x).ws for x in l] for l in h1ld]
        P.label(Lb('h1r'), vm=[x for l in regsets[1:] for x in l])
        for j in range(n1):
            P('s_mov_b64 exec, vcc')
            for x in h1ld[j]: P(x)
            P(f's_mov_b64 exec, -1\n{DIAG}\ns_add_u32 {sSPIN}, {sSPIN}, 1')
            reduce_check(sets[(j + 1) % n1])
            P(f's_cbranch_vccz {Lb("h1p")}')
        P(f's_cmp_lt_u32 {sSPIN}, {SPIN_MAX}\ns_cbranch_scc1 {Lb("h1r")}')
        if spec:
            P.label(Lb('h1p'))
            P('s_nop 2')
            publish(False)
            P(f's_branch {Lb("h1ok")}')
        else: P(f's_branch {Lb("h1p")}')
    retry.append(r1)
    for u in range(len(RDS)): P(f's_xor_b32 {pub[u][1]}, {pub[u][1]}, {MEM_SLOT}')
    P(f's_xor_b32 {sTAG}, {sTAG}, 1')
    dly(T.get('h2dly', (24, 24, 0, 0))[w])
    P.label(Lb('h2'), keep=True)
    P(post[0])
    hop2_entry([f'buffer_store_dword v{TT}, v{pub[u][0]}, {SWS}, {pub[u][1]} offen {stf}' for u in range(len(RDS))], fill)
    for x in post[1:]: P(x)
    P(f's_branch {Lb("top")}')
    for r in retry: r()
    P.label(Lb('last'))
    P('s_waitcnt vmcnt(0) lgkmcnt(0)')
    P(kmrd); P(f'v_mov_b64 {vr(QE + 2, 2)}, {vr(VM, 2)}')
    P(f's_add_u32 {sEXP}, {sEXP}, {32 * 4096}')
    P(exp_)
    P('s_waitcnt vmcnt(0)\ns_barrier')
    if w == 1:
        P(f'v_mov_b32 v{VM}, {NSEG + 1}\ns_mov_b64 exec, 1\nbuffer_store_dword v{VM}, v{A2}, {SWS}, {sFLG} offen sc1\ns_mov_b64 exec, -1')
```

```python
S, D, H, DH, M, SEG, NSEG = 2048, 576, 32, 128, 8, 32, 64
MB = 1 << 20
WS_KVX = 0
WS_KVM = 33 * MB
WS_O   = 42 * MB
WS_OA  = 60 * MB
WS_G   = 64 * MB
WS_PART = 96 * MB
PART_DEST = 2048 + 128
PART_CHUNK = 32 * PART_DEST
WS_MEM = 98 * MB
MEM_SLOT = 1 << 14
WS_WL2 = 99 * MB
WS_FLAG = 101 * MB
WS_FO = 101 * MB + 8192
WS_STAMP = 102 * MB
WS_SIZE = 256 * MB
SX, SWS, SDBG, SWQ, SWK, SWV, SWO, SMEM0, SWQKV, SWOA, SGATE, SOUT = [f's[{4+4*i}:{7+4*i}]' for i in range(12)]
SRD_LIST = [
    (4, 0, S*D*2), (8, 104, WS_SIZE), (12, 96, 256), (16, 40, D*H*DH*2), (20, 48, D*H*DH*2), (24, 56, D*H*DH*2),
    (28, 64, D*H*DH*2), (32, 32, M*D*2), (36, 8, D*3*D*2), (40, 16, D*D*2), (44, 80, D*2), (48, 88, S*D*2)]
import math
CB = math.log2(math.e) / math.sqrt(128.0)
import struct
def f32bits(x): return struct.unpack('<I', struct.pack('<f', x))[0]

DB_TICKET, DB_ARMED, DB_ADONE, DB_TOTAL, DB_SPARE, DB_P1 = 0, 32, 36, 40, 44, 128
CA = math.log2(math.e) / math.sqrt(18.0)
SPIN_MAX = 0x20000
KV_EARLY = 2
```

```python
from asmgen import *
from layout import *

sW, sJ, sT0, sT1, sT2, sT3 = 's52', 's53', 's54', 's55', 's56', 's57'
sH, sSEG, sXS, sM, sB0, sB1, sO, sSPIN, sN, sXM, sU0, sU1, sU2, sU3 = ['s%d' % i for i in range(58, 72)]
MF32 = 'v_mfma_f32_32x32x16_bf16'
MF = 'v_mfma_f32_16x16x32_bf16'
XBUF = 36864
RING = 36864
L, A2, XD, XR, WD0, WD1, RP, RN, T0, T1, T2, T3, RA = 200, 201, 202, 203, 207, 208, 209, 210, 211, 212, 213, 214, 215
XO = 32
cvt = lambda d, a, b: f'v_cvt_pk_bf16_f32 v{d}, v{a}, v{b}'
def wreg(i):
    return ('a', 4 * i) if i < 64 else ('v', 224 + 4 * (i - 64))
def wq(i):
    k, r = wreg(i); return vr(r, 4, k)

def common(P):
    P.c('---- worker per-lane constants')
    P(f'''v_and_b32 v{L}, 63, v0
    v_lshlrev_b32 v{A2}, 4, v{L}
    v_lshrrev_b32 v{T0}, 3, v{L}
    s_lshl_b32 {sT0}, {sW}, 3
    v_add_u32 v{T0}, {sT0}, v{T0}
    v_bfe_u32 v{T1}, v{T0}, 1, 3
    v_and_b32 v{T2}, 7, v{L}
    v_xor_b32 v{T1}, v{T1}, v{T2}
    v_mul_u32_u24 v{T0}, 1152, v{T0}
    v_lshl_add_u32 v{XD}, v{T1}, 4, v{T0}
    s_mul_i32 {sXM}, {sW}, 9216
    v_and_b32 v{T0}, 31, v{L}
    v_lshrrev_b32 v{T1}, 3, v{T0}
    v_mul_u32_u24 v{T1}, 9216, v{T1}
    v_and_b32 v{T2}, 7, v{T0}
    v_lshl_add_u32 v{T1}, v{T2}, 7, v{T1}
    v_bfe_u32 v{T2}, v{T0}, 1, 3
    v_lshrrev_b32 v{T3}, 5, v{L}
    v_xor_b32 v{T2}, v{T2}, v{T3}
    v_lshl_add_u32 v{XR}, v{T2}, 4, v{T1}
    v_xor_b32 v{XR + 1}, 32, v{XR}
    v_xor_b32 v{XR + 2}, 64, v{XR}
    v_xor_b32 v{XR + 3}, 0x60, v{XR}
    v_bfe_u32 v{T0}, v{L}, 2, 2
    v_lshl_add_u32 v{T1}, v{T3}, 3, v{T0}
    v_lshlrev_b32 v{T1}, 8, v{T1}
    v_xor_b32 v{T0}, {sW}, v{T0}
    v_lshl_add_u32 v{T1}, v{T0}, 6, v{T1}
    v_bfe_u32 v{T2}, v{L}, 4, 1
    v_and_b32 v{T0}, 3, v{L}
    v_lshl_add_u32 v{RN}, v{T2}, 5, v{T1}
    v_lshl_add_u32 v{RN}, v{T0}, 3, v{RN}
    v_lshl_add_u32 v{RP}, v{T2}, 4, v{T1}
    v_and_b32 v{T2}, 1, v{T0}
    v_lshl_add_u32 v{RP}, v{T2}, 3, v{RP}
    v_lshrrev_b32 v{T2}, 1, v{T0}
    v_lshl_add_u32 v{RP}, v{T2}, 5, v{RP}
    s_mov_b32 {sSPIN}, 0''')

def xdma(P, buf):
    for c in range(9):
        P(f's_add_u32 m0, {sXM}, {buf * XBUF + 896 * c}')
        P(f'buffer_load_dwordx4 v{XD}, {SX}, {sXS} offen offset:{128 * c} lds')

def wload(P, mats, stride, pre=0):
    blocks = [(m, t) for t in range(9) for m in mats]
    n = len(blocks); NS = 7
    P(f's_lshl_b32 {sM}, {sW}, 10\ns_add_u32 {sM}, {sM}, {RING}')
    def dma(j):
        (srd, va, base, _, _), t = blocks[j]
        for y in range(4):
            P(f's_add_u32 m0, {sM}, {(j % NS) * 16384 + y * 4096}\ns_add_u32 {sT0}, {base}, {(64 * t + 16 * y) * stride}')
            P(f'buffer_load_dwordx4 v{va}, {srd}, {sT0} offen lds')
    for j in range(NS - 1): dma(j)
    for j, ((srd, va, base, ra, q0), t) in enumerate(blocks):
        P(f's_waitcnt vmcnt({4 * (min(n, j + NS - 1) - j - 1)}) lgkmcnt(0)\ns_barrier')
        if j + NS - 1 < n: dma(j + NS - 1)
        P(f'v_add_u32 v{RA}, {RING + (j % NS) * 16384}, v{ra}')
        for kk in range(4):
            k, r = wreg(q0 + 4 * t + kk)
            for u in range(2): P(f'ds_read_b64_tr_b16 {vr(r + 2 * u, 2, k)}, v{RA} offset:{(16 * kk + 4 * u) * 256}')
    P('s_waitcnt lgkmcnt(0)\ns_barrier')

def gemm(P, buf, tiles):
    rd = lambda k: f'ds_read_b128 {vr(XO + 4 * (k % 4), 4)}, v{XR + k % 4} offset:{buf * XBUF + (k // 4) * 1024}'
    for k in range(3): P(rd(k))
    for k in range(36):
        x = vr(XO + 4 * (k % 4), 4)
        for j, (acc, q0, wa) in enumerate(tiles):
            c = '0' if k == 0 else vr(acc, 16)
            P(f'{MF32} {vr(acc, 16)}, {wq(q0 + k)}, {x}, {c}' if wa else f'{MF32} {vr(acc, 16)}, {x}, {wq(q0 + k)}, {c}')
            if j == 0 and k + 3 < 36: P(rd(k + 3))

def poll(P, name, srd, va, soff, cmp_, exec_, sleep=2):
    P(f's_cmp_eq_u32 {sW}, 0\ns_cbranch_scc0 {name}_d\ns_mov_b32 exec_hi, 0\ns_mov_b32 exec_lo, {exec_}')
    P.label(name)
    P(f'buffer_load_dword v{T0}, v{va}, {srd}, {soff} offen sc1\ns_add_u32 {sSPIN}, {sSPIN}, 1\ns_waitcnt vmcnt(0)')
    P(cmp_)
    P(f's_cbranch_vccz {name}_x\ns_sleep {sleep}\ns_cmp_lt_u32 {sSPIN}, {SPIN_MAX}\ns_cbranch_scc1 {name}')
    P.label(name + '_x')
    P('s_mov_b64 exec, -1')
    P.label(name + '_d')
    P('s_barrier')

def signal_add(P, name, off):
    P(f's_waitcnt vmcnt(0)\ns_barrier\ns_cmp_eq_u32 {sW}, 0\ns_cbranch_scc0 {name}')
    P(f'v_mov_b32 v{T0}, 1\nv_mov_b32 v{T1}, 0\ns_mov_b64 exec, 1\nbuffer_atomic_add v{T0}, v{T1}, {SDBG}, {off} offen\ns_mov_b64 exec, -1')
    P.label(name)

def kv_addr(P, KA, VA):
    P(f'''; K unit address: (tok>>3)*2048 + (4*(j>>1) + 2*hf + (j&1))*16, j = tok&7
    v_bfe_u32 v{T0}, v{L}, 3, 2
    v_lshlrev_b32 v{KA}, 11, v{T0}
    v_bfe_u32 v{T0}, v{L}, 1, 2
    v_lshl_add_u32 v{KA}, v{T0}, 6, v{KA}
    v_lshrrev_b32 v{T1}, 5, v{L}
    v_lshl_add_u32 v{KA}, v{T1}, 5, v{KA}
    v_and_b32 v{T0}, 1, v{L}
    v_lshl_add_u32 v{KA}, v{T0}, 4, v{KA}
    v_bfe_u32 v{T0}, v{L}, 4, 1
    v_lshlrev_b32 v{VA}, 10, v{T0}
    v_lshl_add_u32 v{VA}, v{T1}, 9, v{VA}
    v_and_b32 v{T0}, 15, v{L}
    v_lshl_add_u32 v{VA}, v{T0}, 4, v{VA}
    s_lshl_b32 {sT0}, {sW}, 11
    s_add_u32 {sT0}, {sT0}, 8192
    v_add_u32 v{VA}, {sT0}, v{VA}''')

KA, VA = 216, 217
def head_src(P):
    P(f'''v_lshrrev_b32 v{T0}, 4, v{L}
    v_lshlrev_b32 v{T1}, 2, v{T0}
    v_and_b32 v{T2}, 15, v{L}
    v_xor_b32 v{T1}, v{T1}, v{T2}
    v_lshlrev_b32 v{T1}, 4, v{T1}
    v_lshl_add_u32 v{WD0}, v{T0}, 13, v{T1}
    s_lshl_b32 {sB0}, {sH}, 8
    s_lshl_b32 {sT0}, {sW}, 15
    s_add_u32 {sB0}, {sB0}, {sT0}''')

def phase_kv(P):
    P.c('==== phase 1: k_x (scaled) and v_x of head j/7 for segments j%7, +7, ...')
    P(f'''s_mul_i32 {sH}, {sJ}, 9363
    s_lshr_b32 {sH}, {sH}, 16
    s_mul_i32 {sT0}, {sH}, 7
    s_sub_u32 {sSEG}, {sJ}, {sT0}
    s_mul_i32 {sXS}, {sSEG}, {XBUF}''')
    P.c('the token-attention workgroups clear their own progress word before anyone can look at it')
    P(f'''s_mul_i32 {sT1}, {sJ}, 21846
    s_lshr_b32 {sT1}, {sT1}, 16
    s_mul_i32 {sT2}, {sT1}, 3
    s_sub_u32 {sT2}, {sJ}, {sT2}
    s_lshl_b32 {sT2}, {sT2}, 7
    s_lshl_b32 {sT1}, {sT1}, 2
    s_add_u32 {sT1}, {sT1}, {sT2}
    s_add_u32 {sT1}, {sT1}, {WS_FO}
    s_cmp_lt_u32 {sJ}, 96
    s_cselect_b32 {sU3}, {sT1}, {WS_SIZE}
    v_mov_b32 v{T0}, 0
    s_mov_b64 exec, 1
    buffer_store_dword v{T0}, v{T0}, {SWS}, {sU3} offen sc1
    s_mov_b64 exec, -1''')
    xdma(P, 0)
    head_src(P)
    kv_addr(P, KA, VA)
    wload(P, [(SWK, WD0, sB0, RP, 0), (SWV, WD0, sB0, RN, 36)], 8192)
    P(f's_mov_b32 {sU0}, {f32bits(CB)}\ns_lshl_b32 {sU1}, {sW}, 9')
    P.stamp(1)
    P.label('KV_loop')
    for buf in range(2):
        P(f's_add_u32 {sXS}, {sXS}, {7 * XBUF}')
        xdma(P, 1 - buf)
        gemm(P, buf, [(0, 0, True), (16, 36, False)])
        P(f's_lshl_b32 {sO}, {sSEG}, 5\ns_add_u32 {sO}, {sO}, {sH}\ns_lshl_b32 {sO}, {sO}, 14\ns_add_u32 {sT1}, {sO}, {sU1}')
        for r in range(16): P(f'v_mul_f32 v{r}, {sU0}, v{r}')
        for a in range(2):
            for r in range(4): P(cvt(48 + 4 * a + r, 8 * a + r, 8 * a + 4 + r))
            P(f'buffer_store_dwordx4 {vr(48 + 4 * a, 4)}, v{KA}, {SWS}, {sT1} offen offset:{256 * a} sc1')
        for a in range(2):
            for r in range(4): P(cvt(56 + 4 * a + r, 16 + 4 * r + 2 * a, 17 + 4 * r + 2 * a))
            P(f'buffer_store_dwordx4 {vr(56 + 4 * a, 4)}, v{VA}, {SWS}, {sO} offen offset:{256 * a} sc1')
        P(f's_add_u32 {sSEG}, {sSEG}, 7\ns_cmp_ge_u32 {sSEG}, {NSEG}\ns_cbranch_scc1 KV_done')
        P('s_waitcnt vmcnt(4)\ns_barrier')
    P('s_branch KV_loop')
    P.label('KV_done')
    P(f's_lshl_b32 {sT2}, {sH}, 2\ns_add_u32 {sT2}, {sT2}, {DB_P1}')
    signal_add(P, 'KV_sig', sT2)

def phase_attn(P):
    P.c('==== token attention: head j/3, segments j%3, +3, ...')
    QL = 2 * XBUF
    MASK, SX_, SM_, QO, KO, VO, VMO, OA, KM, VMA = 48, 64, 80, 96, 128, 160, 168, 0, 218, 219
    P(f'''s_mul_i32 {sH}, {sJ}, 21846
    s_lshr_b32 {sH}, {sH}, 16
    s_mul_i32 {sT0}, {sH}, 3
    s_sub_u32 {sSEG}, {sJ}, {sT0}
    s_mul_i32 {sXS}, {sSEG}, {XBUF}''')
    xdma(P, 0)
    head_src(P)
    wload(P, [(SWQ, WD0, sB0, RP, 0)], 8192)
    P(f'''; causal mask as accumulator start: key = 8*(r>>2) + 4*hf + (r&3) > query -> -1e30
    v_and_b32 v{T0}, 31, v{L}
    v_lshrrev_b32 v{T1}, 5, v{L}
    v_lshlrev_b32 v{T2}, 2, v{T1}
    v_sub_u32 v{T0}, v{T0}, v{T2}
    v_mov_b32 v{T3}, 0xf149f2ca''')
    for r in range(16):
        P(f'v_cmp_gt_i32 vcc, {8 * (r // 4) + r % 4}, v{T0}\nv_cndmask_b32 v{MASK + r}, 0, v{T3}, vcc')
    P(f'''v_and_b32 v{KM}, 0xff, v{KA}
    ; v_m: w*1024 + (32*hf + (n&15))*16 + 8 + 4*(n>>4)
    v_and_b32 v{T0}, 15, v{L}
    v_lshl_add_u32 v{T0}, v{T1}, 5, v{T0}
    v_lshlrev_b32 v{VMA}, 4, v{T0}
    v_bfe_u32 v{T0}, v{L}, 4, 1
    v_lshl_add_u32 v{VMA}, v{T0}, 2, v{VMA}
    s_lshl_b32 {sT0}, {sW}, 10
    s_add_u32 {sT0}, {sT0}, 8
    v_add_u32 v{VMA}, {sT0}, v{VMA}
    s_lshl_b32 {sT0}, {sW}, 11
    s_add_u32 {sT0}, {sT0}, {QL}
    v_add_u32 v{RA}, {sT0}, v{A2}
    v_add_u32 v{WD1}, {QL}, v{A2}
    s_mov_b32 {sU0}, {f32bits(CB)}
    s_lshl_b32 {sU1}, {sH}, 7
    s_add_u32 {sU1}, {sU1}, {WS_FLAG}
    s_lshl_b32 {sT2}, {sH}, 2
    s_add_u32 {sT2}, {sT2}, {DB_P1}
    s_mov_b32 {sT3}, {DB_ARMED}''')
    poll(P, 'AT_p1', SDBG, A2, sT2, f'v_cmp_gt_u32 vcc, 7, v{T0}', 1, 8)
    poll(P, 'AT_arm', SDBG, A2, sT3, f'v_cmp_gt_u32 vcc, 32, v{T0}', 1, 8)
    P.stamp(3)
    P.label('AT_loop')
    for buf in range(2):
        P(f's_lshl_b32 {sO}, {sSEG}, 5\ns_add_u32 {sO}, {sO}, {sH}\ns_lshl_b32 {sT1}, {sO}, 14')
        for i in range(8): P(f'buffer_load_dwordx4 {vr(KO + 4 * i, 4)}, v{KA}, {SWS}, {sT1} offen offset:{256 * i} sc1')
        for a in range(2): P(f'buffer_load_dwordx4 {vr(VO + 4 * a, 4)}, v{VA}, {SWS}, {sT1} offen offset:{256 * a} sc1')
        P(f's_add_u32 {sXS}, {sXS}, {3 * XBUF}')
        xdma(P, 1 - buf)
        gemm(P, buf, [(0, 0, True)])
        for a in range(2):
            for r in range(4): P(cvt(16 + 4 * a + r, 8 * a + r, 8 * a + 4 + r))
            P(f'ds_write_b128 v{RA}, {vr(16 + 4 * a, 4)} offset:{1024 * a}')
        P('s_waitcnt lgkmcnt(0)\ns_barrier')
        for i in range(8): P(f'ds_read_b128 {vr(QO + 4 * i, 4)}, v{WD1} offset:{1024 * i}')
        for i in range(8): P(f'{MF32} {vr(SX_, 16)}, {vr(KO + 4 * i, 4)}, {vr(QO + 4 * i, 4)}, {vr(MASK if i == 0 else SX_, 16)}')
        P(f's_add_u32 {sU2}, {sSEG}, 2\ns_lshl_b32 {sT1}, {sO}, 12\ns_add_u32 {sT1}, {sT1}, {WS_KVM}')
        MX = 16
        P(f'v_max3_f32 v{MX}, v{SX_}, v{SX_ + 1}, v{SX_ + 2}')
        for r in range(3, 15, 2): P(f'v_max3_f32 v{MX}, v{MX}, v{SX_ + r}, v{SX_ + r + 1}')
        P(f'v_max_f32 v{MX}, v{MX}, v{SX_ + 15}')
        P('s_waitcnt vmcnt(0)')
        poll(P, f'AT_m{buf}', SWS, A2, sU1, f'v_cmp_gt_u32 vcc, {sU2}, v{T0}', 1, 1)
        for i in range(8):
            c, g = i // 4, i % 4
            for hf in range(2): P(f'buffer_load_dwordx2 {vr(KO + 4 * i + 2 * hf, 2)}, v{KM}, {SWS}, {sT1} offen offset:{(2 * c + hf) * 1024 + g * 256} sc1')
        for b in range(2): P(f'buffer_load_dword v{VMO + b}, v{VMA}, {SWS}, {sT1} offen offset:{256 * b} sc1')
        for i in range(8): P(f'{MF32} {vr(SM_, 16)}, {vr(KO + 4 * i, 4)}, {vr(QO + 4 * i, 4)}, {"0" if i == 0 else vr(SM_, 16)}')
        P(f's_lshl_b32 {sO}, {sO}, 13\ns_lshl_b32 {sT0}, {sW}, 11\ns_add_u32 {sO}, {sO}, {sT0}\ns_add_u32 {sO}, {sO}, {WS_O}')
        for r in range(4): P(f'v_mul_f32 v{SM_ + r}, {sU0}, v{SM_ + r}')
        P(f'''v_max3_f32 v{MX}, v{MX}, v{SM_}, v{SM_ + 1}
        v_max3_f32 v{MX}, v{MX}, v{SM_ + 2}, v{SM_ + 3}
        v_mov_b32 v{MX + 1}, v{MX}
        v_permlane32_swap_b32 v{MX}, v{MX + 1}
        v_max_f32 v{MX}, v{MX}, v{MX + 1}''')
        sc = list(range(SX_, SX_ + 16)) + list(range(SM_, SM_ + 4))
        for r in sc: P(f'v_sub_f32 v{r}, v{r}, v{MX}')
        for r in sc: P(f'v_exp_f32 v{r}, v{r}')
        PO = 20
        for a in range(2):
            for r in range(4): P(cvt(PO + 4 * a + r, SX_ + 4 * r + 2 * a, SX_ + 4 * r + 2 * a + 1))
        P(cvt(PO + 8, SM_, SM_ + 1)); P(cvt(PO + 9, SM_ + 2, SM_ + 3))
        P(f'{MF32} {vr(OA, 16)}, {vr(VO, 4)}, {vr(PO, 4)}, 0')
        P(f'v_add_f32 v{MX}, v{sc[0]}, v{sc[1]}')
        for r in sc[2:8]: P(f'v_add_f32 v{MX}, v{MX}, v{r}')
        P(f'{MF32} {vr(OA, 16)}, {vr(VO + 4, 4)}, {vr(PO + 4, 4)}, {vr(OA, 16)}')
        for r in sc[8:14]: P(f'v_add_f32 v{MX}, v{MX}, v{r}')
        P(f'v_mfma_f32_32x32x8_bf16 {vr(OA, 16)}, {vr(VMO, 2)}, {vr(PO + 8, 2)}, {vr(OA, 16)}')
        for r in sc[14:]: P(f'v_add_f32 v{MX}, v{MX}, v{r}')
        P(f'''v_mov_b32 v{MX + 1}, v{MX}
        v_permlane32_swap_b32 v{MX}, v{MX + 1}
        v_add_f32 v{MX}, v{MX}, v{MX + 1}
        v_rcp_f32 v{MX}, v{MX}''')
        for a in range(2):
            for r in range(8): P(f'v_mul_f32 v{OA + 8 * a + r}, v{MX}, v{OA + 8 * a + r}')
            for r in range(4): P(cvt(PO + 4 * a + r, OA + 8 * a + 2 * r, OA + 8 * a + 2 * r + 1))
            P(f'buffer_store_dwordx4 {vr(PO + 4 * a, 4)}, v{A2}, {SWS}, {sO} offen offset:{1024 * a} sc1')
        P(f'''s_add_u32 {sSEG}, {sSEG}, 3
        v_mov_b32 v{T1}, {sSEG}
        s_waitcnt vmcnt(0)
        s_barrier
        s_cmp_eq_u32 {sW}, 0
        s_cselect_b32 {sT0}, {sU3}, {WS_SIZE}
        s_mov_b64 exec, 1
        buffer_store_dword v{T1}, v{A2}, {SWS}, {sT0} offen sc1
        s_mov_b64 exec, -1
        s_cmp_ge_u32 {sSEG}, {NSEG}
        s_cbranch_scc1 L_exit''')
    P('s_branch AT_loop')

def phase_a(P):
    P.c('==== branch A: 4 heads x 128 tokens (qkv projection, dilated local attention), and the gate of 16 tokens')
    RL, PA = 2 * XBUF, 516
    sG, sRUN = sU0, sU1
    P(f'''s_sub_u32 {sT0}, {sJ}, 96
    s_lshr_b32 {sG}, {sT0}, 4
    s_and_b32 {sRUN}, {sT0}, 15
    s_lshl_b32 {sXS}, {sRUN}, 2
    s_sub_u32 {sXS}, {sXS}, 1
    s_max_i32 {sXS}, {sXS}, 0
    s_mul_i32 {sXS}, {sXS}, {XBUF}''')
    xdma(P, 0)
    P.c('gate: 4 tokens per wave, 16 lanes per token, 72 B per lane')
    GX, GW = 48, 68
    P(f'''v_and_b32 v{T0}, 15, v{L}
    v_mul_u32_u24 v{T0}, 72, v{T0}
    v_lshrrev_b32 v{T1}, 4, v{L}
    v_mul_u32_u24 v{T2}, 1152, v{T1}
    v_add_u32 v{T2}, v{T2}, v{T0}
    s_lshl_b32 {sT0}, {sT0}, 2
    s_add_u32 {sU2}, {sT0}, {sW}
    s_mul_i32 {sT1}, {sU2}, {4 * 1152}''')
    for base, va, srd, so in ((GX, T2, SX, sT1), (GW, T0, SGATE, '0')):
        for i in range(4): P(f'buffer_load_dwordx4 {vr(base + 4 * i, 4)}, v{va}, {srd}, {so} offen offset:{16 * i}')
        P(f'buffer_load_dwordx2 {vr(base + 16, 2)}, v{va}, {srd}, {so} offen offset:64')
    P(f'v_mov_b32 v0, 0\nv_mov_b32 v1, 0x3f803f80')
    for i in range(18):
        P(f'''v_lshlrev_b32 v2, 16, v{GX + i}
        v_lshlrev_b32 v3, 16, v{GW + i}
        v_and_b32 v4, 0xffff0000, v{GX + i}
        v_and_b32 v5, 0xffff0000, v{GW + i}
        v_mul_f32 v2, v2, v3
        v_mul_f32 v4, v4, v5
        v_cvt_pk_bf16_f32 v2, v2, v4
        v_lshlrev_b32 v3, 16, v2
        v_and_b32 v4, 0xffff0000, v2
        v_add_f32 v0, v0, v3
        v_add_f32 v0, v0, v4''')
    for rot in (1, 2, 4, 8): P(f'v_add_f32_dpp v0, v0, v0 row_ror:{rot} row_mask:0xf bank_mask:0xf')
    P(f'''v_cvt_pk_bf16_f32 v0, v0, v0
    v_lshlrev_b32 v0, 16, v0
    v_mul_f32 v0, {f32bits(-math.log2(math.e))}, v0
    v_exp_f32 v0, v0
    v_add_f32 v0, 1.0, v0
    v_rcp_f32 v0, v0
    v_cvt_pk_bf16_f32 v0, v0, v0
    v_lshlrev_b32 v0, 16, v0
    v_lshlrev_b32 v{T1}, 2, v{T1}
    s_lshl_b32 {sT1}, {sU2}, 4
    s_add_u32 {sT1}, {sT1}, {WS_G}
    s_mov_b64 exec, 0x0001000100010001
    buffer_store_dword v0, v{T1}, {SWS}, {sT1} offen sc1
    s_mov_b64 exec, -1'''.replace('s_mov_b64 exec, 0x0001000100010001', 's_mov_b32 exec_lo, 0x00010001\ns_mov_b32 exec_hi, 0x00010001'))
    P.c('weight sources: virtual chunk cv = 16m + (p ^ 4r): 1152*(cv/9) + 16*(cv%9), cv >= 27 is padding')
    P(f'''v_lshrrev_b32 v{T0}, 4, v{L}
    v_lshlrev_b32 v{T1}, 2, v{T0}
    v_and_b32 v{T2}, 15, v{L}
    v_xor_b32 v{T1}, v{T1}, v{T2}
    v_mul_u32_u24 v{T0}, 3456, v{T0}
    v_mov_b32 v2, 0x40000000''')
    for m, wd in enumerate((WD0, WD1)):
        P(f'''v_add_u32 v{T2}, {16 * m}, v{T1}
        v_mul_u32_u24 v{T3}, 57, v{T2}
        v_lshrrev_b32 v{T3}, 9, v{T3}
        v_mul_u32_u24 v{T3}, 1008, v{T3}
        v_lshl_add_u32 v{T3}, v{T2}, 4, v{T3}
        v_add_u32 v{T3}, v{T3}, v{T0}
        v_cmp_lt_u32 vcc, 26, v{T2}
        v_cndmask_b32 v{wd}, v{T3}, v2, vcc''')
    P(f's_mul_i32 {sB0}, {sG}, 144\ns_mul_i32 {sT0}, {sW}, {4 * 3456}\ns_add_u32 {sB0}, {sB0}, {sT0}')
    P('s_waitcnt vmcnt(0)')
    wload(P, [(SWQKV, WD0, sB0, RN, 0), (SWQKV, WD1, sB0, RN, 36)], 3456)
    P.stamp(3)
    WA, RB_, OAD = 218, 219, 220
    P(f'''; qkv row write address: (l&31)*PA + 64w + 8*hf
    v_and_b32 v{T0}, 31, v{L}
    v_mul_u32_u24 v{WA}, {PA}, v{T0}
    v_lshrrev_b32 v{T1}, 5, v{L}
    v_lshl_add_u32 v{WA}, v{T1}, 3, v{WA}
    s_lshl_b32 {sT0}, {sW}, 6
    s_add_u32 {sT0}, {sT0}, {RL}
    v_add_u32 v{WA}, {sT0}, v{WA}
    s_lshl_b32 {sXS}, {sRUN}, 2
    s_mul_i32 {sXS}, {sXS}, {XBUF}''')
    for tile in range(5):
        buf = tile % 2
        if tile < 4:
            xdma(P, 1 - buf)
            P(f's_add_u32 {sXS}, {sXS}, {XBUF}')
        gemm(P, buf, [(0, 0, True), (16, 36, True)])
        for m in range(2):
            for qd in range(4):
                P(cvt(48, 16 * m + 4 * qd, 16 * m + 4 * qd + 1)); P(cvt(49, 16 * m + 4 * qd + 2, 16 * m + 4 * qd + 3))
                o = (256 * m + 16 * qd) // 4
                P(f'ds_write2_b32 v{WA}, v48, v49 offset0:{o} offset1:{o + 1}')
        P(f'v_add_u32 v{WA}, {32 * PA}, v{WA}')
        P('s_waitcnt vmcnt(0) lgkmcnt(0)\ns_barrier')
    P.c('attention: wave = head, lane = token, two rounds of 64 tokens')
    Q, KV, SC, O = 0, 16, 100, 112
    P(f'''v_mul_u32_u24 v{RB_}, {PA}, v{L}
    s_mul_i32 {sT0}, {sW}, 36
    s_add_u32 {sT1}, {sT0}, {RL + (32 - 14) * PA}
    v_add_u32 v{RB_}, {sT1}, v{RB_}
    v_mul_u32_u24 v{OAD}, 1152, v{L}
    s_mul_i32 {sT1}, {sG}, 144
    s_add_u32 {sT0}, {sT0}, {sT1}
    s_mul_i32 {sT1}, {sRUN}, {128 * 1152}
    s_add_u32 {sO}, {sT0}, {sT1}
    s_add_u32 {sO}, {sO}, {WS_OA}
    s_lshl_b32 {sN}, {sRUN}, 7
    s_mov_b32 {sT3}, {f32bits(CA)}''')
    def rd9(dst, off):
        for i in range(9): P(f'ds_read_b32 v{dst + i}, v{RB_} offset:{off + 4 * i}')
    for rnd in range(2):
        rd9(Q, 14 * PA)
        for j in range(8): rd9(KV + 9 * j, (14 - 2 * j) * PA + 144)
        for j in range(8): P(f'v_mov_b32 v{SC + j}, 0')
        for i in range(9):
            for j in range(8): P(f'v_dot2c_f32_bf16 v{SC + j}, v{Q + i}, v{KV + 9 * j + i}')
        for j in range(8): rd9(KV + 9 * j, (14 - 2 * j) * PA + 288)
        P(f'v_add_u32 v{T0}, {sN}, v{L}\nv_mov_b32 v{T1}, 0xf149f2ca')
        for j in range(8): P(f'v_mul_f32 v{SC + j}, {sT3}, v{SC + j}')
        for j in range(1, 8): P(f'v_cmp_gt_u32 vcc, {2 * j}, v{T0}\nv_cndmask_b32 v{SC + j}, v{SC + j}, v{T1}, vcc')
        P(f'''v_max3_f32 v{T2}, v{SC}, v{SC + 1}, v{SC + 2}
        v_max3_f32 v{T2}, v{T2}, v{SC + 3}, v{SC + 4}
        v_max3_f32 v{T2}, v{T2}, v{SC + 5}, v{SC + 6}
        v_max_f32 v{T2}, v{T2}, v{SC + 7}''')
        for j in range(8): P(f'v_sub_f32 v{SC + j}, v{SC + j}, v{T2}')
        for j in range(8): P(f'v_exp_f32 v{SC + j}, v{SC + j}')
        P(f'v_add_f32 v{T2}, v{SC}, v{SC + 1}')
        for j in range(2, 8): P(f'v_add_f32 v{T2}, v{T2}, v{SC + j}')
        P(f'v_rcp_f32 v{T2}, v{T2}\nv_mov_b32 v{T3}, 0')
        for j in range(8): P(f'v_mul_f32 v{SC + j}, v{T2}, v{SC + j}')
        for i in range(18): P(f'v_mov_b32 v{O + i}, 0')
        for j in range(8):
            P(cvt(Q + 2 * (j % 2), SC + j, T3)); P(cvt(Q + 1 + 2 * (j % 2), T3, SC + j))
            for i in range(9):
                P(f'v_dot2c_f32_bf16 v{O + 2 * i}, v{KV + 9 * j + i}, v{Q + 2 * (j % 2)}')
                P(f'v_dot2c_f32_bf16 v{O + 2 * i + 1}, v{KV + 9 * j + i}, v{Q + 1 + 2 * (j % 2)}')
        for i in range(9): P(cvt(132 + i, O + 2 * i, O + 2 * i + 1))
        P(f'''buffer_store_dwordx4 v[132:135], v{OAD}, {SWS}, {sO} offen sc1
        buffer_store_dwordx4 v[136:139], v{OAD}, {SWS}, {sO} offen offset:16 sc1
        buffer_store_dword v140, v{OAD}, {SWS}, {sO} offen offset:32 sc1''')
        if rnd == 0:
            P(f'v_add_u32 v{RB_}, {64 * PA}, v{RB_}\ns_add_u32 {sN}, {sN}, 64\ns_add_u32 {sO}, {sO}, {64 * 1152}')
    P(f's_mov_b32 {sT2}, {DB_ADONE}')
    signal_add(P, 'A_sig', sT2)

def phase_out(P):
    P.c('==== output projection + gated mix: 16 tokens x 32 columns per step, K split over the waves')
    def oreg(i):
        return ('a', 4 * i) if i < 64 else ('v', 216 + 4 * (i - 64))
    sSET, sHALF, sSL = sU0, sU1, sU2
    DAT, ACB, ACA, OB, OAA, GA, OUT, RO = 0, 148, 156, 164, 165, 166, 167, 168
    P(f'''s_sub_u32 {sT0}, {sJ}, 96
    s_mul_i32 {sT1}, {sT0}, 3641
    s_lshr_b32 {sT1}, {sT1}, 16
    s_mul_i32 {sT2}, {sT1}, 18
    s_sub_u32 {sSL}, {sT0}, {sT2}
    s_and_b32 {sHALF}, {sT1}, 1
    s_lshr_b32 {sSET}, {sT1}, 1
    v_lshrrev_b32 v{T0}, 2, v{L}
    v_mul_u32_u24 v{T0}, 1152, v{T0}
    v_and_b32 v{T1}, 3, v{L}
    v_lshl_add_u32 v{WD0}, v{T1}, 4, v{T0}
    s_lshl_b32 {sT0}, {sSL}, 6
    s_mul_i32 {sT1}, {sW}, {1024 * 1152}
    s_add_u32 {sB0}, {sT0}, {sT1}
    s_mul_i32 {sT1}, {sW}, {160 * 1152}
    s_add_u32 {sB1}, {sT0}, {sT1}
    s_mul_i32 {sM}, {sW}, 40960
    v_bfe_u32 v{T0}, v{L}, 2, 2
    v_lshlrev_b32 v{T1}, 4, v{T1}
    v_add_u32 v{T1}, {sM}, v{T1}
    v_lshl_add_u32 v{T1}, v{T0}, 6, v{T1}
    v_lshrrev_b32 v{T2}, 4, v{L}
    v_lshl_add_u32 v{RN}, v{T2}, 9, v{T1}
    v_lshrrev_b32 v{T3}, 5, v{L}
    v_lshl_add_u32 v{RP}, v{T3}, 10, v{T1}
    v_and_b32 v{T3}, 1, v{T2}
    v_lshl_add_u32 v{RP}, v{T3}, 8, v{RP}''')
    NS = 20
    def dma(k):
        for y in range(2):
            srd, base, row = (SWO, sB0, 32 * k) if k < 32 else (SWOA, sB1, 32 * (k - 32))
            P(f's_add_u32 m0, {sM}, {(k % NS) * 2048 + 1024 * y}\ns_add_u32 {sT0}, {base}, {(row + 16 * y) * 1152}')
            P(f'buffer_load_dwordx4 v{WD0}, {srd}, {sT0} offen lds')
    for k in range(NS - 1): dma(k)
    for k in range(37):
        P(f's_waitcnt vmcnt({2 * (min(37, k + NS - 1) - k - 1)}) lgkmcnt(0)')
        if k + NS - 1 < 37: dma(k + NS - 1)
        for t in range(2):
            kind, r = oreg(2 * k + t)
            for u in range(2):
                P(f'ds_read_b64_tr_b16 {vr(r + 2 * u, 2, kind)}, v{RP if k < 32 else RN} offset:{(k % NS) * 2048 + 8 * t + (512 if k < 32 else 256) * u}')
    P(f'''; operand addresses: O_B unit (g>>1)*1024 + ((g&1)*32 + 16*half + n)*16 ; O_A row (16*half + n)*1152 + 16g
    v_and_b32 v{T0}, 15, v{L}
    s_lshl_b32 {sT0}, {sHALF}, 4
    v_add_u32 v{T0}, {sT0}, v{T0}
    v_lshl_add_u32 v{T1}, v{T3}, 5, v{T0}
    v_lshlrev_b32 v{OB}, 4, v{T1}
    v_lshrrev_b32 v{T1}, 5, v{L}
    v_lshl_add_u32 v{OB}, v{T1}, 10, v{OB}
    v_mul_u32_u24 v{OUT}, 1152, v{T0}
    v_lshl_add_u32 v{OUT}, v{T2}, 4, v{OUT}
    v_lshlrev_b32 v{GA}, 2, v{T0}
    v_lshlrev_b32 v{WD1}, 2, v{L}
    s_lshl_b32 {sT0}, {sW}, 11
    v_add_u32 v{RO}, {sT0}, v{A2}
    s_mov_b32 {sSEG}, {sSET}
    s_lshl_b32 {sN}, {sSET}, 7
    s_add_u32 {sN}, {sN}, {WS_FO}
    s_mov_b32 {sT2}, {DB_P1}
    s_mov_b32 {sT3}, {DB_ADONE}
    s_waitcnt lgkmcnt(0)''')
    P.stamp(5)
    poll(P, 'O_p1', SDBG, WD1, sT2, f'v_cmp_gt_u32 vcc, 7, v{T0}', -1, 16)
    poll(P, 'O_a', SDBG, WD1, sT3, f'v_cmp_gt_u32 vcc, 0x80, v{T0}', 1, 16)
    P.stamp(6)
    P.label('O_loop')
    P(f'''s_mul_i32 {sO}, {sSEG}, {XBUF}
    s_mul_i32 {sT0}, {sW}, 320
    s_add_u32 {sT1}, {sO}, {sT0}
    s_add_u32 {sT1}, {sT1}, {WS_OA}
    s_cmp_eq_u32 {sW}, 3
    s_cselect_b32 {sT2}, {WS_SIZE}, {sT1}''')
    for k in range(5): P(f'buffer_load_dwordx4 {vr(DAT + 128 + 4 * k, 4)}, v{OUT}, {SWS}, {sT1 if k < 3 else sT2} offen offset:{64 * k} sc1')
    P(f's_lshl_b32 {sT1}, {sSEG}, 7\ns_add_u32 {sT1}, {sT1}, {WS_G}\nbuffer_load_dword v{OAA}, v{GA}, {SWS}, {sT1} offen sc1')
    def mm(acc, k, first):
        for t in range(2):
            kind, r = oreg(2 * k + t)
            P(f'{MF} {vr(acc + 4 * t, 4)}, {vr(r, 4, kind)}, {vr(DAT + 4 * k, 4)}, {"0" if first else vr(acc + 4 * t, 4)}')
    for k in range(32, 37): mm(ACA, k, k == 32)
    for r in range(8): P(f'v_mul_f32 v{ACA + r}, v{OAA}, v{ACA + r}')
    P(f'''v_sub_f32 v{OAA}, 1.0, v{OAA}
    v_cvt_pk_bf16_f32 v{OAA}, v{OAA}, v{OAA}
    v_lshlrev_b32 v{OAA}, 16, v{OAA}
    s_add_u32 {sU3}, {sSEG}, 3
    s_lshl_b32 {sT1}, {sSEG}, 18
    s_lshl_b32 {sT0}, {sW}, 16
    s_add_u32 {sT1}, {sT1}, {sT0}
    s_add_u32 {sB0}, {sT1}, {WS_O}''')
    poll(P, 'O_b', SWS, WD1, sN, f'v_cmp_gt_u32 vcc, {sU3}, v{T0}', -1, 1)
    for k in range(32):
        P(f'buffer_load_dwordx4 {vr(DAT + 4 * k, 4)}, v{OB}, {SWS}, {sB0} offen offset:{2048 * (k % 2)} sc1')
        if k % 2: P(f's_add_u32 {sB0}, {sB0}, 4096')
    for k in range(32): mm(ACB, k, k == 0)
    for r in range(8): P(f'v_fmac_f32 v{ACA + r}, v{OAA}, v{ACB + r}')
    P(f'''ds_write_b128 v{RO}, {vr(ACA, 4)}
    ds_write_b128 v{RO}, {vr(ACA + 4, 4)} offset:1024
    s_lshl_b32 {sT0}, {sSL}, 6
    s_add_u32 {sO}, {sO}, {sT0}
    s_mov_b32 {sSEG}, {sU3}
    s_waitcnt lgkmcnt(0)
    s_barrier
    s_cmp_eq_u32 {sW}, 0
    s_cbranch_scc0 O_next''')
    for i in range(6): P(f'ds_read_b128 {vr(DAT + 4 * i, 4)}, v{A2} offset:{2048 + 1024 * i}')
    for i in range(6):
        for r in range(4): P(f'v_add_f32 v{ACA + 4 * (i % 2) + r}, v{ACA + 4 * (i % 2) + r}, v{DAT + 4 * i + r}')
    for r in range(4): P(cvt(ACB + r, ACA + 2 * r, ACA + 2 * r + 1))
    P(f'buffer_store_dwordx4 {vr(ACB, 4)}, v{OUT}, {SOUT}, {sO} offen\ns_nop 1')
    P.label('O_next')
    P(f's_cmp_lt_u32 {sSEG}, {NSEG}\ns_cbranch_scc1 O_loop')

def worker(P):
    common(P)
    phase_kv(P)
    P.stamp(2)
    P(f's_cmp_lt_u32 {sJ}, 96\ns_cbranch_scc0 W_a')
    phase_attn(P)
    P.label('W_a')
    phase_a(P)
    P.stamp(4)
    P(f's_cmp_lt_u32 {sJ}, 204\ns_cbranch_scc0 L_exit')
    phase_out(P)
```

```python
from asmgen import *
from layout import *

QA, QB, QC, QD, QE = 0, 4, 8, 12, 16
ACQ, ACK, ACV, KX, VX, QOP, ONES, VM = 20, 28, 36, 44, 52, 60, 68, 72
IDX, A1, A2, R1, R2, R3 = 74, 75, 76, 77, 78, 79
A3, A5, A5X, TT = ONES, ONES + 1, ONES + 2, ONES + 3
sW, sH, sT0, sT1, sT2, sT3 = 's52', 's53', 's54', 's55', 's56', 's57'
sKV, sKV2, sPR, sPRX, sMW, sMWX, sMR, sM8, sSTEP, sSPIN, sEXP, sCB, sPF, sFLG, sTAG = ['s%d' % i for i in range(58, 73)]
sPW = ['s73', 's74', 's75', 's76', 's77']
sMODE = 's3'
L_ROW, PITCH = 0, 576
L_MEM = 8 * PITCH
L_O = L_MEM + 4096
L_TAB = L_MEM + 9216
L_SEL = L_TAB + 1024
L_SCR = L_SEL + 1024
L_W = 16384
SM = 'v_smfmac_f32_16x16x64_bf16'
MF = 'v_mfma_f32_16x16x32_bf16'
MF16 = 'v_mfma_f32_16x16x16_bf16'

blocks_lds = [('q', 0), ('k', 0), ('k', 2), ('k', 8), ('k', 4), ('d', 1, 1), ('d', 2, 1), ('d', 3, 1), ('x',)]
blocks_reg = [b for b in [(m, t) for m in 'qkv' for t in range(9)] + [('d', d, b) for d in range(4) for b in (0, 1)] if b not in blocks_lds]
def block_ops(b):
    if b[0] in 'qkv': return [(b[0], b[1], 0), (b[0], b[1], 1)]
    if b[0] == 'x': return [('x', c) for c in range(4)]
    return [('d', b[1], 2 * b[2]), ('d', b[1], 2 * b[2] + 1)]
HOME = {}
_free = [('v', 80 + 8 * i) for i in range(22)] + [('a', 8 * i) for i in range(32)]
for b in blocks_reg:
    for o in block_ops(b): HOME[o] = _free.pop(0)
assert not _free
for j, b in enumerate(blocks_lds):
    for x, o in enumerate(block_ops(b)): HOME[o] = ('lds', j, x)

def lds_fetch(o, dst, w):
    _, j, x = HOME[o]
    off = L_W + j * 16384 + (w * 4096 if o[0] != 'x' else (w - 2) * 8192) + x * 2048
    if off < 0x10000: base = A2
    elif off < 0x18000: base = A1; off -= 0x10000
    else: base = A1; off -= 0x18000
    return [f'ds_read_b128 {vr(dst, 4)}, v{base} offset:{off}', f'ds_read_b128 {vr(dst + 4, 4)}, v{base} offset:{off + 1024}']

def prologue(P):
    P.c('---- chain prologue: per-lane constants')
    L, N, G, T0, T1, T2, T3 = 0, 1, 2, 3, 4, 5, 6
    DQ, DX, DD, RQ0, RQ1, RX0, RD, RA, RB = 8, 9, 10, 11, 12, 13, 14, 15, 16
    P(f'''v_and_b32 v{L}, 63, v0
    v_and_b32 v{N}, 15, v{L}
    v_lshrrev_b32 v{G}, 4, v{L}
    v_lshlrev_b32 v{A2}, 4, v{L}
    v_add_u32 v{A1}, 0x10000, v{A2}
    ; i(n) = 2*(n>>2) + (n&1), half = (n>>1)&1
    v_lshrrev_b32 v{T0}, 2, v{N}
    v_and_b32 v{T1}, 1, v{N}
    v_lshl_add_u32 v{T0}, v{T0}, 1, v{T1}
    v_bfe_u32 v{T1}, v{N}, 1, 1
    v_mul_u32_u24 v{IDX}, 0xaaaa, v{T1}
    v_add_u32 v{IDX}, 0x4444, v{IDX}
    v_mul_u32_u24 v{T2}, {PITCH}, v{T0}
    v_add_u32 v{T2}, {L_ROW}, v{T2}
    v_lshl_add_u32 v{R2}, v{G}, 4, v{T2}
    v_lshl_add_u32 v{R1}, v{G}, 5, v{T2}
    v_lshl_add_u32 v{R1}, v{T1}, 4, v{R1}
    v_mul_u32_u24 v{RA}, 1152, v{T0}
    v_lshl_add_u32 v{RA}, v{G}, 5, v{RA}
    v_lshl_add_u32 v{RA}, v{T1}, 4, v{RA}
    s_lshl_b32 {sT0}, {sW}, 8
    buffer_load_dwordx4 v[20:23], v{RA}, {SMEM0}, {sT0} offen
    buffer_load_dwordx4 v[24:27], v{RA}, {SMEM0}, {sT0} offen offset:128
    buffer_load_dwordx4 v[28:31], v{RA}, {SMEM0}, 0 offen offset:1024
    ; R3
    v_mul_u32_u24 v{R3}, {2 * PITCH}, v{G}
    v_lshl_add_u32 v{R3}, v{N}, 2, v{R3}
    s_lshl_b32 {sT0}, {sW}, 6
    s_add_u32 {sT0}, {sT0}, {L_ROW}
    v_add_u32 v{R3}, {sT0}, v{R3}
    v_lshrrev_b32 v{T2}, 3, v{L}
    v_mul_u32_u24 v{A3}, {PART_DEST}, v{T2}
    v_and_b32 v{T2}, 7, v{L}
    v_lshl_add_u32 v{A3}, v{T2}, 3, v{A3}
    v_and_b32 v{T2}, 1, v{G}
    v_lshlrev_b32 v{T2}, 4, v{T2}
    v_lshl_add_u32 v{T2}, v{N}, 2, v{T2}
    v_mov_b32 v{T3}, 0x40000000
    v_cmp_lt_u32 vcc, 3, v{N}
    v_cndmask_b32 v{T2}, v{T2}, v{T3}, vcc
    v_lshrrev_b32 v{T3}, 1, v{G}
    v_lshl_add_u32 v{A5}, v{T3}, 10, v{T2}
    v_lshl_add_u32 v{A5X}, v{T3}, 8, v{T2}
    v_mov_b32 v{TT}, -1
    ds_write_b128 v{A2}, {vr(ONES, 4)} offset:{L_TAB}
    v_and_b32 v{T2}, 3, v{N}
    v_lshrrev_b32 v{T3}, 2, v{N}
    v_lshl_add_u32 v{T2}, v{T2}, 2, v{T3}
    v_and_b32 v{T3}, 1, v{T2}
    v_lshlrev_b32 v{T3}, 4, v{T3}
    v_mov_b32 v7, 0x3f80
    v_lshlrev_b32 v{T3}, v{T3}, v7
    v_lshrrev_b32 v{T2}, 1, v{T2}''')
    for q in range(4):
        P(f'v_cmp_eq_u32 vcc, {q}, v{T2}\nv_cndmask_b32 v{32 + q}, 0, v{T3}, vcc')
    P(f'ds_write_b128 v{A2}, v[32:35] offset:{L_SEL}')
    P.c('DMA source offsets')
    P(f'''v_and_b32 v{T0}, 1, v{G}
    s_lshl_b32 {sT0}, {sW}, 1
    v_add_u32 v{T0}, {sT0}, v{T0}
    v_lshlrev_b32 v{T0}, 1, v{T0}
    v_xor_b32 v{T0}, v{T0}, v{N}
    v_lshlrev_b32 v{T0}, 4, v{T0}
    v_lshl_add_u32 v{DQ}, v{G}, 13, v{T0}
    s_and_b32 {sT0}, {sW}, 1
    s_lshr_b32 {sT1}, {sW}, 1
    v_lshrrev_b32 v{T0}, 3, v{L}
    v_and_b32 v{T1}, 1, v{T0}
    v_lshlrev_b32 v{T1}, 4, v{T1}
    v_and_b32 v{T2}, 6, v{T0}
    v_add_u32 v{T1}, v{T1}, v{T2}
    s_lshl_b32 {sT2}, {sT1}, 3
    s_add_u32 {sT2}, {sT2}, {sT0}
    v_add_u32 v{T1}, {sT2}, v{T1}
    v_mul_u32_u24 v{T1}, 1152, v{T1}
    v_and_b32 v{T2}, 2, v{T0}
    v_lshlrev_b32 v{T2}, 1, v{T2}
    v_and_b32 v{T3}, 7, v{L}
    v_xor_b32 v{T3}, v{T3}, v{T2}
    v_lshl_add_u32 v{DX}, v{T3}, 4, v{T1}
    v_and_b32 v{T1}, 1, v{G}
    v_lshlrev_b32 v{T1}, 4, v{T1}
    v_and_b32 v{T2}, 2, v{G}
    v_add_u32 v{T1}, v{T1}, v{T2}
    s_lshl_b32 {sT2}, {sT1}, 2
    s_add_u32 {sT2}, {sT2}, {sT0}
    v_add_u32 v{T1}, {sT2}, v{T1}
    v_mul_u32_u24 v{T1}, 1152, v{T1}
    v_lshlrev_b32 v{T3}, 1, v{G}
    v_xor_b32 v{T3}, v{T3}, v{N}
    v_lshl_add_u32 v{DD}, v{T3}, 4, v{T1}''')
    P.c('transposing-read addresses; r = n>>2, c = n&3')
    B0, B1, G0, G1, C = 17, 18, 19, 72, 73
    P(f'''v_bfe_u32 v{B0}, v{N}, 2, 1
    v_bfe_u32 v{B1}, v{N}, 3, 1
    v_and_b32 v{G0}, 1, v{G}
    v_lshrrev_b32 v{G1}, 1, v{G}
    v_and_b32 v{C}, 3, v{N}
    v_lshl_add_u32 v{T0}, v{G0}, 1, v{B0}
    v_lshl_add_u32 v{T3}, v{B1}, 2, v{T0}
    ; qkv: row = 16*g1 + 4*g0 + b0 + 8*b1 ; byte = (64w + 8c) ^ (32*rho3)
    v_lshl_add_u32 v{T1}, v{G1}, 4, v{B0}
    v_lshl_add_u32 v{T1}, v{G0}, 2, v{T1}
    v_lshl_add_u32 v{T1}, v{B1}, 3, v{T1}
    v_lshlrev_b32 v{T1}, 8, v{T1}
    s_lshl_b32 {sT0}, {sW}, 6
    v_lshl_add_u32 v{T2}, v{C}, 3, {sT0}
    v_lshlrev_b32 v7, 5, v{T3}
    v_xor_b32 v{T2}, v{T2}, v7
    v_add_u32 v{RQ0}, v{T1}, v{T2}
    v_xor_b32 v{RQ1}, 32, v{RQ0}
    ; x: (rho2 + 4*g1)*128 + ((2*(w&1) + b1) ^ (2*g0))*32 + 8c
    v_lshl_add_u32 v{T1}, v{G1}, 2, v{T0}
    v_lshlrev_b32 v{T1}, 7, v{T1}
    v_lshl_add_u32 v{T1}, v{C}, 3, v{T1}
    s_and_b32 {sT0}, {sW}, 1
    v_xor_b32 v7, {sT0}, v{G0}
    v_lshl_add_u32 v7, v7, 1, v{B1}
    v_lshl_add_u32 v{RX0}, v7, 5, v{T1}
    v_lshlrev_b32 v{T1}, 11, v{G1}
    v_lshl_add_u32 v{T1}, v{C}, 3, v{T1}
    v_lshl_add_u32 v{T2}, v{T0}, 8, v{T1}
    v_lshl_add_u32 v7, v{B1}, 2, {sW}
    v_xor_b32 v7, v7, v{T0}
    v_lshl_add_u32 v{RD}, v7, 5, v{T2}''')
    P.c('scalar bases')
    P(f'''s_lshl_b32 {sT0}, {sH}, 14
    s_lshl_b32 {sT1}, {sW}, 11
    s_add_u32 {sKV}, {sT0}, {sT1}
    s_add_u32 {sKV2}, {sKV}, 8192
    s_lshl_b32 {sT1}, {sW}, 12
    s_add_u32 {sPF}, {sT0}, {sT1}
    s_add_u32 {sPF}, {sPF}, {32 * 16384}
    s_lshl_b32 {sT0}, {sH}, 12
    s_lshl_b32 {sT1}, {sW}, 10
    s_add_u32 {sT0}, {sT0}, {sT1}
    s_add_u32 {sEXP}, {sT0}, {WS_KVM - 32 * 4096}
    s_lshl_b32 {sT0}, {sH}, 7
    s_add_u32 {sFLG}, {sT0}, {WS_FLAG}
    s_lshl_b32 {sT0}, {sH}, 6
    s_mul_i32 {sT1}, {sW}, {8 * PART_DEST}
    s_add_u32 {sT1}, {sT0}, {sT1}
    s_add_u32 {sPW[0]}, {sT1}, {WS_PART}
    s_add_u32 {sPW[1]}, {sT1}, {WS_PART + PART_CHUNK}
    s_add_u32 {sPW[2]}, {sT1}, {WS_PART + 2 * PART_CHUNK}
    s_add_u32 {sPW[3]}, {sT1}, {WS_PART + 3 * PART_CHUNK}
    s_and_b32 {sT2}, {sW}, 1
    s_mul_i32 {sT1}, {sT2}, {8 * PART_DEST}
    s_add_u32 {sT1}, {sT0}, {sT1}
    s_add_u32 {sPW[4]}, {sT1}, {WS_PART + 4 * PART_CHUNK}
    s_mul_i32 {sT0}, {sW}, {PART_CHUNK}
    s_mul_i32 {sT1}, {sH}, {PART_DEST}
    s_add_u32 {sT0}, {sT0}, {sT1}
    s_add_u32 {sPR}, {sT0}, {WS_PART}
    s_and_b32 {sT2}, {sH}, 15
    s_mul_i32 {sT1}, {sT2}, {PART_DEST}
    s_add_u32 {sPRX}, {sT1}, {WS_PART + 4 * PART_CHUNK}
    s_lshl_b32 {sT0}, {sW}, 11
    s_add_u32 {sMR}, {sT0}, {WS_MEM}
    s_mov_b32 {sM8}, {WS_MEM + 8192}
    s_lshl_b32 {sT1}, {sH}, 5
    s_add_u32 {sT0}, {sT0}, {sT1}
    s_add_u32 {sMW}, {sT0}, {WS_MEM + MEM_SLOT}
    s_lshr_b32 {sT0}, {sT2}, 3
    s_lshl_b32 {sT0}, {sT0}, 9
    s_and_b32 {sT1}, {sT2}, 7
    s_lshl_b32 {sT1}, {sT1}, 5
    s_add_u32 {sT0}, {sT0}, {sT1}
    s_add_u32 {sMWX}, {sT0}, {WS_MEM + MEM_SLOT + 8192}
    s_mov_b32 {sSTEP}, 0
    s_mov_b32 {sSPIN}, 0
    s_mov_b32 {sTAG}, 0
    s_mov_b32 {sCB}, {f32bits(CB)}''')
    blocks = blocks_reg + blocks_lds
    sHQ, sHO, sM = 's78', 's79', sT3
    P(f'''s_lshl_b32 {sHQ}, {sH}, 8
    s_lshl_b32 {sT0}, {sW}, 15
    s_add_u32 {sHQ}, {sHQ}, {sT0}
    s_mul_i32 {sHO}, {sH}, 147456
    s_lshl_b32 {sM}, {sW}, 10
    s_add_u32 {sM}, {sM}, {L_W}''')
    def dma(j):
        b = blocks[j]; slot = j % 9
        for y in range(4):
            if b[0] in 'qkv':
                srd, va, base, off = {'q': SWQ, 'k': SWK, 'v': SWV}[b[0]], DQ, sHQ, (64 * b[1] + 16 * y) * 8192
            elif b[0] == 'x':
                srd, va, base, off = SWO, DX, sHO, 32 * y * 1152 + 1024
            else:
                srd, va, base, off = SWO, DD, sHO, (64 * b[2] + 8 * (y & 1) + 32 * (y >> 1)) * 1152 + 256 * b[1]
            P(f'''s_add_u32 m0, {sM}, {slot * 16384 + y * 4096}
            s_add_u32 {sT0}, {base}, {off}
            buffer_load_dwordx4 v{va}, {srd}, {sT0} offen lds {P.wfl}''')
    marks = {}
    cnt = [0]
    def note(n): cnt[0] += n
    for j in range(8):
        dma(j); note(4); marks[j] = cnt[0]
    TMP = [36, 52]
    pend = None
    for j, b in enumerate(blocks):
        P(f's_waitcnt vmcnt({cnt[0] - marks[j]}) lgkmcnt(0)')
        P('s_barrier')
        if pend: pend(); pend = None
        if j + 8 < 36:
            dma(j + 8); note(4); marks[j + 8] = cnt[0]
        if j == 27:
            P.c('plain stores are enough only if all 32 members drew their ticket on die 0; otherwise write through')
            P.label('C_mode', keep=True)
            P(f's_load_dwordx8 s[80:87], s[12:13], {DB_TICKET} glc\ns_add_u32 {sSPIN}, {sSPIN}, 1\ns_waitcnt lgkmcnt(0)')
            P(f's_mov_b32 {sMODE}, 0\ns_cmp_ge_u32 s80, 32\ns_cbranch_scc1 C_modeok\ns_mov_b32 {sMODE}, 1')
            for r in range(81, 88): P(f's_add_u32 s80, s80, s{r}')
            P(f's_cmp_ge_u32 {sSPIN}, {SPIN_MAX}\ns_cbranch_scc1 C_modeok\ns_cmp_lt_u32 s80, 256\ns_cbranch_scc1 C_mode')
            P.label('C_modeok', keep=True)
            P.c('mem0 into ring slot 0; arm ring slot 1 and the partial-sum buffers')
            P(f'v_mov_b32 v32, -1\nv_mov_b32 v33, -1\nv_mov_b32 v34, 0\ns_cmp_eq_u32 {sMODE}, 0\ns_cbranch_scc0 C_arm1')
            snap = P.snapshot()
            for m, stf in enumerate(('', 'sc1')):
                if m: P.label('C_arm1', keep=True); P.restore(snap)
                P(f"""buffer_store_dwordx4 v[20:23], v{A2}, {SWS}, {sMR} offen {stf}
                buffer_store_dwordx4 v[24:27], v{A2}, {SWS}, {sMR} offen offset:1024 {stf}
                buffer_store_dwordx4 v[28:31], v{A2}, {SWS}, {sM8} offen {stf}""")
                for s in sPW: P(f'buffer_store_dwordx2 v[32:33], v{A3}, {SWS}, {s} offen {stf}')
                P(f'buffer_store_dword v32, v{A5}, {SWS}, {sMW} offen {stf}\nbuffer_store_dword v32, v{A5X}, {SWS}, {sMWX} offen {stf}')
                if not m: P('s_branch C_arm2')
            P.label('C_arm2', keep=True)
            P(f's_mov_b64 exec, 1\nbuffer_store_dword v34, v34, {SWS}, {sFLG} offen sc1\ns_mov_b64 exec, -1')
        sb = L_W + (j % 9) * 16384
        if b[0] in 'qkv':
            P(f'v_add_u32 v{RA}, {sb}, v{RQ0}\nv_add_u32 v{RB}, {sb}, v{RQ1}')
        else:
            P(f'v_add_u32 v{RA}, {sb}, v{RX0 if b[0] == "x" else RD}')
        if b[0] == 'x': P('s_waitcnt lgkmcnt(0)')
        acts = []
        for x, o in enumerate(block_ops(b)):
            hm = HOME[o]
            k, r = hm if hm[0] in 'va' else ('v', (TMP[j % 2] if b[0] != 'x' else 36) + 8 * x)
            for q in (0, 2, 4, 6):
                if b[0] in 'qkv': ad, off = (RA, RB)[x], (32 * (q // 4) + 2 * ((q % 4) // 2)) * 256
                elif b[0] == 'x': ad, off = RA, ((q % 4) // 2 + 2 * (q // 4) + 4 * x) * 1024
                else: ad, off = RA, ((q % 4) // 2 + 4 * (q // 4) + 8 * x) * 1024
                P(f'ds_read_b64_tr_b16 {vr(r + q, 2, k)}, v{ad} offset:{off}')
            if hm[0] == 'lds': acts.append((x, r))
        if acts:
            def mk(acts=acts, sb=sb, b=b):
                if b[0] == 'x': P(f's_and_b32 {sT0}, {sW}, 1\ns_lshl_b32 {sT0}, {sT0}, 13')
                else: P(f's_lshl_b32 {sT0}, {sW}, 12')
                P(f's_add_u32 {sT0}, {sT0}, {sb}\nv_add_u32 v7, {sT0}, v{A2}')
                for x, r in acts:
                    for hf in range(2): P(f'ds_write_b128 v7, {vr(r + 4 * hf, 4)} offset:{x * 2048 + hf * 1024}')
            pend = mk
    P('s_waitcnt vmcnt(0) lgkmcnt(0)\ns_barrier')
    pend()
    P('s_waitcnt lgkmcnt(0)')

def is_valu(s): return s.startswith('v_')

def step_loop(P, w, tag, opt=(), T=None):
    T = T or {}
    stf = P.stf
    heavy = w >= 2
    DIAG = 's_add_u32 s84, s84, 1' if 'diag' in opt else ''
    Lb = lambda s: f'C{tag}{w}_{s}'
    DPP = lambda p: f'{p} row_mask:0xf bank_mask:0xf'
    def mark(name):
        if 'marks' in opt and name in T.get('marks', ()):
            k = T['marks'].index(name)
            P.raw(f'  s_memtime s[{16 + 2 * k}:{17 + 2 * k}]   ; {name}')
    def run(mf, side, pre):
        for i, m in enumerate(mf):
            P(m)
            mark(f'{pre}{i}')
            waited = False
            for s in side.get(i, []):
                if callable(s): s(); continue
                if is_valu(s) and not waited and i + 1 < len(mf):
                    P.prewait(mf[i + 1]); waited = True
                P(s)
    def addside(side, i, *ins):
        cur = side.get(i, []) + list(ins)
        side[i] = [s for s in cur if callable(s) or not is_valu(s)] + [s for s in cur if not callable(s) and is_valu(s)]
    def dly(n):
        while n > 0:
            P(f's_nop {min(n, 16) - 1}'); n -= 16
    bufs = {('q', 0, 0): QOP, ('q', 0, 1): KX}
    for t in (0, 2, 8, 4): bufs[('k', t, 0)] = ACV; bufs[('k', t, 1)] = QOP
    bufs.update({('d', 1, 2): KX, ('d', 1, 3): QOP, ('d', 2, 2): VX, ('d', 2, 3): ACV, ('d', 3, 2): KX, ('d', 3, 3): QOP,
                 ('x', 0): KX, ('x', 1): QOP, ('x', 2): VX, ('x', 3): ACV})
    def bsrc(o, buf=None):
        hm = HOME[o]
        return vr(hm[1], 8, hm[0]) if hm[0] in 'va' else vr(buf or bufs[o], 8)
    F = lambda o: lds_fetch(o, bufs[o], w)
    AQ = [QA, QB, QC, QD, QB, QE, QD, QC, QA]
    rdA = lambda t: f'ds_read_b128 {vr(AQ[t], 4)}, v{A2} offset:{L_MEM + 1024 * t}'
    ACC = {'q': ACQ, 'k': ACK, 'v': ACV}
    def sm(s, buf=None):
        m, t, x = s[0], int(s[1]), 'ab'.index(s[2])
        return f'{SM} {vr(ACC[m] + 4 * x, 4)}, {vr(AQ[t], 4)}, {bsrc((m, t, x), buf)}, v{IDX}'
    add = lambda d, a: f'v_add_f32 v{d}, v{d}, v{a}'
    cvt = lambda d, a, b: f'v_cvt_pk_bf16_f32 v{d}, v{a}, v{b}'
    z2 = lambda d: f'v_mov_b64 {vr(d, 2)}, 0'
    flip = f'v_xor_b32 v{A1}, 0x8000, v{A1}'
    BAR = [P.wait_writes, 's_barrier']
    quad = lambda r: set(('v', r + j) for j in range(4))
    retry = []
    CK, CK2 = VM, VM + 1
    def maxtree(regs):
        out = [f'v_max3_u32 v{CK}, v{regs[0]}, v{regs[1]}, v{regs[2]}']
        for j in range(3, len(regs) - 1, 2): out.append(f'v_max3_u32 v{CK}, v{CK}, v{regs[j]}, v{regs[j + 1]}')
        return out + [f'v_max_u32 v{CK}, v{CK}, v{regs[-1]}']
    tight = w in T.get('tight', (0, 1))
    DMA = ('d', 0)
    def dma():
        for q in range(2):
            P(f'buffer_load_dwordx4 v{A2}, {SWS}, {sMR} offen offset:{1024 * q} sc1 lds')
            P.vm[-1] = {DMA}
    def dma_wait():
        k = max(j for j, x in enumerate(P.vm) if DMA in x)
        P(f's_waitcnt vmcnt({len(P.vm) - 1 - k})')
    def hop2_entry(arm, fill):
        if not tight:
            P(f's_mov_b32 m0, {L_MEM + 2048 * w}')
            for x in arm: P(x)
            P(f's_waitcnt vmcnt({2 * len(arm)})')
            for x in fill: P(x, nowait=True)
            return
        HD = [(VX, sMR, 0, 2 * w), (VX + 4, sMR, 1024, 2 * w + 1)] + ([(QD, sM8, 0, 8)] if w == 0 else [])
        nl = len(HD)
        ld = [f'buffer_load_dwordx4 {vr(r, 4)}, v{A2}, {SWS}, {sb} offen offset:{o} sc1' for r, sb, o, t in HD]
        wr = [f'ds_write_b128 v{A2}, {vr(r, 4)} offset:{L_MEM + 1024 * t}' for r, sb, o, t in HD]
        ck = maxtree([h[0] + j for h in HD for j in range(4)]) + [f'v_cmp_eq_u32 vcc, -1, v{CK}']
        n2, gap = T.get('n2', (3, 3, 3, 3))[w], T.get('gap2', 18)
        for j in range(n2):
            for x in ld: P(x, nowait=True)
            if j == 0: mark('h2i')
            if j == n2 - 1:
                P(f's_waitcnt vmcnt({len(arm) + nl * n2})')
                for x in fill: P(x, nowait=True)
            else: dly(gap)
        P(f's_waitcnt vmcnt({nl * (n2 - 1)})')
        wf = T.get('wfirst', 1)
        for x in ck[:-1] + (wr if wf else []) + ck[-1:]: P(x, nowait=True)
        P(f's_cbranch_vccnz {Lb("h2r")}')
        if not wf:
            P.label(Lb('h2ok'), keep=True)
            for x in wr: P(x, nowait=True)
        P.label(Lb('h2w'), keep=True)
        mark('h2w')
        for x in arm: P(x)
        def r2():
            nr = T.get('nr', 3)
            P.label(Lb('h2r'))
            for j in range(nr - n2):
                P('s_mov_b64 exec, vcc')
                for x in ld: P(x, nowait=True)
                P('s_mov_b64 exec, -1')
                if n2 - 2 - j >= 0:
                    P(f's_waitcnt vmcnt({nl * (n2 - 1)})')
                    for x in ck: P(x, nowait=True)
                    P(f's_cbranch_vccz {Lb("h2ok")}')
                    P('s_mov_b64 exec, vcc')
                    for x in ld: P(x, nowait=True)
                    P('s_mov_b64 exec, -1')
                dly(gap)
            P.label(Lb('h2s'))
            for j in range(4):
                P('s_mov_b64 exec, vcc')
                for x in ld: P(x, nowait=True)
                P(f's_mov_b64 exec, -1\ns_add_u32 {sSPIN}, {sSPIN}, 1\ns_waitcnt vmcnt({nl * (max(nr, n2) - 1)})')
                for x in ck: P(x, nowait=True)
                P(f's_cbranch_vccz {Lb("h2ok")}')
            P(f's_cmp_lt_u32 {sSPIN}, {SPIN_MAX}\ns_cbranch_scc1 {Lb("h2s")}')
            if wf:
                P.label(Lb('h2ok'))
                for x in wr: P(x, nowait=True)
                P(f's_branch {Lb("h2w")}')
            else: P(f's_branch {Lb("h2ok")}')
        retry.append(r2)

    P.c(f'---- chain wave {w}')
    for r in range(0, 16, 2): P(z2(ACQ + r))
    P(f's_mov_b32 m0, {L_SCR}')
    P(f's_branch {Lb("h2")}')
    P.raw('.p2align 6')
    P.label(Lb('top'), lg=[set()], vm=[quad(QD), set(), set()] if w == 0 else [])
    P.t = 0; P.tm = -999
    P('s_waitcnt lgkmcnt(0)\ns_barrier')
    mark('top')
    P(rdA(0)); P(rdA(1))
    if not tight: dma()
    seq = 'q0a q0b q1a k0a q1b k1a k1b q2a k0b q2b q3a k2a q3b k3a k3b k2b q8a q8b k8a q4a q4b q5a k8b q5b q6a k4a q7a q6b q7b k4b k5a k6a k7a k5b k6b k7b'.split()
    seq = T.get('seq', 'q0a q0b q1a k0a q1b k1a k1b k0b q2a q2b k2a q3a q3b k2b k3a k3b q8a k8a q8b k8b q4a q4b q5a q5b k4a q6a q7a q6b q7b k4b k5a k6a k7a k5b k6b k7b').split()
    mf = [sm(s) for s in seq]
    side = {}
    at = {s: i for i, s in enumerate(seq)}
    ds_busy = set()
    def put_ds(i, x):
        while i in ds_busy: i += 1
        ds_busy.add(i); addside(side, i, x)
    bl = T.get('bl', 15)
    if not tight:
        addside(side, bl - 1, dma_wait); addside(side, 1, f's_mov_b32 m0, {L_SCR}')
    if 'nobl' not in opt: addside(side, bl, 's_barrier')
    ds_busy.add(bl)
    last = lambda t: max(i for s, i in at.items() if s[1] == str(t))
    todo = [(at[p], x) for p, o in (('q0a', ('k', 0, 1)), ('k0a', ('k', 2, 0)), ('k0b', ('k', 2, 1)), ('k2a', ('k', 8, 0)), ('k2b', ('k', 8, 1)),
                                    ('k8a', ('k', 4, 0)), ('k8b', ('k', 4, 1))) for x in F(o)]
    todo = [(bl + 1, rdA(4)), (bl + 2, rdA(5))] + todo[:-2] + [(2, rdA(2)), (5, rdA(3)), (last(0), rdA(8)), (bl + 1, rdA(6)), (bl + 1, rdA(7))] + todo[-2:]
    for i, x in todo:
        if 'nostream' in opt and x not in [rdA(t) for t in range(9)]: continue
        put_ds(i, x)
    kx = [f'buffer_load_dwordx4 {vr(KX + 4 * c, 4)}, v{A2}, {SWS}, {sKV} offen offset:{1024 * c} sc1' for c in range(2)]
    vx = [f'buffer_load_dwordx4 {vr(VX + 4 * c, 4)}, v{A2}, {SWS}, {sKV2} offen offset:{1024 * c} sc1' for c in range(2)]
    exp_ = f'buffer_store_dwordx4 {vr(QE, 4)}, v{A2}, {SWS}, {sEXP} offen sc1'
    touch = f'buffer_load_dword v{VM + 1}, {SWS}, {sPF} offen lds'
    for i, s in zip(T.get('vm_at', (2, 4, 6, 8, 9 + 2 * w, 12 if w != 2 else 14)), (kx[0], kx[1], vx[0], vx[1], exp_, touch)):
        if 'noexp' in opt and s is exp_: continue
        if 'notouch' in opt and s is touch: continue
        if 'nokv' in opt and (s in kx or s in vx): continue
        side[i] = [s] + side.get(i, [])
    if w == 1 and 'noexp' not in opt:
        addside(side, 33, 's_mov_b64 exec, 1', f'buffer_store_dword v{VM}, v{A2}, {SWS}, {sFLG} offen sc1', 's_mov_b64 exec, -1')
    addside(side, 18, f'v_mov_b32 v{ONES}, 0x3f803f80'); addside(side, 20, f'v_mov_b32 v{ONES + 1}, 0x3f803f80')
    addside(side, 22, f'v_mov_b64 {vr(ONES + 2, 2)}, {vr(ONES, 2)}')
    for j, i in enumerate((24, 25, 26, 27)): addside(side, i, z2(ACV + 2 * j))
    dw = lambda r, o: f'ds_write_b32 v{R3}, v{r} offset:{o}'
    qv = [add(ACQ, ACQ + 2), add(ACQ + 1, ACQ + 3), add(ACQ + 4, ACQ + 6), cvt(ACQ + 2, ACQ, ACQ + 4), dw(ACQ + 2, 0),
          add(ACQ + 5, ACQ + 7), cvt(ACQ + 3, ACQ + 1, ACQ + 5), dw(ACQ + 3, PITCH)]
    addside(side, 28, qv[0]); addside(side, 29, qv[1]); addside(side, 30, qv[2], qv[3]); addside(side, 31, *qv[4:7])
    addside(side, 32, qv[7], f'v_cmp_u_f32 vcc, v{ACQ}, v{ACQ + 1}')
    ka = [add(ACK, ACK + 2), add(ACK + 1, ACK + 3)]
    addside(side, 34, *ka)
    def nanbr():
        P(f's_cbranch_vccnz {Lb("rec")}')
        P.label(Lb('recok'), keep=True)
    addside(side, 35, nanbr)
    run(mf, side, 'q')
    def recover():
        P.label(Lb('rec'))
        P('s_nop 7\ns_waitcnt vmcnt(0) lgkmcnt(0)')
        for x in maxtree(list(range(QA, QE + 4))): P(x)
        P(f'v_cmp_eq_u32 vcc, -1, v{CK}\ns_cbranch_vccz {Lb("recok")}')
        P('s_barrier')
        if not tight:
            HD = [QOP, QOP + 4]
            P.label(Lb('recp'))
            for q, r in enumerate(HD): P(f'buffer_load_dwordx4 {vr(r, 4)}, v{A2}, {SWS}, {sMR} offen offset:{1024 * q} sc1')
            P(f's_add_u32 {sSPIN}, {sSPIN}, 1\ns_cmp_lt_u32 {sSPIN}, {SPIN_MAX}\ns_cselect_b32 {sT0}, -2, -1')
            for x in maxtree([r + j for r in HD for j in range(4)]): P(x)
            P(f'v_cmp_lt_u32 vcc, {sT0}, v{CK}\ns_cbranch_vccnz {Lb("recp")}')
            for q, r in enumerate(HD): P(f'ds_write_b128 v{A2}, {vr(r, 4)} offset:{L_MEM + 1024 * (2 * w + q)}')
        for r in range(0, 16, 2): P(z2(ACQ + r))
        P('s_waitcnt lgkmcnt(0)\ns_barrier')
        for t in range(9):
            P(rdA(t))
            for s in (f'q{t}a', f'q{t}b', f'k{t}a', f'k{t}b'):
                o = (s[0], t, 'ab'.index(s[2]))
                if HOME[o][0] == 'lds':
                    for x in lds_fetch(o, QOP, w): P(x)
                P(sm(s, QOP))
        for x in qv + ka: P(x)
        P(f's_waitcnt lgkmcnt(0)\ns_nop 1\ns_branch {Lb("recok")}')
    retry.append(recover)
    W0, W1 = (('x', 0), ('x', 1)) if heavy else (('d', 1, 2), ('d', 1, 3))
    KOP = ACQ; PX = ACK + 4; PM = ACK; OD = QA; LD = QC; OO = QD
    S0, S1 = KOP + 4, KOP + 5
    sx = [f'{MF} {vr(KX, 4)}, {vr(KX, 4)}, {vr(QOP, 4)}, 0', f'{MF} {vr(KX, 4)}, {vr(KX + 4, 4)}, {vr(QOP + 4, 4)}, {vr(KX, 4)}']
    smm = [f'{MF} {vr(KOP, 4)}, {vr(KOP, 4)}, {vr(QOP, 4)}, 0', f'{MF} {vr(KOP, 4)}, {vr(KOP + 4, 4)}, {vr(QOP + 4, 4)}, {vr(KOP, 4)}']
    pvx = [f'{MF} {vr(LD, 4)}, {vr(PX, 4)}, {vr(ONES, 4)}, 0', f'{MF} {vr(OD, 4)}, {vr(PX, 4)}, {vr(VX, 4)}, 0', f'{MF} {vr(OD + 4, 4)}, {vr(PX, 4)}, {vr(VX + 4, 4)}, 0']
    pvm = [f'{MF16} {vr(LD, 4)}, {vr(PM, 2)}, {vr(ONES, 2)}, {vr(LD, 4)}', f'{MF16} {vr(OD, 4)}, {vr(PM, 2)}, {vr(VM, 2)}, {vr(OD, 4)}',
           f'{MF16} {vr(OD + 4, 4)}, {vr(PM + 2, 2)}, {vr(VM, 2)}, {vr(OD + 4, 4)}']
    v = [sm(s) for s in 'v5a v5b v8a v8b v4a v4b v7a v7b v6a v6b v0a v0b v1a v2a v3a v1b v2b v3b'.split()]
    mf = v[:6] + sx + v[6:11] + smm + v[11:] + pvx + pvm
    QP = lambda p: DPP(f'quad_perm:{p}')
    WW = P.wait_writes
    side = {0: [WW, 's_barrier', f'ds_read_b128 {vr(QOP, 4)}, v{R1}'],
            1: [f'ds_read_b128 {vr(QOP + 4, 4)}, v{R1} offset:128', add(ACK + 4, ACK + 6), cvt(ACK + 2, ACK, ACK + 4)],
            2: [dw(ACK + 2, 256), add(ACK + 5, ACK + 7), cvt(ACK + 3, ACK + 1, ACK + 5)],
            3: [dw(ACK + 3, 256 + PITCH), flip],
            4: [rdA(0), f'v_mov_b32 v{PM + 1}, 0'],
            5: [f's_waitcnt vmcnt(99) lgkmcnt(3)', f'v_mov_b32 v{PM + 2}, 0'],
            6: [rdA(1), WW],
            7: ['s_barrier'],
            8: [f'ds_read_b128 {vr(KOP, 4)}, v{R1} offset:256', f'ds_read_b128 {vr(KOP + 4, 4)}, v{R1} offset:384'],
            9: [rdA(2), f'v_add_f32_dpp v{VM}, v{KX + 2}, v{KX} {QP("[2,3,0,1]")}', f'v_add_f32_dpp v{VM + 1}, v{KX + 3}, v{KX + 1} {QP("[2,3,0,1]")}'],
            10: [F(W0)[0], f'v_exp_f32_dpp v{VM}, v{VM} {QP("[0,1,0,1]")}'],
            11: [rdA(3), f'v_exp_f32_dpp v{VM + 1}, v{VM + 1} {QP("[0,1,0,1]")}'],
            12: ['s_waitcnt lgkmcnt(3)', cvt(VM, VM, VM + 1)],
            13: [f'ds_write_b32 v{R2}, v{VM} offset:{512 + 4 * w}'],
            14: [F(W0)[1]],
            15: [F(W1)[0]],
            16: [f'v_add_f32_dpp v{S0}, v{KOP + 2}, v{KOP} {QP("[2,3,0,1]")}', f'v_add_f32_dpp v{S1}, v{KOP + 3}, v{KOP + 1} {QP("[2,3,0,1]")}'],
            17: [WW, 's_barrier', f'ds_read_b128 {vr(PX, 4)}, v{R2} offset:512'],
            18: [F(W1)[1], f'v_mul_f32 v{S0}, {sCB}, v{S0}'],
            19: [f'v_mul_f32 v{S1}, {sCB}, v{S1}'],
            20: [f'v_exp_f32_dpp v{S0}, v{S0} {QP("[0,1,0,1]")}'],
            21: [f's_waitcnt vmcnt(98) lgkmcnt(1)', f'v_exp_f32_dpp v{S1}, v{S1} {QP("[0,1,0,1]")}'],
            22: [add(ACV, ACV + 2), add(ACV + 1, ACV + 3)],
            23: [add(ACV + 4, ACV + 6), add(ACV + 5, ACV + 7)],
            24: [cvt(PM, S0, S1), cvt(VM, ACV, ACV + 1), cvt(VM + 1, ACV + 4, ACV + 5)],
            25: [cvt(PM + 3, S0, S1)],
            26: [f'ds_read_b128 {vr(ONES, 4)}, v{A2} offset:{L_TAB}']}
    def vmw(regs, lg):
        def f():
            k = max([j for j, x in enumerate(P.vm) if x & regs], default=-1)
            P('s_waitcnt ' + (f'vmcnt({len(P.vm) - 1 - k}) ' if k >= 0 else '') + f'lgkmcnt({lg})')
        return f
    side[5][0] = vmw(quad(KX) | quad(KX + 4), 3)
    side[21][0] = vmw(quad(VX) | quad(VX + 4), 1)
    run(mf, side, 'v')
    def normalise():
        P(f'v_rcp_f32 v{LD + 2}, v{LD}\nv_rcp_f32 v{LD + 3}, v{LD + 1}')
        for r in (0, 1, 4, 5): P(f'v_mul_f32 v{OD + r}, v{LD + 2 + r % 2}, v{OD + r}')
        P(cvt(OD + 2, OD, OD + 4)); P(dw(OD + 2, L_O)); P(cvt(OD + 3, OD + 1, OD + 5)); P(dw(OD + 3, L_O + PITCH))
    normalise()
    mark('owr')
    P.c('exp() ran without a shift: safe only while every row sum lies in [2^-30, 2^30); otherwise redo with the true row max')
    P(f"""v_subrev_u32 v{LD}, {(127 - 30) << 23}, v{LD}
    v_subrev_u32 v{LD + 1}, {(127 - 30) << 23}, v{LD + 1}
    v_max_u32 v{LD}, v{LD}, v{LD + 1}
    v_cmp_le_u32 vcc, {60 << 23}, v{LD}""")
    zl = list(range(QE, ACK + 8, 2))
    for r in zl[:4]: P(z2(r))
    P(f's_cbranch_vccnz {Lb("mx")}')
    P.label(Lb('mxok'), keep=True)
    def truemax():
        P.label(Lb('mx'))
        SXD, SMD, PL, MXR = QC, QD, ACV, QE
        P(f's_waitcnt lgkmcnt(0)\ns_barrier')
        for c in range(2):
            P(f'buffer_load_dwordx4 {vr(QA + 4 * c, 4)}, v{A2}, {SWS}, {sKV} offen offset:{1024 * c} sc1')
            P(f'ds_read_b128 {vr(ACQ + 4 * c, 4)}, v{R1} offset:{128 * c}\nds_read_b128 {vr(ACK + 4 * c, 4)}, v{R1} offset:{256 + 128 * c}')
        for d_, a_ in ((SXD, QA), (SMD, ACK)):
            P(f'{MF} {vr(d_, 4)}, {vr(a_, 4)}, {vr(ACQ, 4)}, 0\n{MF} {vr(d_, 4)}, {vr(a_ + 4, 4)}, {vr(ACQ + 4, 4)}, {vr(d_, 4)}')
        for d_ in (SXD, SMD):
            for r in range(2): P(f'v_add_f32_dpp v{d_ + r}, v{d_ + 2 + r}, v{d_ + r} {QP("[2,3,0,1]")}')
            for r in range(2): P(f'v_mov_b32_dpp v{d_ + r}, v{d_ + r} {QP("[0,1,0,1]")}')
        for r in range(2):
            P(f'v_mul_f32 v{SMD + r}, {sCB}, v{SMD + r}\nds_write_b32 v{R2}, v{SXD + r} offset:{L_O + 64 * r + 4 * w}')
        P('s_waitcnt lgkmcnt(0)\ns_barrier')
        for r in range(2): P(f'ds_read_b128 {vr(PL + 4 * r, 4)}, v{R2} offset:{L_O + 64 * r}')
        P('s_waitcnt lgkmcnt(0)\ns_barrier')
        sc = list(range(PL, PL + 8)) + [SMD, SMD + 1]
        P(f'v_max_f32 v{MXR}, v{sc[0]}, v{sc[1]}')
        for j in range(2, 10, 2): P(f'v_max3_f32 v{MXR}, v{MXR}, v{sc[j]}, v{sc[j + 1]}')
        for sw in ('v_permlane16_swap_b32', 'v_permlane32_swap_b32'):
            P(f'v_mov_b32 v{MXR + 1}, v{MXR}\n{sw} v{MXR}, v{MXR + 1}\nv_max_f32 v{MXR}, v{MXR}, v{MXR + 1}')
        for r in sc: P(f'v_sub_f32 v{r}, v{r}, v{MXR}')
        for r in sc: P(f'v_exp_f32 v{r}, v{r}')
        for r in range(4): P(cvt(PX + r, PL + r, PL + 4 + r))
        P(cvt(PM, SMD, SMD + 1)); P(cvt(PM + 3, SMD, SMD + 1))
        P(f'v_mov_b32 v{PM + 1}, 0\nv_mov_b32 v{PM + 2}, 0')
        for r in range(4): P(f'v_mov_b32 v{ONES + r}, 0x3f803f80')
        for x in pvx + pvm: P(x)
        P(f'ds_read_b128 {vr(ONES, 4)}, v{A2} offset:{L_TAB}')
        normalise()
        for r in zl[:4]: P(z2(r))
        P(f's_branch {Lb("mxok")}')
    retry.append(truemax)
    P(f's_cmp_eq_u32 {sSTEP}, {NSEG - 1}')
    P('s_waitcnt lgkmcnt(0)\ns_barrier')
    mark('obar1')
    ODUP = QA
    for c in range(4): P(f'ds_read_b128 {vr(ODUP + 4 * c, 4)}, v{R2} offset:{L_O + 64 * c}')
    for r in zl[4:]: P(z2(r))
    mark('obar')
    inc = 0 if 'samekv' in opt else 32 * 16384
    book = (f"""s_add_u32 {sKV}, {sKV}, {inc}
    s_add_u32 {sKV2}, {sKV2}, {inc}
    s_add_u32 {sPF}, {sPF}, {inc}
    s_add_u32 {sEXP}, {sEXP}, {32 * 4096}
    s_add_u32 {sSTEP}, {sSTEP}, 1
    s_xor_b32 {sMR}, {sMR}, {0 if 'nocomm' in opt else MEM_SLOT}
    s_xor_b32 {sM8}, {sM8}, {0 if 'nocomm' in opt else MEM_SLOT}""")
    W = [QE, ACQ, ACQ + 4, ACK, ACK + 4]
    order = [0, 4, 1, 2, 3] if heavy else [0, 1, 2, 3]
    nd = len(order)
    mf = [f'{SM} {vr(W[d], 4)}, {vr(ODUP + 4 * c, 4)}, {bsrc(("d", d, c) if d < 4 else ("x", c))}, v{IDX}' for d in order for c in range(4)]
    side = {}
    fl = (F(('x', 2)) + F(('x', 3)) + F(('d', 1, 2)) + F(('d', 1, 3)) if heavy else []) + F(('d', 2, 2)) + F(('d', 2, 3)) + F(('d', 3, 2)) + F(('d', 3, 3))
    slots = [0, 0, 1, 2, 4, 4, 5, 6, 7, 8, 9, 10, 11, 12, 13, 14] if heavy else [2, 3, 4, 5, 6, 7, 8, 9]
    for i, x in zip(slots, fl): addside(side, i, x)
    addside(side, 3 if heavy else 0, f's_cbranch_scc1 {Lb("last")}')
    tagi = lambda d: f'v_bfi_b32 v{W[d]}, 1, {sTAG}, v{W[d]}'
    pst = lambda d: f'buffer_store_dwordx2 {vr(W[d], 2)}, v{A3}, {SWS}, {sPW[d]} offen {stf}'
    for j, d in enumerate(order[:-1]):
        i = max(4 * j + 5, T.get('d0', 5))
        addside(side, i, cvt(W[d], W[d], W[d] + 1), cvt(W[d] + 1, W[d] + 2, W[d] + 3), tagi(d))
        addside(side, i + 1, pst(d))
    kmrd = f'ds_read_b64 {vr(QE, 2)}, v{R1} offset:{256 + 128 * (w // 2) + 8 * (w % 2)}'
    addside(side, 15, kmrd, flip)
    addside(side, 10, f'v_mov_b64 {vr(QE + 2, 2)}, {vr(VM, 2)}')
    addside(side, 11, z2(W[order[1]])); addside(side, 12, z2(W[order[1]] + 2))
    n1 = T.get('n1', (2, 2, 2, 2))[w]
    if w > 0:
        SELR, RDS, sets = QA, [QB], [[VX], [ACV], [KX], [QOP]][:n1]
    else:
        SELR, RDS, sets = VX, [VX + 4, ACV], [[QA, QC], [KX, QOP]][:n1]
    srcs = [sPR, sPRX]
    h1ld = [[f'buffer_load_dwordx4 {vr(dat + 4 * q, 4)}, v{A2}, {SWS}, {srcs[u]} offen offset:{1024 * q} sc1' for u, dat in enumerate(st_) for q in range(2)] for st_ in sets]
    run(mf, side, 'w')
    d = order[-1]
    P(f'ds_read_b128 {vr(SELR, 4)}, v{A2} offset:{L_SEL}')
    P(cvt(W[d], W[d], W[d] + 1)); P(cvt(W[d] + 1, W[d] + 2, W[d] + 3)); P(tagi(d)); P(pst(d))
    mark('wend')
    for dd in order[2:]: P(z2(W[dd])); P(z2(W[dd] + 2))
    P(book)
    fill = F(('q', 0, 0)) + F(('q', 0, 1)) + F(('k', 0, 0))
    post = [f'v_lshlrev_b32 v{VM + 1}, 2, v{A2}'] + ([f'v_mov_b32 v{VM}, {sSTEP}'] if w == 1 else [])
    if 'nocomm' in opt:
        for x in fill + post: P(x)
        dly(100)
        if not tight: P(f's_mov_b32 m0, {L_MEM + 2048 * w}')
        P(f's_branch {Lb("top")}')
    dly(T.get('h1dly', (24, 40, 40, 56))[w])
    for j in range(n1):
        for x in h1ld[j]: P(x)
        if j == 0: mark('h1i')
        if j + 1 < n1: dly(T.get('gap1', 28))
    if w == 3 and 'standalone' not in opt:
        P(f's_waitcnt lgkmcnt(0)\ns_cmp_eq_u32 {sSTEP}, {7 * KV_EARLY - 2}\ns_cbranch_scc1 {Lb("kv")}')
        P.label(Lb('kvb'), keep=True)
        def kv1():
            P.label(Lb('kv'))
            P(f's_lshl_b32 {sT2}, {sH}, 2\ns_add_u32 {sT2}, {sT2}, {DB_P1}')
            P(f's_load_dword {sT3}, s[12:13], {sT2} glc\ns_branch {Lb("kvb")}', nowait=True)
            P.label(Lb('kv2'))
            P(f's_waitcnt lgkmcnt(0)\ns_cmp_ge_u32 {sT3}, 0x700\ns_cbranch_scc1 {Lb("top")}')
            P(f's_load_dword {sT3}, s[12:13], {sT2} glc\ns_add_u32 {sSPIN}, {sSPIN}, 1\ns_cmp_lt_u32 {sSPIN}, {SPIN_MAX}\ns_cbranch_scc1 {Lb("kv2")}\ns_branch {Lb("top")}', nowait=True)
        retry.append(kv1)
    pub = [(A5, sMW), (A5X, sMWX)]
    def reduce_check(st_, mk=False):
        for u, dat in enumerate(st_):
            rd = RDS[u]
            P(f'{MF} {vr(rd, 4)}, {vr(SELR, 4)}, {vr(dat, 4)}, 0')
            if mk and u == 0: mark('h1d')
            P(f'v_bitop3_b32 v{CK if u == 0 else CK2}, v{dat}, v{dat + 2}, {sTAG} bitop3:0x7e')
            if u: P(f'v_or_b32 v{CK}, v{CK}, v{CK2}')
            P(f'{MF} {vr(rd, 4)}, {vr(SELR, 4)}, {vr(dat + 4, 4)}, {vr(rd, 4)}')
            P(f'v_bitop3_b32 v{CK2}, v{dat + 4}, v{dat + 6}, {sTAG} bitop3:0x7e')
            if u + 1 < len(st_): P(f'v_or_b32 v{CK}, v{CK}, v{CK2}')
        P(f'v_bitop3_b32 v{CK}, v{CK}, v{CK2}, 1 bitop3:0xa8')
        P(f'v_cmp_ne_u32 vcc, 0, v{CK}')
    spec = (T.get('spec', 1) and n1 == 1)
    def publish(spec):
        if spec:
            P('s_cmp_eq_u64 vcc, 0')
            for u in range(len(RDS)): P(f's_cselect_b32 {(sT0, sT1)[u]}, {pub[u][1]}, {WS_SIZE}')
        for u, rd in enumerate(RDS):
            for rot in (4, 8):
                for r in range(2): P(f'v_add_f32_dpp v{rd + r}, v{rd + r}, v{rd + r} {DPP(f"row_ror:{rot}")}')
            P(cvt(rd, rd, rd + 1))
            P(f'buffer_store_dword v{rd}, v{pub[u][0]}, {SWS}, {(sT0, sT1)[u] if spec else pub[u][1]} offen {stf}')
    reduce_check(sets[0], True)
    if spec: publish(True)
    P(f's_cbranch_vccnz {Lb("h1r")}')
    if not spec:
        P.label(Lb('h1p'), keep=True)
        publish(False)
    P.label(Lb('h1ok'), keep=True)
    mark('pub')
    def r1():
        regsets = [[Ins(x).ws for x in l] for l in h1ld]
        P.label(Lb('h1r'), vm=[x for l in regsets[1:] for x in l])
        for j in range(n1):
            P('s_mov_b64 exec, vcc')
            for x in h1ld[j]: P(x)
            P(f's_mov_b64 exec, -1\n{DIAG}\ns_add_u32 {sSPIN}, {sSPIN}, 1')
            reduce_check(sets[(j + 1) % n1])
            P(f's_cbranch_vccz {Lb("h1p")}')
        P(f's_cmp_lt_u32 {sSPIN}, {SPIN_MAX}\ns_cbranch_scc1 {Lb("h1r")}')
        if spec:
            P.label(Lb('h1p'))
            P('s_nop 2')
            publish(False)
            P(f's_branch {Lb("h1ok")}')
        else: P(f's_branch {Lb("h1p")}')
    retry.append(r1)
    for u in range(len(RDS)): P(f's_xor_b32 {pub[u][1]}, {pub[u][1]}, {MEM_SLOT}')
    P(f's_xor_b32 {sTAG}, {sTAG}, 1')
    dly(T.get('h2dly', (24, 24, 0, 0))[w])
    P.label(Lb('h2'), keep=True)
    P(post[0])
    hop2_entry([f'buffer_store_dword v{TT}, v{pub[u][0]}, {SWS}, {pub[u][1]} offen {stf}' for u in range(len(RDS))], fill)
    for x in post[1:]: P(x)
    if w == 3 and 'standalone' not in opt: P(f's_cmp_eq_u32 {sSTEP}, {7 * KV_EARLY - 2}\ns_cbranch_scc1 {Lb("kv2")}')
    P(f's_branch {Lb("top")}')
    for r in retry: r()
    P.label(Lb('last'))
    P('s_nop 7\ns_waitcnt vmcnt(0) lgkmcnt(0)')
    P(kmrd); P(f'v_mov_b64 {vr(QE + 2, 2)}, {vr(VM, 2)}')
    P(f's_add_u32 {sEXP}, {sEXP}, {32 * 4096}')
    P(exp_)
    P('s_waitcnt vmcnt(0)\ns_barrier')
    if w == 1:
        P(f'v_mov_b32 v{VM}, {NSEG + 1}\ns_mov_b64 exec, 1\nbuffer_store_dword v{VM}, v{A2}, {SWS}, {sFLG} offen sc1\ns_mov_b64 exec, -1')
```

```python
from asmgen import *
from layout import *

sW, sJ, sT0, sT1, sT2, sT3 = 's52', 's53', 's54', 's55', 's56', 's57'
sH, sSEG, sXS, sM, sB0, sB1, sO, sSPIN, sN, sXM, sU0, sU1, sU2, sU3 = ['s%d' % i for i in range(58, 72)]
MF32 = 'v_mfma_f32_32x32x16_bf16'
MF = 'v_mfma_f32_16x16x32_bf16'
XBUF = 36864
RING = 36864
L, A2, XD, XR, WD0, WD1, RP, RN, T0, T1, T2, T3, RA = 200, 201, 202, 203, 207, 208, 209, 210, 211, 212, 213, 214, 215
XO = 32
cvt = lambda d, a, b: f'v_cvt_pk_bf16_f32 v{d}, v{a}, v{b}'
def wreg(i):
    return ('a', 4 * i) if i < 64 else ('v', 224 + 4 * (i - 64))
def wq(i):
    k, r = wreg(i); return vr(r, 4, k)

def common(P):
    P.c('---- worker per-lane constants')
    P(f'''v_and_b32 v{L}, 63, v0
    v_lshlrev_b32 v{A2}, 4, v{L}
    v_lshrrev_b32 v{T0}, 3, v{L}
    s_lshl_b32 {sT0}, {sW}, 3
    v_add_u32 v{T0}, {sT0}, v{T0}
    v_bfe_u32 v{T1}, v{T0}, 1, 3
    v_and_b32 v{T2}, 7, v{L}
    v_xor_b32 v{T1}, v{T1}, v{T2}
    v_mul_u32_u24 v{T0}, 1152, v{T0}
    v_lshl_add_u32 v{XD}, v{T1}, 4, v{T0}
    s_mul_i32 {sXM}, {sW}, 9216
    v_and_b32 v{T0}, 31, v{L}
    v_lshrrev_b32 v{T1}, 3, v{T0}
    v_mul_u32_u24 v{T1}, 9216, v{T1}
    v_and_b32 v{T2}, 7, v{T0}
    v_lshl_add_u32 v{T1}, v{T2}, 7, v{T1}
    v_bfe_u32 v{T2}, v{T0}, 1, 3
    v_lshrrev_b32 v{T3}, 5, v{L}
    v_xor_b32 v{T2}, v{T2}, v{T3}
    v_lshl_add_u32 v{XR}, v{T2}, 4, v{T1}
    v_xor_b32 v{XR + 1}, 32, v{XR}
    v_xor_b32 v{XR + 2}, 64, v{XR}
    v_xor_b32 v{XR + 3}, 0x60, v{XR}
    v_bfe_u32 v{T0}, v{L}, 2, 2
    v_lshl_add_u32 v{T1}, v{T3}, 3, v{T0}
    v_lshlrev_b32 v{T1}, 8, v{T1}
    v_xor_b32 v{T0}, {sW}, v{T0}
    v_lshl_add_u32 v{T1}, v{T0}, 6, v{T1}
    v_bfe_u32 v{T2}, v{L}, 4, 1
    v_and_b32 v{T0}, 3, v{L}
    v_lshl_add_u32 v{RN}, v{T2}, 5, v{T1}
    v_lshl_add_u32 v{RN}, v{T0}, 3, v{RN}
    v_lshl_add_u32 v{RP}, v{T2}, 4, v{T1}
    v_and_b32 v{T2}, 1, v{T0}
    v_lshl_add_u32 v{RP}, v{T2}, 3, v{RP}
    v_lshrrev_b32 v{T2}, 1, v{T0}
    v_lshl_add_u32 v{RP}, v{T2}, 5, v{RP}
    s_mov_b32 {sSPIN}, 0''')

def xdma(P, buf):
    for c in range(9):
        P(f's_add_u32 m0, {sXM}, {buf * XBUF + 896 * c}')
        P(f'buffer_load_dwordx4 v{XD}, {SX}, {sXS} offen offset:{128 * c} lds')

def wload(P, mats, stride, pre=0):
    blocks = [(m, t) for t in range(9) for m in mats]
    n = len(blocks); NS = 7
    P(f's_lshl_b32 {sM}, {sW}, 10\ns_add_u32 {sM}, {sM}, {RING}')
    def dma(j):
        (srd, va, base, _, _), t = blocks[j]
        for y in range(4):
            P(f's_add_u32 m0, {sM}, {(j % NS) * 16384 + y * 4096}\ns_add_u32 {sT0}, {base}, {(64 * t + 16 * y) * stride}')
            P(f'buffer_load_dwordx4 v{va}, {srd}, {sT0} offen lds')
    for j in range(NS - 1): dma(j)
    for j, ((srd, va, base, ra, q0), t) in enumerate(blocks):
        P(f's_waitcnt vmcnt({4 * (min(n, j + NS - 1) - j - 1)}) lgkmcnt(0)\ns_barrier')
        if j + NS - 1 < n: dma(j + NS - 1)
        P(f'v_add_u32 v{RA}, {RING + (j % NS) * 16384}, v{ra}')
        for kk in range(4):
            k, r = wreg(q0 + 4 * t + kk)
            for u in range(2): P(f'ds_read_b64_tr_b16 {vr(r + 2 * u, 2, k)}, v{RA} offset:{(16 * kk + 4 * u) * 256}')
    P('s_waitcnt lgkmcnt(0)\ns_barrier')

def gemm(P, buf, tiles):
    rd = lambda k: f'ds_read_b128 {vr(XO + 4 * (k % 4), 4)}, v{XR + k % 4} offset:{buf * XBUF + (k // 4) * 1024}'
    for k in range(3): P(rd(k))
    for k in range(36):
        x = vr(XO + 4 * (k % 4), 4)
        for j, (acc, q0, wa) in enumerate(tiles):
            c = '0' if k == 0 else vr(acc, 16)
            P(f'{MF32} {vr(acc, 16)}, {wq(q0 + k)}, {x}, {c}' if wa else f'{MF32} {vr(acc, 16)}, {x}, {wq(q0 + k)}, {c}')
            if j == 0 and k + 3 < 36: P(rd(k + 3))

def poll(P, name, srd, va, soff, cmp_, exec_, sleep=2):
    P(f's_cmp_eq_u32 {sW}, 0\ns_cbranch_scc0 {name}_d\ns_mov_b32 exec_hi, 0\ns_mov_b32 exec_lo, {exec_}')
    P.label(name)
    P(f'buffer_load_dword v{T0}, v{va}, {srd}, {soff} offen sc1\ns_add_u32 {sSPIN}, {sSPIN}, 1\ns_waitcnt vmcnt(0)')
    P(cmp_)
    P(f's_cbranch_vccz {name}_x\ns_sleep {sleep}\ns_cmp_lt_u32 {sSPIN}, {SPIN_MAX}\ns_cbranch_scc1 {name}')
    P.label(name + '_x')
    P('s_mov_b64 exec, -1')
    P.label(name + '_d')
    P('s_barrier')

def signal_add(P, name, off, val=1):
    P(f's_waitcnt vmcnt(0)\ns_barrier\ns_cmp_eq_u32 {sW}, 0\ns_cbranch_scc0 {name}')
    P(f'v_mov_b32 v{T0}, {val}\nv_mov_b32 v{T1}, 0\ns_mov_b64 exec, 1\nbuffer_atomic_add v{T0}, v{T1}, {SDBG}, {off} offen\ns_mov_b64 exec, -1')
    P.label(name)

def kv_addr(P, KA, VA):
    P(f'''; K unit address: (tok>>3)*2048 + (4*(j>>1) + 2*hf + (j&1))*16, j = tok&7
    v_bfe_u32 v{T0}, v{L}, 3, 2
    v_lshlrev_b32 v{KA}, 11, v{T0}
    v_bfe_u32 v{T0}, v{L}, 1, 2
    v_lshl_add_u32 v{KA}, v{T0}, 6, v{KA}
    v_lshrrev_b32 v{T1}, 5, v{L}
    v_lshl_add_u32 v{KA}, v{T1}, 5, v{KA}
    v_and_b32 v{T0}, 1, v{L}
    v_lshl_add_u32 v{KA}, v{T0}, 4, v{KA}
    v_bfe_u32 v{T0}, v{L}, 4, 1
    v_lshlrev_b32 v{VA}, 10, v{T0}
    v_lshl_add_u32 v{VA}, v{T1}, 9, v{VA}
    v_and_b32 v{T0}, 15, v{L}
    v_lshl_add_u32 v{VA}, v{T0}, 4, v{VA}
    s_lshl_b32 {sT0}, {sW}, 11
    s_add_u32 {sT0}, {sT0}, 8192
    v_add_u32 v{VA}, {sT0}, v{VA}''')

KA, VA = 216, 217
def head_src(P):
    P(f'''v_lshrrev_b32 v{T0}, 4, v{L}
    v_lshlrev_b32 v{T1}, 2, v{T0}
    v_and_b32 v{T2}, 15, v{L}
    v_xor_b32 v{T1}, v{T1}, v{T2}
    v_lshlrev_b32 v{T1}, 4, v{T1}
    v_lshl_add_u32 v{WD0}, v{T0}, 13, v{T1}
    s_lshl_b32 {sB0}, {sH}, 8
    s_lshl_b32 {sT0}, {sW}, 15
    s_add_u32 {sB0}, {sB0}, {sT0}''')

def phase_kv(P):
    P.c('==== phase 1: k_x (scaled) and v_x of head j/7 for segments j%7, +7, ...')
    P(f'''s_mul_i32 {sH}, {sJ}, 9363
    s_lshr_b32 {sH}, {sH}, 16
    s_mul_i32 {sT0}, {sH}, 7
    s_sub_u32 {sSEG}, {sJ}, {sT0}
    s_mul_i32 {sXS}, {sSEG}, {XBUF}''')
    P.c('the token-attention workgroups clear their own progress word before anyone can look at it')
    P(f'''s_mul_i32 {sT1}, {sJ}, 21846
    s_lshr_b32 {sT1}, {sT1}, 16
    s_mul_i32 {sT2}, {sT1}, 3
    s_sub_u32 {sT2}, {sJ}, {sT2}
    s_lshl_b32 {sT2}, {sT2}, 7
    s_lshl_b32 {sT1}, {sT1}, 2
    s_add_u32 {sT1}, {sT1}, {sT2}
    s_add_u32 {sT1}, {sT1}, {WS_FO}
    s_cmp_lt_u32 {sJ}, 96
    s_cselect_b32 {sU3}, {sT1}, {WS_SIZE}
    v_mov_b32 v{T0}, 0
    s_mov_b64 exec, 1
    buffer_store_dword v{T0}, v{T0}, {SWS}, {sU3} offen sc1
    s_mov_b64 exec, -1''')
    xdma(P, 0)
    head_src(P)
    kv_addr(P, KA, VA)
    wload(P, [(SWK, WD0, sB0, RP, 0), (SWV, WD0, sB0, RN, 36)], 8192)
    P(f's_mov_b32 {sU0}, {f32bits(CB)}\ns_lshl_b32 {sU1}, {sW}, 9\ns_lshl_b32 {sU2}, {sH}, 2\ns_add_u32 {sU2}, {sU2}, {DB_P1}')
    P.stamp(1)
    P.label('KV_loop')
    for buf in range(2):
        P(f's_add_u32 {sXS}, {sXS}, {7 * XBUF}')
        xdma(P, 1 - buf)
        gemm(P, buf, [(0, 0, True), (16, 36, False)])
        P(f's_lshl_b32 {sO}, {sSEG}, 5\ns_add_u32 {sO}, {sO}, {sH}\ns_lshl_b32 {sO}, {sO}, 14\ns_add_u32 {sT1}, {sO}, {sU1}')
        for r in range(16): P(f'v_mul_f32 v{r}, {sU0}, v{r}')
        for a in range(2):
            for r in range(4): P(cvt(48 + 4 * a + r, 8 * a + r, 8 * a + 4 + r))
            P(f'buffer_store_dwordx4 {vr(48 + 4 * a, 4)}, v{KA}, {SWS}, {sT1} offen offset:{256 * a} sc1')
        for a in range(2):
            for r in range(4): P(cvt(56 + 4 * a + r, 16 + 4 * r + 2 * a, 17 + 4 * r + 2 * a))
            P(f'buffer_store_dwordx4 {vr(56 + 4 * a, 4)}, v{VA}, {SWS}, {sO} offen offset:{256 * a} sc1')
        P(f's_add_u32 {sSEG}, {sSEG}, 7\ns_cmp_ge_u32 {sSEG}, {NSEG}\ns_cbranch_scc1 KV_done')
        if buf == (KV_EARLY - 1) % 2:
            P(f's_sub_u32 {sT0}, {sSEG}, {7 * KV_EARLY}\ns_cmp_lt_u32 {sT0}, 7\ns_cbranch_scc1 KV_early')
        P('s_waitcnt vmcnt(4)\ns_barrier')
        if buf == (KV_EARLY - 1) % 2: P.label('KV_cont')
    P('s_branch KV_loop')
    P.label('KV_early')
    signal_add(P, 'KV_sig0', sU2)
    P('s_branch KV_cont')
    P.label('KV_done')
    signal_add(P, 'KV_sig', sU2, 0x100)

def phase_attn(P):
    P.c('==== token attention: head j/3, segments j%3, +3, ...')
    QL = 2 * XBUF
    MASK, SX_, SM_, QO, KO, VO, VMO, OA, KM, VMA = 48, 64, 80, 96, 128, 160, 168, 0, 218, 219
    P(f'''s_mul_i32 {sH}, {sJ}, 21846
    s_lshr_b32 {sH}, {sH}, 16
    s_mul_i32 {sT0}, {sH}, 3
    s_sub_u32 {sSEG}, {sJ}, {sT0}
    s_mul_i32 {sXS}, {sSEG}, {XBUF}''')
    xdma(P, 0)
    head_src(P)
    wload(P, [(SWQ, WD0, sB0, RP, 0)], 8192)
    P(f'''; causal mask as accumulator start: key = 8*(r>>2) + 4*hf + (r&3) > query -> -1e30
    v_and_b32 v{T0}, 31, v{L}
    v_lshrrev_b32 v{T1}, 5, v{L}
    v_lshlrev_b32 v{T2}, 2, v{T1}
    v_sub_u32 v{T0}, v{T0}, v{T2}
    v_mov_b32 v{T3}, 0xf149f2ca''')
    for r in range(16):
        P(f'v_cmp_gt_i32 vcc, {8 * (r // 4) + r % 4}, v{T0}\nv_cndmask_b32 v{MASK + r}, 0, v{T3}, vcc')
    P(f'''v_and_b32 v{KM}, 0xff, v{KA}
    ; v_m: w*1024 + (32*hf + (n&15))*16 + 8 + 4*(n>>4)
    v_and_b32 v{T0}, 15, v{L}
    v_lshl_add_u32 v{T0}, v{T1}, 5, v{T0}
    v_lshlrev_b32 v{VMA}, 4, v{T0}
    v_bfe_u32 v{T0}, v{L}, 4, 1
    v_lshl_add_u32 v{VMA}, v{T0}, 2, v{VMA}
    s_lshl_b32 {sT0}, {sW}, 10
    s_add_u32 {sT0}, {sT0}, 8
    v_add_u32 v{VMA}, {sT0}, v{VMA}
    s_lshl_b32 {sT0}, {sW}, 11
    s_add_u32 {sT0}, {sT0}, {QL}
    v_add_u32 v{RA}, {sT0}, v{A2}
    v_add_u32 v{WD1}, {QL}, v{A2}
    s_mov_b32 {sU0}, {f32bits(CB)}
    s_lshl_b32 {sU1}, {sH}, 7
    s_add_u32 {sU1}, {sU1}, {WS_FLAG}
    s_lshl_b32 {sT2}, {sH}, 2
    s_add_u32 {sT2}, {sT2}, {DB_P1}
    s_mov_b32 {sT3}, {DB_ARMED}''')
    poll(P, 'AT_p1', SDBG, A2, sT2, f'v_cmp_gt_u32 vcc, 0x700, v{T0}', 1, 8)
    poll(P, 'AT_arm', SDBG, A2, sT3, f'v_cmp_gt_u32 vcc, 32, v{T0}', 1, 8)
    P.stamp(3)
    P.label('AT_loop')
    for buf in range(2):
        P(f's_lshl_b32 {sO}, {sSEG}, 5\ns_add_u32 {sO}, {sO}, {sH}\ns_lshl_b32 {sT1}, {sO}, 14')
        for i in range(8): P(f'buffer_load_dwordx4 {vr(KO + 4 * i, 4)}, v{KA}, {SWS}, {sT1} offen offset:{256 * i} sc1')
        for a in range(2): P(f'buffer_load_dwordx4 {vr(VO + 4 * a, 4)}, v{VA}, {SWS}, {sT1} offen offset:{256 * a} sc1')
        P(f's_add_u32 {sXS}, {sXS}, {3 * XBUF}')
        xdma(P, 1 - buf)
        gemm(P, buf, [(0, 0, True)])
        for a in range(2):
            for r in range(4): P(cvt(16 + 4 * a + r, 8 * a + r, 8 * a + 4 + r))
            P(f'ds_write_b128 v{RA}, {vr(16 + 4 * a, 4)} offset:{1024 * a}')
        P('s_waitcnt lgkmcnt(0)\ns_barrier')
        for i in range(8): P(f'ds_read_b128 {vr(QO + 4 * i, 4)}, v{WD1} offset:{1024 * i}')
        for i in range(8): P(f'{MF32} {vr(SX_, 16)}, {vr(KO + 4 * i, 4)}, {vr(QO + 4 * i, 4)}, {vr(MASK if i == 0 else SX_, 16)}')
        P(f's_add_u32 {sU2}, {sSEG}, 2\ns_lshl_b32 {sT1}, {sO}, 12\ns_add_u32 {sT1}, {sT1}, {WS_KVM}')
        MX = 16
        P(f'v_max3_f32 v{MX}, v{SX_}, v{SX_ + 1}, v{SX_ + 2}')
        for r in range(3, 15, 2): P(f'v_max3_f32 v{MX}, v{MX}, v{SX_ + r}, v{SX_ + r + 1}')
        P(f'v_max_f32 v{MX}, v{MX}, v{SX_ + 15}')
        P('s_waitcnt vmcnt(0)')
        poll(P, f'AT_m{buf}', SWS, A2, sU1, f'v_cmp_gt_u32 vcc, {sU2}, v{T0}', 1, 1)
        for i in range(8):
            c, g = i // 4, i % 4
            for hf in range(2): P(f'buffer_load_dwordx2 {vr(KO + 4 * i + 2 * hf, 2)}, v{KM}, {SWS}, {sT1} offen offset:{(2 * c + hf) * 1024 + g * 256} sc1')
        for b in range(2): P(f'buffer_load_dword v{VMO + b}, v{VMA}, {SWS}, {sT1} offen offset:{256 * b} sc1')
        for i in range(8): P(f'{MF32} {vr(SM_, 16)}, {vr(KO + 4 * i, 4)}, {vr(QO + 4 * i, 4)}, {"0" if i == 0 else vr(SM_, 16)}')
        P(f's_lshl_b32 {sO}, {sO}, 13\ns_lshl_b32 {sT0}, {sW}, 11\ns_add_u32 {sO}, {sO}, {sT0}\ns_add_u32 {sO}, {sO}, {WS_O}')
        for r in range(4): P(f'v_mul_f32 v{SM_ + r}, {sU0}, v{SM_ + r}')
        P(f'''v_max3_f32 v{MX}, v{MX}, v{SM_}, v{SM_ + 1}
        v_max3_f32 v{MX}, v{MX}, v{SM_ + 2}, v{SM_ + 3}
        v_mov_b32 v{MX + 1}, v{MX}
        v_permlane32_swap_b32 v{MX}, v{MX + 1}
        v_max_f32 v{MX}, v{MX}, v{MX + 1}''')
        sc = list(range(SX_, SX_ + 16)) + list(range(SM_, SM_ + 4))
        for r in sc: P(f'v_sub_f32 v{r}, v{r}, v{MX}')
        for r in sc: P(f'v_exp_f32 v{r}, v{r}')
        PO = 20
        for a in range(2):
            for r in range(4): P(cvt(PO + 4 * a + r, SX_ + 4 * r + 2 * a, SX_ + 4 * r + 2 * a + 1))
        P(cvt(PO + 8, SM_, SM_ + 1)); P(cvt(PO + 9, SM_ + 2, SM_ + 3))
        P(f'{MF32} {vr(OA, 16)}, {vr(VO, 4)}, {vr(PO, 4)}, 0')
        P(f'v_add_f32 v{MX}, v{sc[0]}, v{sc[1]}')
        for r in sc[2:8]: P(f'v_add_f32 v{MX}, v{MX}, v{r}')
        P(f'{MF32} {vr(OA, 16)}, {vr(VO + 4, 4)}, {vr(PO + 4, 4)}, {vr(OA, 16)}')
        for r in sc[8:14]: P(f'v_add_f32 v{MX}, v{MX}, v{r}')
        P(f'v_mfma_f32_32x32x8_bf16 {vr(OA, 16)}, {vr(VMO, 2)}, {vr(PO + 8, 2)}, {vr(OA, 16)}')
        for r in sc[14:]: P(f'v_add_f32 v{MX}, v{MX}, v{r}')
        P(f'''v_mov_b32 v{MX + 1}, v{MX}
        v_permlane32_swap_b32 v{MX}, v{MX + 1}
        v_add_f32 v{MX}, v{MX}, v{MX + 1}
        v_rcp_f32 v{MX}, v{MX}''')
        for a in range(2):
            for r in range(8): P(f'v_mul_f32 v{OA + 8 * a + r}, v{MX}, v{OA + 8 * a + r}')
            for r in range(4): P(cvt(PO + 4 * a + r, OA + 8 * a + 2 * r, OA + 8 * a + 2 * r + 1))
            P(f'buffer_store_dwordx4 {vr(PO + 4 * a, 4)}, v{A2}, {SWS}, {sO} offen offset:{1024 * a} sc1')
        P(f'''s_add_u32 {sSEG}, {sSEG}, 3
        v_mov_b32 v{T1}, {sSEG}
        s_waitcnt vmcnt(0)
        s_barrier
        s_cmp_eq_u32 {sW}, 0
        s_cselect_b32 {sT0}, {sU3}, {WS_SIZE}
        s_mov_b64 exec, 1
        buffer_store_dword v{T1}, v{A2}, {SWS}, {sT0} offen sc1
        s_mov_b64 exec, -1
        s_cmp_ge_u32 {sSEG}, {NSEG}
        s_cbranch_scc1 L_exit''')
    P('s_branch AT_loop')

def phase_a(P):
    P.c('==== branch A: 4 heads x 128 tokens (qkv projection, dilated local attention), and the gate of 16 tokens')
    RL, PA = 2 * XBUF, 516
    sG, sRUN = sU0, sU1
    P(f'''s_sub_u32 {sT0}, {sJ}, 96
    s_lshr_b32 {sG}, {sT0}, 4
    s_and_b32 {sRUN}, {sT0}, 15
    s_lshl_b32 {sXS}, {sRUN}, 2
    s_sub_u32 {sXS}, {sXS}, 1
    s_max_i32 {sXS}, {sXS}, 0
    s_mul_i32 {sXS}, {sXS}, {XBUF}''')
    xdma(P, 0)
    P.c('gate: 4 tokens per wave, 16 lanes per token, 72 B per lane')
    GX, GW = 48, 68
    P(f'''v_and_b32 v{T0}, 15, v{L}
    v_mul_u32_u24 v{T0}, 72, v{T0}
    v_lshrrev_b32 v{T1}, 4, v{L}
    v_mul_u32_u24 v{T2}, 1152, v{T1}
    v_add_u32 v{T2}, v{T2}, v{T0}
    s_lshl_b32 {sT0}, {sT0}, 2
    s_add_u32 {sU2}, {sT0}, {sW}
    s_mul_i32 {sT1}, {sU2}, {4 * 1152}''')
    for base, va, srd, so in ((GX, T2, SX, sT1), (GW, T0, SGATE, '0')):
        for i in range(4): P(f'buffer_load_dwordx4 {vr(base + 4 * i, 4)}, v{va}, {srd}, {so} offen offset:{16 * i}')
        P(f'buffer_load_dwordx2 {vr(base + 16, 2)}, v{va}, {srd}, {so} offen offset:64')
    P(f'v_mov_b32 v0, 0\nv_mov_b32 v1, 0x3f803f80')
    for i in range(18):
        P(f'''v_lshlrev_b32 v2, 16, v{GX + i}
        v_lshlrev_b32 v3, 16, v{GW + i}
        v_and_b32 v4, 0xffff0000, v{GX + i}
        v_and_b32 v5, 0xffff0000, v{GW + i}
        v_mul_f32 v2, v2, v3
        v_mul_f32 v4, v4, v5
        v_cvt_pk_bf16_f32 v2, v2, v4
        v_lshlrev_b32 v3, 16, v2
        v_and_b32 v4, 0xffff0000, v2
        v_add_f32 v0, v0, v3
        v_add_f32 v0, v0, v4''')
    for rot in (1, 2, 4, 8): P(f'v_add_f32_dpp v0, v0, v0 row_ror:{rot} row_mask:0xf bank_mask:0xf')
    P(f'''v_cvt_pk_bf16_f32 v0, v0, v0
    v_lshlrev_b32 v0, 16, v0
    v_mul_f32 v0, {f32bits(-math.log2(math.e))}, v0
    v_exp_f32 v0, v0
    v_add_f32 v0, 1.0, v0
    v_rcp_f32 v0, v0
    v_cvt_pk_bf16_f32 v0, v0, v0
    v_lshlrev_b32 v0, 16, v0
    v_lshlrev_b32 v{T1}, 2, v{T1}
    s_lshl_b32 {sT1}, {sU2}, 4
    s_add_u32 {sT1}, {sT1}, {WS_G}
    s_mov_b64 exec, 0x0001000100010001
    buffer_store_dword v0, v{T1}, {SWS}, {sT1} offen sc1
    s_mov_b64 exec, -1'''.replace('s_mov_b64 exec, 0x0001000100010001', 's_mov_b32 exec_lo, 0x00010001\ns_mov_b32 exec_hi, 0x00010001'))
    P.c('weight sources: virtual chunk cv = 16m + (p ^ 4r): 1152*(cv/9) + 16*(cv%9), cv >= 27 is padding')
    P(f'''v_lshrrev_b32 v{T0}, 4, v{L}
    v_lshlrev_b32 v{T1}, 2, v{T0}
    v_and_b32 v{T2}, 15, v{L}
    v_xor_b32 v{T1}, v{T1}, v{T2}
    v_mul_u32_u24 v{T0}, 3456, v{T0}
    v_mov_b32 v2, 0x40000000''')
    for m, wd in enumerate((WD0, WD1)):
        P(f'''v_add_u32 v{T2}, {16 * m}, v{T1}
        v_mul_u32_u24 v{T3}, 57, v{T2}
        v_lshrrev_b32 v{T3}, 9, v{T3}
        v_mul_u32_u24 v{T3}, 1008, v{T3}
        v_lshl_add_u32 v{T3}, v{T2}, 4, v{T3}
        v_add_u32 v{T3}, v{T3}, v{T0}
        v_cmp_lt_u32 vcc, 26, v{T2}
        v_cndmask_b32 v{wd}, v{T3}, v2, vcc''')
    P(f's_mul_i32 {sB0}, {sG}, 144\ns_mul_i32 {sT0}, {sW}, {4 * 3456}\ns_add_u32 {sB0}, {sB0}, {sT0}')
    P('s_waitcnt vmcnt(0)')
    wload(P, [(SWQKV, WD0, sB0, RN, 0), (SWQKV, WD1, sB0, RN, 36)], 3456)
    P.stamp(3)
    WA, RB_, OAD = 218, 219, 220
    P(f'''; qkv row write address: (l&31)*PA + 64w + 8*hf
    v_and_b32 v{T0}, 31, v{L}
    v_mul_u32_u24 v{WA}, {PA}, v{T0}
    v_lshrrev_b32 v{T1}, 5, v{L}
    v_lshl_add_u32 v{WA}, v{T1}, 3, v{WA}
    s_lshl_b32 {sT0}, {sW}, 6
    s_add_u32 {sT0}, {sT0}, {RL}
    v_add_u32 v{WA}, {sT0}, v{WA}
    s_lshl_b32 {sXS}, {sRUN}, 2
    s_mul_i32 {sXS}, {sXS}, {XBUF}''')
    for tile in range(5):
        buf = tile % 2
        if tile < 4:
            xdma(P, 1 - buf)
            P(f's_add_u32 {sXS}, {sXS}, {XBUF}')
        gemm(P, buf, [(0, 0, True), (16, 36, True)])
        for m in range(2):
            for qd in range(4):
                P(cvt(48, 16 * m + 4 * qd, 16 * m + 4 * qd + 1)); P(cvt(49, 16 * m + 4 * qd + 2, 16 * m + 4 * qd + 3))
                o = (256 * m + 16 * qd) // 4
                P(f'ds_write2_b32 v{WA}, v48, v49 offset0:{o} offset1:{o + 1}')
        P(f'v_add_u32 v{WA}, {32 * PA}, v{WA}')
        P('s_waitcnt vmcnt(0) lgkmcnt(0)\ns_barrier')
    P.c('attention: wave = head, lane = token, two rounds of 64 tokens')
    Q, KV, SC, O = 0, 16, 100, 112
    P(f'''v_mul_u32_u24 v{RB_}, {PA}, v{L}
    s_mul_i32 {sT0}, {sW}, 36
    s_add_u32 {sT1}, {sT0}, {RL + (32 - 14) * PA}
    v_add_u32 v{RB_}, {sT1}, v{RB_}
    v_mul_u32_u24 v{OAD}, 1152, v{L}
    s_mul_i32 {sT1}, {sG}, 144
    s_add_u32 {sT0}, {sT0}, {sT1}
    s_mul_i32 {sT1}, {sRUN}, {128 * 1152}
    s_add_u32 {sO}, {sT0}, {sT1}
    s_add_u32 {sO}, {sO}, {WS_OA}
    s_lshl_b32 {sN}, {sRUN}, 7
    s_mov_b32 {sT3}, {f32bits(CA)}''')
    def rd9(dst, off):
        for i in range(9): P(f'ds_read_b32 v{dst + i}, v{RB_} offset:{off + 4 * i}')
    for rnd in range(2):
        rd9(Q, 14 * PA)
        for j in range(8): rd9(KV + 9 * j, (14 - 2 * j) * PA + 144)
        for j in range(8): P(f'v_mov_b32 v{SC + j}, 0')
        for i in range(9):
            for j in range(8): P(f'v_dot2c_f32_bf16 v{SC + j}, v{Q + i}, v{KV + 9 * j + i}')
        for j in range(8): rd9(KV + 9 * j, (14 - 2 * j) * PA + 288)
        P(f'v_add_u32 v{T0}, {sN}, v{L}\nv_mov_b32 v{T1}, 0xf149f2ca')
        for j in range(8): P(f'v_mul_f32 v{SC + j}, {sT3}, v{SC + j}')
        for j in range(1, 8): P(f'v_cmp_gt_u32 vcc, {2 * j}, v{T0}\nv_cndmask_b32 v{SC + j}, v{SC + j}, v{T1}, vcc')
        P(f'''v_max3_f32 v{T2}, v{SC}, v{SC + 1}, v{SC + 2}
        v_max3_f32 v{T2}, v{T2}, v{SC + 3}, v{SC + 4}
        v_max3_f32 v{T2}, v{T2}, v{SC + 5}, v{SC + 6}
        v_max_f32 v{T2}, v{T2}, v{SC + 7}''')
        for j in range(8): P(f'v_sub_f32 v{SC + j}, v{SC + j}, v{T2}')
        for j in range(8): P(f'v_exp_f32 v{SC + j}, v{SC + j}')
        P(f'v_add_f32 v{T2}, v{SC}, v{SC + 1}')
        for j in range(2, 8): P(f'v_add_f32 v{T2}, v{T2}, v{SC + j}')
        P(f'v_rcp_f32 v{T2}, v{T2}\nv_mov_b32 v{T3}, 0')
        for j in range(8): P(f'v_mul_f32 v{SC + j}, v{T2}, v{SC + j}')
        for i in range(18): P(f'v_mov_b32 v{O + i}, 0')
        for j in range(8):
            P(cvt(Q + 2 * (j % 2), SC + j, T3)); P(cvt(Q + 1 + 2 * (j % 2), T3, SC + j))
            for i in range(9):
                P(f'v_dot2c_f32_bf16 v{O + 2 * i}, v{KV + 9 * j + i}, v{Q + 2 * (j % 2)}')
                P(f'v_dot2c_f32_bf16 v{O + 2 * i + 1}, v{KV + 9 * j + i}, v{Q + 1 + 2 * (j % 2)}')
        for i in range(9): P(cvt(132 + i, O + 2 * i, O + 2 * i + 1))
        P(f'''buffer_store_dwordx4 v[132:135], v{OAD}, {SWS}, {sO} offen sc1
        buffer_store_dwordx4 v[136:139], v{OAD}, {SWS}, {sO} offen offset:16 sc1
        buffer_store_dword v140, v{OAD}, {SWS}, {sO} offen offset:32 sc1''')
        if rnd == 0:
            P(f'v_add_u32 v{RB_}, {64 * PA}, v{RB_}\ns_add_u32 {sN}, {sN}, 64\ns_add_u32 {sO}, {sO}, {64 * 1152}')
    P(f's_mov_b32 {sT2}, {DB_ADONE}')
    signal_add(P, 'A_sig', sT2)

def phase_out(P):
    P.c('==== output projection + gated mix: 16 tokens x 32 columns per step, K split over the waves')
    def oreg(i):
        return ('a', 4 * i) if i < 64 else ('v', 216 + 4 * (i - 64))
    sSET, sHALF, sSL = sU0, sU1, sU2
    DAT, ACB, ACA, OB, OAA, GA, OUT, RO = 0, 148, 156, 164, 165, 166, 167, 168
    P(f'''s_sub_u32 {sT0}, {sJ}, 96
    s_mul_i32 {sT1}, {sT0}, 3641
    s_lshr_b32 {sT1}, {sT1}, 16
    s_mul_i32 {sT2}, {sT1}, 18
    s_sub_u32 {sSL}, {sT0}, {sT2}
    s_and_b32 {sHALF}, {sT1}, 1
    s_lshr_b32 {sSET}, {sT1}, 1
    v_lshrrev_b32 v{T0}, 2, v{L}
    v_mul_u32_u24 v{T0}, 1152, v{T0}
    v_and_b32 v{T1}, 3, v{L}
    v_lshl_add_u32 v{WD0}, v{T1}, 4, v{T0}
    s_lshl_b32 {sT0}, {sSL}, 6
    s_mul_i32 {sT1}, {sW}, {1024 * 1152}
    s_add_u32 {sB0}, {sT0}, {sT1}
    s_mul_i32 {sT1}, {sW}, {160 * 1152}
    s_add_u32 {sB1}, {sT0}, {sT1}
    s_mul_i32 {sM}, {sW}, 40960
    v_bfe_u32 v{T0}, v{L}, 2, 2
    v_lshlrev_b32 v{T1}, 4, v{T1}
    v_add_u32 v{T1}, {sM}, v{T1}
    v_lshl_add_u32 v{T1}, v{T0}, 6, v{T1}
    v_lshrrev_b32 v{T2}, 4, v{L}
    v_lshl_add_u32 v{RN}, v{T2}, 9, v{T1}
    v_lshrrev_b32 v{T3}, 5, v{L}
    v_lshl_add_u32 v{RP}, v{T3}, 10, v{T1}
    v_and_b32 v{T3}, 1, v{T2}
    v_lshl_add_u32 v{RP}, v{T3}, 8, v{RP}''')
    NS = 20
    def dma(k):
        for y in range(2):
            srd, base, row = (SWO, sB0, 32 * k) if k < 32 else (SWOA, sB1, 32 * (k - 32))
            P(f's_add_u32 m0, {sM}, {(k % NS) * 2048 + 1024 * y}\ns_add_u32 {sT0}, {base}, {(row + 16 * y) * 1152}')
            P(f'buffer_load_dwordx4 v{WD0}, {srd}, {sT0} offen lds')
    for k in range(NS - 1): dma(k)
    for k in range(37):
        P(f's_waitcnt vmcnt({2 * (min(37, k + NS - 1) - k - 1)}) lgkmcnt(0)')
        if k + NS - 1 < 37: dma(k + NS - 1)
        for t in range(2):
            kind, r = oreg(2 * k + t)
            for u in range(2):
                P(f'ds_read_b64_tr_b16 {vr(r + 2 * u, 2, kind)}, v{RP if k < 32 else RN} offset:{(k % NS) * 2048 + 8 * t + (512 if k < 32 else 256) * u}')
    P(f'''; operand addresses: O_B unit (g>>1)*1024 + ((g&1)*32 + 16*half + n)*16 ; O_A row (16*half + n)*1152 + 16g
    v_and_b32 v{T0}, 15, v{L}
    s_lshl_b32 {sT0}, {sHALF}, 4
    v_add_u32 v{T0}, {sT0}, v{T0}
    v_lshl_add_u32 v{T1}, v{T3}, 5, v{T0}
    v_lshlrev_b32 v{OB}, 4, v{T1}
    v_lshrrev_b32 v{T1}, 5, v{L}
    v_lshl_add_u32 v{OB}, v{T1}, 10, v{OB}
    v_mul_u32_u24 v{OUT}, 1152, v{T0}
    v_lshl_add_u32 v{OUT}, v{T2}, 4, v{OUT}
    v_lshlrev_b32 v{GA}, 2, v{T0}
    v_lshlrev_b32 v{WD1}, 2, v{L}
    s_lshl_b32 {sT0}, {sW}, 11
    v_add_u32 v{RO}, {sT0}, v{A2}
    s_mov_b32 {sSEG}, {sSET}
    s_lshl_b32 {sN}, {sSET}, 7
    s_add_u32 {sN}, {sN}, {WS_FO}
    s_mov_b32 {sT2}, {DB_P1}
    s_mov_b32 {sT3}, {DB_ADONE}
    s_waitcnt lgkmcnt(0)''')
    P.stamp(5)
    poll(P, 'O_p1', SDBG, WD1, sT2, f'v_cmp_gt_u32 vcc, 0x700, v{T0}', -1, 16)
    poll(P, 'O_a', SDBG, WD1, sT3, f'v_cmp_gt_u32 vcc, 0x80, v{T0}', 1, 16)
    P.stamp(6)
    P.label('O_loop')
    P(f'''s_mul_i32 {sO}, {sSEG}, {XBUF}
    s_mul_i32 {sT0}, {sW}, 320
    s_add_u32 {sT1}, {sO}, {sT0}
    s_add_u32 {sT1}, {sT1}, {WS_OA}
    s_cmp_eq_u32 {sW}, 3
    s_cselect_b32 {sT2}, {WS_SIZE}, {sT1}''')
    for k in range(5): P(f'buffer_load_dwordx4 {vr(DAT + 128 + 4 * k, 4)}, v{OUT}, {SWS}, {sT1 if k < 3 else sT2} offen offset:{64 * k} sc1')
    P(f's_lshl_b32 {sT1}, {sSEG}, 7\ns_add_u32 {sT1}, {sT1}, {WS_G}\nbuffer_load_dword v{OAA}, v{GA}, {SWS}, {sT1} offen sc1')
    def mm(acc, k, first):
        for t in range(2):
            kind, r = oreg(2 * k + t)
            P(f'{MF} {vr(acc + 4 * t, 4)}, {vr(r, 4, kind)}, {vr(DAT + 4 * k, 4)}, {"0" if first else vr(acc + 4 * t, 4)}')
    for k in range(32, 37): mm(ACA, k, k == 32)
    for r in range(8): P(f'v_mul_f32 v{ACA + r}, v{OAA}, v{ACA + r}')
    P(f'''v_sub_f32 v{OAA}, 1.0, v{OAA}
    v_cvt_pk_bf16_f32 v{OAA}, v{OAA}, v{OAA}
    v_lshlrev_b32 v{OAA}, 16, v{OAA}
    s_add_u32 {sU3}, {sSEG}, 3
    s_lshl_b32 {sT1}, {sSEG}, 18
    s_lshl_b32 {sT0}, {sW}, 16
    s_add_u32 {sT1}, {sT1}, {sT0}
    s_add_u32 {sB0}, {sT1}, {WS_O}''')
    poll(P, 'O_b', SWS, WD1, sN, f'v_cmp_gt_u32 vcc, {sU3}, v{T0}', -1, 1)
    for k in range(32):
        P(f'buffer_load_dwordx4 {vr(DAT + 4 * k, 4)}, v{OB}, {SWS}, {sB0} offen offset:{2048 * (k % 2)} sc1')
        if k % 2: P(f's_add_u32 {sB0}, {sB0}, 4096')
    for k in range(32): mm(ACB, k, k == 0)
    for r in range(8): P(f'v_fmac_f32 v{ACA + r}, v{OAA}, v{ACB + r}')
    P(f'''ds_write_b128 v{RO}, {vr(ACA, 4)}
    ds_write_b128 v{RO}, {vr(ACA + 4, 4)} offset:1024
    s_lshl_b32 {sT0}, {sSL}, 6
    s_add_u32 {sO}, {sO}, {sT0}
    s_mov_b32 {sSEG}, {sU3}
    s_waitcnt lgkmcnt(0)
    s_barrier
    s_cmp_eq_u32 {sW}, 0
    s_cbranch_scc0 O_next''')
    for i in range(6): P(f'ds_read_b128 {vr(DAT + 4 * i, 4)}, v{A2} offset:{2048 + 1024 * i}')
    for i in range(6):
        for r in range(4): P(f'v_add_f32 v{ACA + 4 * (i % 2) + r}, v{ACA + 4 * (i % 2) + r}, v{DAT + 4 * i + r}')
    for r in range(4): P(cvt(ACB + r, ACA + 2 * r, ACA + 2 * r + 1))
    P(f'buffer_store_dwordx4 {vr(ACB, 4)}, v{OUT}, {SOUT}, {sO} offen\ns_nop 1')
    P.label('O_next')
    P(f's_cmp_lt_u32 {sSEG}, {NSEG}\ns_cbranch_scc1 O_loop')

def worker(P):
    common(P)
    phase_kv(P)
    P.stamp(2)
    P(f's_cmp_lt_u32 {sJ}, 96\ns_cbranch_scc0 W_a')
    phase_attn(P)
    P.label('W_a')
    phase_a(P)
    P.stamp(4)
    P(f's_cmp_lt_u32 {sJ}, 204\ns_cbranch_scc0 L_exit')
    phase_out(P)
```

```python
from asmgen import *
from layout import *

QA, QB, QC, QD, QE = 0, 4, 8, 12, 16
ACQ, ACK, ACV, KX, VX, QOP, ONES, VM = 20, 28, 36, 44, 52, 60, 68, 72
IDX, A1, A2, R1, R2, R3 = 74, 75, 76, 77, 78, 79
A3, A5, A5X, TT = ONES, ONES + 1, ONES + 2, ONES + 3
sW, sH, sT0, sT1, sT2, sT3 = 's52', 's53', 's54', 's55', 's56', 's57'
sKV, sKV2, sPR, sPRX, sMW, sMWX, sMR, sM8, sSTEP, sSPIN, sEXP, sCB, sPF, sFLG, sTAG = ['s%d' % i for i in range(58, 73)]
sPW = ['s73', 's74', 's75', 's76', 's77']
sMODE, sXM = 's3', 's82'
L_ROW, PITCH = 0, 576
L_MEM = 8 * PITCH
L_O = L_MEM + 4096
L_TAB = L_MEM + 9216
L_SEL = L_TAB + 1024
L_SCR = L_SEL + 1024
L_W = 16384
SM = 'v_smfmac_f32_16x16x64_bf16'
MF = 'v_mfma_f32_16x16x32_bf16'
MF16 = 'v_mfma_f32_16x16x16_bf16'

blocks_lds = [('q', 0), ('k', 0), ('k', 2), ('k', 8), ('k', 4), ('x',), ('d', 1, 1), ('d', 2, 1), ('d', 3, 1)]
blocks_reg = [b for b in [(m, t) for m in 'qkv' for t in range(9)] + [('d', d, b) for d in range(4) for b in (0, 1)] if b not in blocks_lds]
def block_ops(b):
    if b[0] in 'qkv': return [(b[0], b[1], 0), (b[0], b[1], 1)]
    if b[0] == 'x': return [('x', c) for c in range(4)]
    return [('d', b[1], 2 * b[2]), ('d', b[1], 2 * b[2] + 1)]
HOME = {}
_free = [('v', 80 + 8 * i) for i in range(22)] + [('a', 8 * i) for i in range(32)]
for b in blocks_reg:
    for o in block_ops(b): HOME[o] = _free.pop(0)
assert not _free
for j, b in enumerate(blocks_lds):
    for x, o in enumerate(block_ops(b)): HOME[o] = ('lds', j, x)

def lds_fetch(o, dst, w):
    _, j, x = HOME[o]
    off = L_W + j * 16384 + (w * 4096 if o[0] != 'x' else (w - 2) * 8192) + x * 2048
    if off < 0x10000: base = A2
    elif off < 0x18000: base = A1; off -= 0x10000
    else: base = A1; off -= 0x18000
    return [f'ds_read_b128 {vr(dst, 4)}, v{base} offset:{off}', f'ds_read_b128 {vr(dst + 4, 4)}, v{base} offset:{off + 1024}']

def prologue(P):
    P.c('---- chain prologue: per-lane constants')
    L, N, G, T0, T1, T2, T3 = 0, 1, 2, 3, 4, 5, 6
    DQ, DX, DD, RQ0, RQ1, RX0, RD, RA, RB = 8, 9, 10, 11, 12, 13, 14, 15, 16
    P(f'''v_and_b32 v{L}, 63, v0
    v_and_b32 v{N}, 15, v{L}
    v_lshrrev_b32 v{G}, 4, v{L}''')
    P(f'''v_and_b32 v{T0}, 1, v{G}
    s_lshl_b32 {sT0}, {sW}, 1
    v_add_u32 v{T0}, {sT0}, v{T0}
    v_lshlrev_b32 v{T0}, 1, v{T0}
    v_xor_b32 v{T0}, v{T0}, v{N}
    v_lshlrev_b32 v{T0}, 4, v{T0}
    v_lshl_add_u32 v{DQ}, v{G}, 13, v{T0}''')
    blocks = (getattr(P, 'border', None) or (lambda b: b))(blocks_reg) + blocks_lds
    sHQ, sHO, sM = 's78', 's79', sT3
    P(f'''s_lshl_b32 {sHQ}, {sH}, 8
    s_lshl_b32 {sT0}, {sW}, 15
    s_add_u32 {sHQ}, {sHQ}, {sT0}
    s_mul_i32 {sHO}, {sH}, 147456
    s_lshl_b32 {sM}, {sW}, 10
    s_add_u32 {sM}, {sM}, {L_W}''')
    def dma(j):
        b = blocks[j]; slot = j % 9
        for y in range(4):
            if b[0] in 'qkv':
                srd, va, base, off = {'q': SWQ, 'k': SWK, 'v': SWV}[b[0]], DQ, sHQ, (64 * b[1] + 16 * y) * 8192
            elif b[0] == 'x':
                srd, va, base, off = SWO, DX, sHO, 32 * y * 1152 + 1024
            else:
                srd, va, base, off = SWO, DD, sHO, (64 * b[2] + 8 * (y & 1) + 32 * (y >> 1)) * 1152 + 256 * b[1]
            P(f'''s_add_u32 m0, {sM}, {slot * 16384 + y * 4096}
            s_add_u32 {sT0}, {base}, {off}
            buffer_load_dwordx4 v{va}, {srd}, {sT0} offen {P.wfl} lds''')
    marks = {}
    cnt = [0]
    def note(n): cnt[0] += n
    if getattr(P, 'plog', False): P(f's_memrealtime s[86:87]\ns_waitcnt lgkmcnt(0)\nv_writelane_b32 v34, s86, 0')
    if P.entry_extra: note(P.entry_extra())
    WIN = P.win
    for j in range(WIN):
        dma(j); note(4); marks[j] = cnt[0]
        if j == 0 and P.tlb:
            P.c('each member looks up a different page once, so the die\'s shared TLB fills in parallel (speed only)')
            P(f's_and_b32 {sT1}, {sH}, 7\ns_lshl_b32 {sT1}, {sT1}, 20\ns_lshr_b32 {sT2}, {sH}, 3\ns_cmp_eq_u32 {sW}, 3\ns_cselect_b32 {sT2}, {sT2}, 9\nv_mov_b32 v7, 0\ns_mov_b64 exec, 1')
            for m, srd in enumerate((SWQ, SWK, SWV, SWO)):
                P(f's_cmp_eq_u32 {sT2}, {m}\ns_cselect_b32 {sT0}, {sT1}, {WS_SIZE}\nbuffer_load_dword v36, v7, {srd}, {sT0} offen', nowait=True)
            P(f's_lshl_b32 {sT2}, {sT2}, 21\ns_cmp_eq_u32 {sT1}, {7 << 20}\ns_cselect_b32 {sT0}, {sT2}, {WS_SIZE}\ns_cmp_eq_u32 {sW}, 3\ns_cselect_b32 {sT0}, {sT0}, {WS_SIZE}')
            P(f'buffer_load_dword v36, v7, {SWS}, {sT0} offen offset:{PART_DEST - 128} sc1\ns_mov_b64 exec, -1', nowait=True)
    P(f'''v_lshlrev_b32 v{A2}, 4, v{L}
    v_add_u32 v{A1}, 0x10000, v{A2}
    ; i(n) = 2*(n>>2) + (n&1), half = (n>>1)&1
    v_lshrrev_b32 v{T0}, 2, v{N}
    v_and_b32 v{T1}, 1, v{N}
    v_lshl_add_u32 v{T0}, v{T0}, 1, v{T1}
    v_bfe_u32 v{T1}, v{N}, 1, 1
    v_mul_u32_u24 v{IDX}, 0xaaaa, v{T1}
    v_add_u32 v{IDX}, 0x4444, v{IDX}
    v_mul_u32_u24 v{T2}, {PITCH}, v{T0}
    v_add_u32 v{T2}, {L_ROW}, v{T2}
    v_lshl_add_u32 v{R2}, v{G}, 4, v{T2}
    v_lshl_add_u32 v{R1}, v{G}, 5, v{T2}
    v_lshl_add_u32 v{R1}, v{T1}, 4, v{R1}
    v_mul_u32_u24 v{RA}, 1152, v{T0}
    v_lshl_add_u32 v{RA}, v{G}, 5, v{RA}
    v_lshl_add_u32 v{RA}, v{T1}, 4, v{RA}
    s_lshl_b32 {sT0}, {sW}, 8
    buffer_load_dwordx4 v[20:23], v{RA}, {SMEM0}, {sT0} offen
    buffer_load_dwordx4 v[24:27], v{RA}, {SMEM0}, {sT0} offen offset:128
    buffer_load_dwordx4 v[28:31], v{RA}, {SMEM0}, 0 offen offset:1024''')
    P(f'''; R3
    v_mul_u32_u24 v{R3}, {2 * PITCH}, v{G}
    v_lshl_add_u32 v{R3}, v{N}, 2, v{R3}
    s_lshl_b32 {sT0}, {sW}, 6
    s_add_u32 {sT0}, {sT0}, {L_ROW}
    v_add_u32 v{R3}, {sT0}, v{R3}
    v_lshrrev_b32 v{T2}, 3, v{L}
    v_mul_u32_u24 v{A3}, {PART_DEST}, v{T2}
    v_and_b32 v{T2}, 7, v{L}
    v_lshl_add_u32 v{A3}, v{T2}, 3, v{A3}
    v_and_b32 v{T2}, 1, v{G}
    v_lshlrev_b32 v{T2}, 4, v{T2}
    v_lshl_add_u32 v{T2}, v{N}, 2, v{T2}
    v_mov_b32 v{T3}, 0x40000000
    v_cmp_lt_u32 vcc, 3, v{N}
    v_cndmask_b32 v{T2}, v{T2}, v{T3}, vcc
    v_lshrrev_b32 v{T3}, 1, v{G}
    v_lshl_add_u32 v{A5}, v{T3}, 10, v{T2}
    v_lshl_add_u32 v{A5X}, v{T3}, 8, v{T2}
    v_mov_b32 v{TT}, -1
    ds_write_b128 v{A2}, {vr(ONES, 4)} offset:{L_TAB}
    v_and_b32 v{T2}, 3, v{N}
    v_lshrrev_b32 v{T3}, 2, v{N}
    v_lshl_add_u32 v{T2}, v{T2}, 2, v{T3}
    v_and_b32 v{T3}, 1, v{T2}
    v_lshlrev_b32 v{T3}, 4, v{T3}
    v_mov_b32 v7, 0x3f80
    v_lshlrev_b32 v{T3}, v{T3}, v7
    v_lshrrev_b32 v{T2}, 1, v{T2}''')
    for q in range(4):
        P(f'v_cmp_eq_u32 vcc, {q}, v{T2}\nv_cndmask_b32 v{40 + q}, 0, v{T3}, vcc')
    P(f'ds_write_b128 v{A2}, v[40:43] offset:{L_SEL}')
    P.c('DMA source offsets')
    P(f'''s_and_b32 {sT0}, {sW}, 1
    s_lshr_b32 {sT1}, {sW}, 1
    v_lshrrev_b32 v{T0}, 3, v{L}
    v_and_b32 v{T1}, 1, v{T0}
    v_lshlrev_b32 v{T1}, 4, v{T1}
    v_and_b32 v{T2}, 6, v{T0}
    v_add_u32 v{T1}, v{T1}, v{T2}
    s_lshl_b32 {sT2}, {sT1}, 3
    s_add_u32 {sT2}, {sT2}, {sT0}
    v_add_u32 v{T1}, {sT2}, v{T1}
    v_mul_u32_u24 v{T1}, 1152, v{T1}
    v_and_b32 v{T2}, 2, v{T0}
    v_lshlrev_b32 v{T2}, 1, v{T2}
    v_and_b32 v{T3}, 7, v{L}
    v_xor_b32 v{T3}, v{T3}, v{T2}
    v_lshl_add_u32 v{DX}, v{T3}, 4, v{T1}
    v_and_b32 v{T1}, 1, v{G}
    v_lshlrev_b32 v{T1}, 4, v{T1}
    v_and_b32 v{T2}, 2, v{G}
    v_add_u32 v{T1}, v{T1}, v{T2}
    s_lshl_b32 {sT2}, {sT1}, 2
    s_add_u32 {sT2}, {sT2}, {sT0}
    v_add_u32 v{T1}, {sT2}, v{T1}
    v_mul_u32_u24 v{T1}, 1152, v{T1}
    v_lshlrev_b32 v{T3}, 1, v{G}
    v_xor_b32 v{T3}, v{T3}, v{N}
    v_lshl_add_u32 v{DD}, v{T3}, 4, v{T1}''')
    P.c('transposing-read addresses; r = n>>2, c = n&3')
    B0, B1, G0, G1, C = 17, 18, 19, 72, 73
    P(f'''v_bfe_u32 v{B0}, v{N}, 2, 1
    v_bfe_u32 v{B1}, v{N}, 3, 1
    v_and_b32 v{G0}, 1, v{G}
    v_lshrrev_b32 v{G1}, 1, v{G}
    v_and_b32 v{C}, 3, v{N}
    v_lshl_add_u32 v{T0}, v{G0}, 1, v{B0}
    v_lshl_add_u32 v{T3}, v{B1}, 2, v{T0}
    ; qkv: row = 16*g1 + 4*g0 + b0 + 8*b1 ; byte = (64w + 8c) ^ (32*rho3)
    v_lshl_add_u32 v{T1}, v{G1}, 4, v{B0}
    v_lshl_add_u32 v{T1}, v{G0}, 2, v{T1}
    v_lshl_add_u32 v{T1}, v{B1}, 3, v{T1}
    v_lshlrev_b32 v{T1}, 8, v{T1}
    s_lshl_b32 {sT0}, {sW}, 6
    v_lshl_add_u32 v{T2}, v{C}, 3, {sT0}
    v_lshlrev_b32 v7, 5, v{T3}
    v_xor_b32 v{T2}, v{T2}, v7
    v_add_u32 v{RQ0}, v{T1}, v{T2}
    v_xor_b32 v{RQ1}, 32, v{RQ0}
    ; x: (rho2 + 4*g1)*128 + ((2*(w&1) + b1) ^ (2*g0))*32 + 8c
    v_lshl_add_u32 v{T1}, v{G1}, 2, v{T0}
    v_lshlrev_b32 v{T1}, 7, v{T1}
    v_lshl_add_u32 v{T1}, v{C}, 3, v{T1}
    s_and_b32 {sT0}, {sW}, 1
    v_xor_b32 v7, {sT0}, v{G0}
    v_lshl_add_u32 v7, v7, 1, v{B1}
    v_lshl_add_u32 v{RX0}, v7, 5, v{T1}
    v_lshlrev_b32 v{T1}, 11, v{G1}
    v_lshl_add_u32 v{T1}, v{C}, 3, v{T1}
    v_lshl_add_u32 v{T2}, v{T0}, 8, v{T1}
    v_lshl_add_u32 v7, v{B1}, 2, {sW}
    v_xor_b32 v7, v7, v{T0}
    v_lshl_add_u32 v{RD}, v7, 5, v{T2}''')
    P.c('scalar bases')
    P(f'''s_lshl_b32 {sT0}, {sH}, 14
    s_lshl_b32 {sT1}, {sW}, 11
    s_add_u32 {sT0}, {sT0}, {WS_KVX}
    s_add_u32 {sKV}, {sT0}, {sT1}
    s_add_u32 {sKV2}, {sKV}, 8192
    s_lshl_b32 {sT1}, {sW}, 12
    s_add_u32 {sPF}, {sT0}, {sT1}
    s_add_u32 {sPF}, {sPF}, {SEG_STRIDE}
    s_lshl_b32 {sT0}, {sH}, 12
    s_lshl_b32 {sT1}, {sW}, 10
    s_add_u32 {sT0}, {sT0}, {sT1}
    s_add_u32 {sEXP}, {sT0}, {WS_KVM - SEG_STRIDE}
    s_lshl_b32 {sT0}, {sH}, 7
    s_add_u32 {sFLG}, {sT0}, {WS_FLAG}
    s_lshl_b32 {sT0}, {sH}, 6
    s_mul_i32 {sT1}, {sW}, {8 * PART_DEST}
    s_add_u32 {sT1}, {sT0}, {sT1}
    s_add_u32 {sPW[0]}, {sT1}, {WS_PART}
    s_add_u32 {sPW[1]}, {sT1}, {WS_PART + PART_CHUNK}
    s_add_u32 {sPW[2]}, {sT1}, {WS_PART + 2 * PART_CHUNK}
    s_add_u32 {sPW[3]}, {sT1}, {WS_PART + 3 * PART_CHUNK}
    s_and_b32 {sT2}, {sW}, 1
    s_mul_i32 {sT1}, {sT2}, {8 * PART_DEST}
    s_add_u32 {sT1}, {sT0}, {sT1}
    s_add_u32 {sPW[4]}, {sT1}, {WS_PART + 4 * PART_CHUNK}
    s_mul_i32 {sT0}, {sW}, {PART_CHUNK}
    s_mul_i32 {sT1}, {sH}, {PART_DEST}
    s_add_u32 {sT0}, {sT0}, {sT1}
    s_add_u32 {sPR}, {sT0}, {WS_PART}
    s_and_b32 {sT2}, {sH}, 15
    s_mul_i32 {sT1}, {sT2}, {PART_DEST}
    s_add_u32 {sPRX}, {sT1}, {WS_PART + 4 * PART_CHUNK}
    s_lshl_b32 {sT0}, {sW}, 11
    s_add_u32 {sMR}, {sT0}, {WS_MEM}
    s_mov_b32 {sM8}, {WS_MEM + 8192}
    s_lshl_b32 {sT1}, {sH}, 5
    s_add_u32 {sT0}, {sT0}, {sT1}
    s_add_u32 {sMW}, {sT0}, {WS_MEM + MEM_SLOT}
    s_lshr_b32 {sT0}, {sT2}, 3
    s_lshl_b32 {sT0}, {sT0}, 9
    s_and_b32 {sT1}, {sT2}, 7
    s_lshl_b32 {sT1}, {sT1}, 5
    s_add_u32 {sT0}, {sT0}, {sT1}
    s_add_u32 {sMWX}, {sT0}, {WS_MEM + MEM_SLOT + 8192}
    s_mov_b32 {sSTEP}, 0
    s_mov_b32 {sSPIN}, 0
    s_mov_b32 {sTAG}, 0
    s_mov_b32 {sCB}, {f32bits(CB)}''')
    TMP = [36, 52]
    pend = None
    for j, b in enumerate(blocks):
        P(f's_waitcnt vmcnt({cnt[0] - marks[j]}) lgkmcnt(0)')
        P('s_barrier')
        if getattr(P, 'plog', False):
            P(f's_memrealtime s[86:87]\ns_waitcnt lgkmcnt(0)\nv_writelane_b32 v34, s86, {j + 1}')
        if pend: pend(); pend = None
        if j + WIN < 36:
            dma(j + WIN); note(4); marks[j + WIN] = cnt[0]
        if P.cpf and j in (8, 14, 20):
            P.c('keep the code ahead in L2 while the weights stream through it')
            P(f's_getpc_b64 s[80:81]\nv_lshlrev_b32 v7, 2, v{A2}\nglobal_load_dword v35, v7, s[80:81] offset:1024', nowait=True); note(1)
        if j == P.verj and not P.standalone: verify(P, 'C_ver', min(63, cnt[0]), 16320)
        if j == P.armj:
            P.c('arm this wave\'s partial-sum inbox, the ring slots (heads 0 and 1 do that) and the progress word; all written through')
            P(f"""v_mov_b32 v4, -1
            v_mov_b32 v5, -1
            v_mov_b64 v[6:7], v[4:5]
            v_mov_b32 v3, 0
            s_lshl_b32 {sT2}, {sH}, 14
            s_xor_b32 {sT0}, {sMR}, {sT2}
            s_xor_b32 {sT1}, {sM8}, {sT2}
            s_cmp_lt_u32 {sH}, 2
            s_cselect_b32 {sT0}, {sT0}, {WS_SIZE}
            s_cselect_b32 {sT1}, {sT1}, {WS_SIZE}
            s_lshr_b32 {sT2}, {sH}, 4
            s_or_b32 {sT2}, {sT2}, {sW}
            s_cmp_eq_u32 {sT2}, 0
            s_cselect_b32 {sT2}, {sPRX}, {WS_SIZE}""")
            for sb_, o in ((sPR, 0), (sPR, 1024), (sT2, 0), (sT2, 1024), (sT0, 0), (sT0, 1024), (sT1, 0)):
                P(f'buffer_store_dwordx4 v[4:7], v{A2}, {SWS}, {sb_} offen offset:{o} sc1')
            P(f's_mov_b64 exec, 1\nbuffer_store_dword v3, v3, {SWS}, {sFLG} offen sc1\ns_mov_b64 exec, -1')
            P.c('mem0 goes straight into the staging space')
            for r in range(20, 32): P(f'v_min_u32 v{r}, -2, v{r}')
            P(f's_lshl_b32 {sT0}, {sW}, 11\nv_add_u32 v3, {sT0}, v{A2}')
            P(f'ds_write_b128 v3, v[20:23] offset:{L_MEM}\nds_write_b128 v3, v[24:27] offset:{L_MEM + 1024}\nds_write_b128 v{A2}, v[28:31] offset:{L_MEM + 8192}')
        if j == P.armj + 9:
            P.c('every wave has waited for those stores (before this iteration\'s barrier)')
            P(f's_cmp_eq_u32 {sW}, 0\ns_cselect_b32 {sT0}, {DB_ARMED}, 0x1000\nv_mov_b32 v32, 1\nv_mov_b32 v7, 0')
            P(f's_mov_b64 exec, 1\nbuffer_atomic_add v32, v7, {SDBG}, {sT0} offen\ns_mov_b64 exec, -1'); note(1)
        if j == P.tchj:
            P.c('bring the ring slots, and the loop code, into L2 (speed only)')
            P(f'v_lshlrev_b32 v7, 3, v{A2}\ns_lshl_b32 {sT0}, {sW}, 13\ns_add_u32 {sT0}, {sT0}, {WS_MEM}')
            P(f's_bitcmp1_b32 {sW}, 0\ns_cselect_b64 exec, 0xff, -1\nbuffer_load_dword v35, v7, {SWS}, {sT0} offen sc1\ns_mov_b64 exec, -1', nowait=True)
            for s in P.tch:
                P(f'v_lshlrev_b32 v7, 1, v{A2}\nbuffer_load_dword v35, v7, {SWS}, {dict(p=sPR, x=sPRX, k=sKV, v=sKV2)[s]} offen sc1', nowait=True); note(1)
            if P.cpf:
                P(f's_getpc_b64 s[80:81]')
                P.label('C_pc', keep=True)
                P(f's_mov_b32 {sT1}, (L_w0 - C_pc)')
                for m in range(1, 4): P(f's_cmp_eq_u32 {sW}, {m}\ns_cselect_b32 {sT1}, (L_w{m} - C_pc), {sT1}')
                P(f'v_lshl_add_u32 v7, v{A2}, 3, {sT1}\nglobal_load_dword v35, v7, s[80:81]', nowait=True); note(1)
        if j == P.statj and not P.standalone:
            P(f's_lshl_b32 {sT0}, {sH}, 2\ns_add_u32 {sT0}, {sT0}, {DB_P1}\nv_lshrrev_b32 v20, 2, v{A2}\nv_writelane_b32 v20, {sT0}, 16')
            P(f'buffer_load_dword v21, v20, {SDBG}, 0 offen sc1'); note(1)
        sb = L_W + (j % 9) * 16384
        if b[0] in 'qkv':
            P(f'v_add_u32 v{RA}, {sb}, v{RQ0}\nv_add_u32 v{RB}, {sb}, v{RQ1}')
        else:
            P(f'v_add_u32 v{RA}, {sb}, v{RX0 if b[0] == "x" else RD}')
        if b[0] == 'x': P('s_waitcnt lgkmcnt(0)')
        acts = []
        for x, o in enumerate(block_ops(b)):
            hm = HOME[o]
            k, r = hm if hm[0] in 'va' else ('v', (TMP[j % 2] if b[0] != 'x' else 36) + 8 * x)
            for q in (0, 2, 4, 6):
                if b[0] in 'qkv': ad, off = (RA, RB)[x], (32 * (q // 4) + 2 * ((q % 4) // 2)) * 256
                elif b[0] == 'x': ad, off = RA, ((q % 4) // 2 + 2 * (q // 4) + 4 * x) * 1024
                else: ad, off = RA, ((q % 4) // 2 + 4 * (q // 4) + 8 * x) * 1024
                P(f'ds_read_b64_tr_b16 {vr(r + q, 2, k)}, v{ad} offset:{off}')
            if hm[0] == 'lds': acts.append((x, r))
        if acts:
            def mk(acts=acts, sb=sb, b=b):
                if b[0] == 'x': P(f's_and_b32 {sT0}, {sW}, 1\ns_lshl_b32 {sT0}, {sT0}, 13')
                else: P(f's_lshl_b32 {sT0}, {sW}, 12')
                P(f's_add_u32 {sT0}, {sT0}, {sb}\nv_add_u32 v7, {sT0}, v{A2}')
                for x, r in acts:
                    for hf in range(2): P(f'ds_write_b128 v7, {vr(r + 4 * hf, 4)} offset:{x * 2048 + hf * 1024}')
            pend = mk
    P('s_waitcnt vmcnt(0) lgkmcnt(0)\ns_barrier')
    pend()
    P('s_waitcnt lgkmcnt(0)')
    if getattr(P, 'plog', False):
        P(f's_lshl_b32 {sT0}, {sH}, 10\ns_add_u32 {sT0}, {sT0}, {WS_STAMP + 0x50000}\nbuffer_store_dword v34, v{A2}, {SWS}, {sT0} offen\ns_waitcnt vmcnt(0)')

def ready(P):
    P.c('go once all 32 members are armed and the first k_x / v_x segments of this head are complete;')
    P.c('plain stores are enough only if all 32 slots were claimed on die 0, otherwise write through')
    P('s_branch C_rd1')
    P.label('C_rd0')
    P(f's_sleep 2\nbuffer_load_dword v21, v20, {SDBG}, 0 offen sc1\ns_waitcnt vmcnt(0)')
    P.label('C_rd1')
    P(f"""s_mov_b32 {sMODE}, 1
    s_add_u32 {sSPIN}, {sSPIN}, 1
    s_cmp_ge_u32 {sSPIN}, {SPIN_MAX}
    s_cbranch_scc1 C_rd2
    v_readlane_b32 {sT0}, v21, {DB_ARMED // 4}
    v_readlane_b32 {sT1}, v21, 16
    v_readlane_b32 {sT2}, v21, 0
    s_cmp_lt_u32 {sT0}, 32
    s_cbranch_scc1 C_rd0
    s_and_b32 {sT1}, {sT1}, 0xff
    s_cmp_lt_u32 {sT1}, 7
    s_cbranch_scc1 C_rd0
    s_cmp_eq_u32 {sT2}, -1
    s_cselect_b32 {sMODE}, 0, 1""")
    P.label('C_rd2')

def is_valu(s): return s.startswith('v_')

def step_loop(P, w, tag, opt=(), T=None):
    T = T or {}
    stf = P.stf
    heavy = w >= 2
    DIAG = 's_add_u32 s84, s84, 1' if 'diag' in opt else ''
    Lb = lambda s: f'C{tag}{w}_{s}'
    DPP = lambda p: f'{p} row_mask:0xf bank_mask:0xf'
    def mark(name):
        if 'marks' in opt and name in T.get('marks', ()):
            k = T['marks'].index(name)
            P.raw(f'  s_memtime s[{16 + 2 * k}:{17 + 2 * k}]   ; {name}')
    def run(mf, side, pre):
        for i, m in enumerate(mf):
            P(m)
            mark(f'{pre}{i}')
            waited = False
            for s in side.get(i, []):
                if callable(s): s(); continue
                if is_valu(s) and not waited and i + 1 < len(mf):
                    P.prewait(mf[i + 1]); waited = True
                P(s)
    def addside(side, i, *ins):
        cur = side.get(i, []) + list(ins)
        side[i] = [s for s in cur if callable(s) or not is_valu(s)] + [s for s in cur if not callable(s) and is_valu(s)]
    def dly(n):
        while n > 0:
            P(f's_nop {min(n, 16) - 1}'); n -= 16
    bufs = {('q', 0, 0): QOP, ('q', 0, 1): KX}
    for t in (0, 2, 8, 4): bufs[('k', t, 0)] = ACV; bufs[('k', t, 1)] = QOP
    bufs.update({('d', 1, 2): KX, ('d', 1, 3): QOP, ('d', 2, 2): VX, ('d', 2, 3): ACV, ('d', 3, 2): KX, ('d', 3, 3): QOP,
                 ('x', 0): KX, ('x', 1): QOP, ('x', 2): VX, ('x', 3): ACV})
    def bsrc(o, buf=None):
        hm = HOME[o]
        return vr(hm[1], 8, hm[0]) if hm[0] in 'va' else vr(buf or bufs[o], 8)
    F = lambda o: lds_fetch(o, bufs[o], w)
    AQ = [QA, QB, QC, QD, QB, QE, QD, QC, QA]
    rdA = lambda t: f'ds_read_b128 {vr(AQ[t], 4)}, v{A2} offset:{L_MEM + 1024 * t}'
    ACC = {'q': ACQ, 'k': ACK, 'v': ACV}
    def sm(s, buf=None):
        m, t, x = s[0], int(s[1]), 'ab'.index(s[2])
        return f'{SM} {vr(ACC[m] + 4 * x, 4)}, {vr(AQ[t], 4)}, {bsrc((m, t, x), buf)}, v{IDX}'
    add = lambda d, a: f'v_add_f32 v{d}, v{d}, v{a}'
    cvt = lambda d, a, b: f'v_cvt_pk_bf16_f32 v{d}, v{a}, v{b}'
    z2 = lambda d: f'v_mov_b64 {vr(d, 2)}, 0'
    flip = f'v_xor_b32 v{A1}, 0x8000, v{A1}'
    BAR = [P.wait_writes, 's_barrier']
    quad = lambda r: set(('v', r + j) for j in range(4))
    retry = []
    CK, CK2 = VM, VM + 1
    def maxtree(regs):
        out = [f'v_max3_u32 v{CK}, v{regs[0]}, v{regs[1]}, v{regs[2]}']
        for j in range(3, len(regs) - 1, 2): out.append(f'v_max3_u32 v{CK}, v{CK}, v{regs[j]}, v{regs[j + 1]}')
        return out + [f'v_max_u32 v{CK}, v{CK}, v{regs[-1]}']
    tight = w in T.get('tight', (0, 1))
    DMA = ('d', 0)
    def dma():
        for q in range(2):
            P(f'buffer_load_dwordx4 v{A2}, {SWS}, {sMR} offen offset:{1024 * q} sc1 lds')
            P.vm[-1] = {DMA}
    def dma_wait():
        k = max(j for j, x in enumerate(P.vm) if DMA in x)
        P(f's_waitcnt vmcnt({len(P.vm) - 1 - k})')
    def hop2_entry(arm, fill):
        if not tight:
            P(f's_mov_b32 m0, {L_MEM + 2048 * w}')
            for x in arm: P(x)
            P(f's_waitcnt vmcnt({2 * len(arm)})')
            for x in fill: P(x, nowait=True)
            return
        HD = [(VX, sMR, 0, 2 * w), (VX + 4, sMR, 1024, 2 * w + 1)] + ([(QD, sM8, 0, 8)] if w == 0 else [])
        nl = len(HD)
        ld = [f'buffer_load_dwordx4 {vr(r, 4)}, v{A2}, {SWS}, {sb} offen offset:{o} sc1' for r, sb, o, t in HD]
        wr = [f'ds_write_b128 v{A2}, {vr(r, 4)} offset:{L_MEM + 1024 * t}' for r, sb, o, t in HD]
        ck = maxtree([h[0] + j for h in HD for j in range(4)]) + [f'v_cmp_eq_u32 vcc, -1, v{CK}']
        n2, gap = T.get('n2', (3, 3, 3, 3))[w], T.get('gap2', 18)
        for j in range(n2):
            for x in ld: P(x, nowait=True)
            if j == 0: mark('h2i')
            if j == n2 - 1:
                P(f's_waitcnt vmcnt({len(arm) + nl * n2})')
                for x in fill: P(x, nowait=True)
            else: dly(gap)
        P(f's_waitcnt vmcnt({nl * (n2 - 1)})')
        wf = T.get('wfirst', 1)
        for x in ck[:-1] + (wr if wf else []) + ck[-1:]: P(x, nowait=True)
        P(f's_cbranch_vccnz {Lb("h2r")}')
        if not wf:
            P.label(Lb('h2ok'), keep=True)
            for x in wr: P(x, nowait=True)
        P.label(Lb('h2w'), keep=True)
        mark('h2w')
        for x in arm: P(x)
        def r2():
            nr = T.get('nr', 3)
            P.label(Lb('h2r'))
            for j in range(nr - n2):
                P('s_mov_b64 exec, vcc')
                for x in ld: P(x, nowait=True)
                P('s_mov_b64 exec, -1')
                if n2 - 2 - j >= 0:
                    P(f's_waitcnt vmcnt({nl * (n2 - 1)})')
                    for x in ck: P(x, nowait=True)
                    P(f's_cbranch_vccz {Lb("h2ok")}')
                    P('s_mov_b64 exec, vcc')
                    for x in ld: P(x, nowait=True)
                    P('s_mov_b64 exec, -1')
                dly(gap)
            P.label(Lb('h2s'))
            for j in range(4):
                P('s_mov_b64 exec, vcc')
                for x in ld: P(x, nowait=True)
                P(f's_mov_b64 exec, -1\ns_add_u32 {sSPIN}, {sSPIN}, 1\ns_waitcnt vmcnt({nl * (max(nr, n2) - 1)})')
                for x in ck: P(x, nowait=True)
                P(f's_cbranch_vccz {Lb("h2ok")}')
            P(f's_cmp_lt_u32 {sSPIN}, {SPIN_MAX}\ns_cbranch_scc1 {Lb("h2s")}')
            if wf:
                P.label(Lb('h2ok'))
                for x in wr: P(x, nowait=True)
                P(f's_branch {Lb("h2w")}')
            else: P(f's_branch {Lb("h2ok")}')
        retry.append(r2)

    P.c(f'---- chain wave {w}')
    for r in range(0, 16, 2): P(z2(ACQ + r))
    P(f's_mov_b32 m0, {L_SCR}\nv_lshlrev_b32 v{VM + 1}, 2, v{A2}\nv_mov_b32 v{VM}, 0')
    for x in F(('q', 0, 0)) + F(('q', 0, 1)) + F(('k', 0, 0)) + [rdA(0), rdA(1)]: P(x)
    P(f's_branch {Lb("top2")}')
    P.raw('.p2align 6')
    P.label(Lb('top'), lg=[set()], vm=[quad(QD), set(), set()] if w == 0 else [])
    P.t = 0; P.tm = -999
    P('s_waitcnt lgkmcnt(0)\ns_barrier')
    mark('top')
    P(rdA(0)); P(rdA(1))
    if not tight: dma()
    P.label(Lb('top2'), keep=True)
    seq = 'q0a q0b q1a k0a q1b k1a k1b q2a k0b q2b q3a k2a q3b k3a k3b k2b q8a q8b k8a q4a q4b q5a k8b q5b q6a k4a q7a q6b q7b k4b k5a k6a k7a k5b k6b k7b'.split()
    seq = T.get('seq', 'q0a q0b q1a k0a q1b k1a k1b k0b q2a q2b k2a q3a q3b k2b k3a k3b q8a k8a q8b k8b q4a q4b q5a q5b k4a q6a q7a q6b q7b k4b k5a k6a k7a k5b k6b k7b').split()
    mf = [sm(s) for s in seq]
    side = {}
    at = {s: i for i, s in enumerate(seq)}
    ds_busy = set()
    def put_ds(i, x):
        while i in ds_busy: i += 1
        ds_busy.add(i); addside(side, i, x)
    bl = T.get('bl', 15)
    if not tight:
        addside(side, bl - 1, dma_wait); addside(side, 1, f's_mov_b32 m0, {L_SCR}')
    if 'nobl' not in opt: addside(side, bl, 's_barrier')
    ds_busy.add(bl)
    last = lambda t: max(i for s, i in at.items() if s[1] == str(t))
    todo = [(at[p], x) for p, o in (('q0a', ('k', 0, 1)), ('k0a', ('k', 2, 0)), ('k0b', ('k', 2, 1)), ('k2a', ('k', 8, 0)), ('k2b', ('k', 8, 1)),
                                    ('k8a', ('k', 4, 0)), ('k8b', ('k', 4, 1))) for x in F(o)]
    todo = [(bl + 1, rdA(4)), (bl + 2, rdA(5))] + todo[:-2] + [(2, rdA(2)), (5, rdA(3)), (last(0), rdA(8)), (bl + 1, rdA(6)), (bl + 1, rdA(7))] + todo[-2:]
    for i, x in todo:
        if 'nostream' in opt and x not in [rdA(t) for t in range(9)]: continue
        put_ds(i, x)
    kx = [f'buffer_load_dwordx4 {vr(KX + 4 * c, 4)}, v{A2}, {SWS}, {sKV} offen offset:{1024 * c} sc1' for c in range(2)]
    vx = [f'buffer_load_dwordx4 {vr(VX + 4 * c, 4)}, v{A2}, {SWS}, {sKV2} offen offset:{1024 * c} sc1' for c in range(2)]
    exp_ = f'buffer_store_dwordx4 {vr(QE, 4)}, v{A2}, {SWS}, {sEXP} offen sc1'
    touch = f'buffer_load_dword v{VM + 1}, {SWS}, {sPF} offen lds'
    for i, s in zip(T.get('vm_at', (2, 4, 6, 8, 9 + 2 * w, 12 if w != 2 else 14)), (kx[0], kx[1], vx[0], vx[1], exp_, touch)):
        if 'noexp' in opt and s is exp_: continue
        if 'notouch' in opt and s is touch: continue
        if 'nokv' in opt and (s in kx or s in vx): continue
        side[i] = [s] + side.get(i, [])
    if w == 1 and 'noexp' not in opt:
        addside(side, 33, 's_mov_b64 exec, 1', f'buffer_store_dword v{VM}, v{A2}, {SWS}, {sFLG} offen sc1', 's_mov_b64 exec, -1')
    addside(side, 18, f'v_mov_b32 v{ONES}, 0x3f803f80'); addside(side, 20, f'v_mov_b32 v{ONES + 1}, 0x3f803f80')
    addside(side, 22, f'v_mov_b64 {vr(ONES + 2, 2)}, {vr(ONES, 2)}')
    for j, i in enumerate((24, 25, 26, 27)): addside(side, i, z2(ACV + 2 * j))
    dw = lambda r, o: f'ds_write_b32 v{R3}, v{r} offset:{o}'
    qv = [add(ACQ, ACQ + 2), add(ACQ + 1, ACQ + 3), add(ACQ + 4, ACQ + 6), cvt(ACQ + 2, ACQ, ACQ + 4), dw(ACQ + 2, 0),
          add(ACQ + 5, ACQ + 7), cvt(ACQ + 3, ACQ + 1, ACQ + 5), dw(ACQ + 3, PITCH)]
    addside(side, 28, qv[0]); addside(side, 29, qv[1]); addside(side, 30, qv[2], qv[3]); addside(side, 31, *qv[4:7])
    addside(side, 32, qv[7], f'v_cmp_u_f32 vcc, v{ACQ}, v{ACQ + 1}')
    ka = [add(ACK, ACK + 2), add(ACK + 1, ACK + 3)]
    addside(side, 34, *ka)
    def nanbr():
        P(f's_cbranch_vccnz {Lb("rec")}')
        P.label(Lb('recok'), keep=True)
    addside(side, 35, nanbr)
    run(mf, side, 'q')
    def recover():
        P.label(Lb('rec'))
        P('s_nop 7\ns_waitcnt vmcnt(0) lgkmcnt(0)')
        for x in maxtree(list(range(QA, QE + 4))): P(x)
        P(f'v_cmp_eq_u32 vcc, -1, v{CK}\ns_cbranch_vccz {Lb("recok")}')
        P('s_barrier')
        if not tight:
            HD = [QOP, QOP + 4]
            P.label(Lb('recp'))
            for q, r in enumerate(HD): P(f'buffer_load_dwordx4 {vr(r, 4)}, v{A2}, {SWS}, {sMR} offen offset:{1024 * q} sc1')
            P(f's_add_u32 {sSPIN}, {sSPIN}, 1\ns_cmp_lt_u32 {sSPIN}, {SPIN_MAX}\ns_cselect_b32 {sT0}, -2, -1')
            for x in maxtree([r + j for r in HD for j in range(4)]): P(x)
            P(f'v_cmp_lt_u32 vcc, {sT0}, v{CK}\ns_cbranch_vccnz {Lb("recp")}')
            for q, r in enumerate(HD): P(f'ds_write_b128 v{A2}, {vr(r, 4)} offset:{L_MEM + 1024 * (2 * w + q)}')
        for r in range(0, 16, 2): P(z2(ACQ + r))
        P('s_waitcnt lgkmcnt(0)\ns_barrier')
        for t in range(9):
            P(rdA(t))
            for s in (f'q{t}a', f'q{t}b', f'k{t}a', f'k{t}b'):
                o = (s[0], t, 'ab'.index(s[2]))
                if HOME[o][0] == 'lds':
                    for x in lds_fetch(o, QOP, w): P(x)
                P(sm(s, QOP))
        for x in qv + ka: P(x)
        P(f's_waitcnt lgkmcnt(0)\ns_nop 1\ns_branch {Lb("recok")}')
    retry.append(recover)
    W0, W1 = (('x', 0), ('x', 1)) if heavy else (('d', 1, 2), ('d', 1, 3))
    KOP = ACQ; PX = ACK + 4; PM = ACK; OD = QA; LD = QC; OO = QD
    S0, S1 = KOP + 4, KOP + 5
    sx = [f'{MF} {vr(KX, 4)}, {vr(KX, 4)}, {vr(QOP, 4)}, 0', f'{MF} {vr(KX, 4)}, {vr(KX + 4, 4)}, {vr(QOP + 4, 4)}, {vr(KX, 4)}']
    smm = [f'{MF} {vr(KOP, 4)}, {vr(KOP, 4)}, {vr(QOP, 4)}, 0', f'{MF} {vr(KOP, 4)}, {vr(KOP + 4, 4)}, {vr(QOP + 4, 4)}, {vr(KOP, 4)}']
    pvx = [f'{MF} {vr(LD, 4)}, {vr(PX, 4)}, {vr(ONES, 4)}, 0', f'{MF} {vr(OD, 4)}, {vr(PX, 4)}, {vr(VX, 4)}, 0', f'{MF} {vr(OD + 4, 4)}, {vr(PX, 4)}, {vr(VX + 4, 4)}, 0']
    pvm = [f'{MF16} {vr(LD, 4)}, {vr(PM, 2)}, {vr(ONES, 2)}, {vr(LD, 4)}', f'{MF16} {vr(OD, 4)}, {vr(PM, 2)}, {vr(VM, 2)}, {vr(OD, 4)}',
           f'{MF16} {vr(OD + 4, 4)}, {vr(PM + 2, 2)}, {vr(VM, 2)}, {vr(OD + 4, 4)}']
    v = [sm(s) for s in 'v5a v5b v8a v8b v4a v4b v7a v7b v6a v6b v0a v0b v1a v2a v3a v1b v2b v3b'.split()]
    mf = v[:6] + sx + v[6:11] + smm + v[11:] + pvx + pvm
    QP = lambda p: DPP(f'quad_perm:{p}')
    WW = P.wait_writes
    side = {0: [WW, 's_barrier', f'ds_read_b128 {vr(QOP, 4)}, v{R1}'],
            1: [f'ds_read_b128 {vr(QOP + 4, 4)}, v{R1} offset:128', add(ACK + 4, ACK + 6), cvt(ACK + 2, ACK, ACK + 4)],
            2: [dw(ACK + 2, 256), add(ACK + 5, ACK + 7), cvt(ACK + 3, ACK + 1, ACK + 5)],
            3: [dw(ACK + 3, 256 + PITCH), flip],
            4: [rdA(0), f'v_mov_b32 v{PM + 1}, 0'],
            5: [f's_waitcnt vmcnt(99) lgkmcnt(3)', f'v_mov_b32 v{PM + 2}, 0'],
            6: [rdA(1), WW],
            7: ['s_barrier'],
            8: [f'ds_read_b128 {vr(KOP, 4)}, v{R1} offset:256', f'ds_read_b128 {vr(KOP + 4, 4)}, v{R1} offset:384'],
            9: [rdA(2), f'v_add_f32_dpp v{VM}, v{KX + 2}, v{KX} {QP("[2,3,0,1]")}', f'v_add_f32_dpp v{VM + 1}, v{KX + 3}, v{KX + 1} {QP("[2,3,0,1]")}'],
            10: [F(W0)[0], f'v_exp_f32_dpp v{VM}, v{VM} {QP("[0,1,0,1]")}'],
            11: [rdA(3), f'v_exp_f32_dpp v{VM + 1}, v{VM + 1} {QP("[0,1,0,1]")}'],
            12: ['s_waitcnt lgkmcnt(3)', cvt(VM, VM, VM + 1)],
            13: [f'ds_write_b32 v{R2}, v{VM} offset:{512 + 4 * w}'],
            14: [F(W0)[1]],
            15: [F(W1)[0]],
            16: [f'v_add_f32_dpp v{S0}, v{KOP + 2}, v{KOP} {QP("[2,3,0,1]")}', f'v_add_f32_dpp v{S1}, v{KOP + 3}, v{KOP + 1} {QP("[2,3,0,1]")}'],
            17: [WW, 's_barrier', f'ds_read_b128 {vr(PX, 4)}, v{R2} offset:512'],
            18: [F(W1)[1], f'v_mul_f32 v{S0}, {sCB}, v{S0}'],
            19: [f'v_mul_f32 v{S1}, {sCB}, v{S1}'],
            20: [f'v_exp_f32_dpp v{S0}, v{S0} {QP("[0,1,0,1]")}'],
            21: [f's_waitcnt vmcnt(98) lgkmcnt(1)', f'v_exp_f32_dpp v{S1}, v{S1} {QP("[0,1,0,1]")}'],
            22: [add(ACV, ACV + 2), add(ACV + 1, ACV + 3)],
            23: [add(ACV + 4, ACV + 6), add(ACV + 5, ACV + 7)],
            24: [cvt(PM, S0, S1), cvt(VM, ACV, ACV + 1), cvt(VM + 1, ACV + 4, ACV + 5)],
            25: [cvt(PM + 3, S0, S1)],
            26: [f'ds_read_b128 {vr(ONES, 4)}, v{A2} offset:{L_TAB}']}
    def vmw(regs, lg):
        def f():
            k = max([j for j, x in enumerate(P.vm) if x & regs], default=-1)
            P('s_waitcnt ' + (f'vmcnt({len(P.vm) - 1 - k}) ' if k >= 0 else '') + f'lgkmcnt({lg})')
        return f
    side[5][0] = vmw(quad(KX) | quad(KX + 4), 3)
    side[21][0] = vmw(quad(VX) | quad(VX + 4), 1)
    run(mf, side, 'v')
    def normalise():
        P(f'v_rcp_f32 v{LD + 2}, v{LD}\nv_rcp_f32 v{LD + 3}, v{LD + 1}')
        for r in (0, 1, 4, 5): P(f'v_mul_f32 v{OD + r}, v{LD + 2 + r % 2}, v{OD + r}')
        P(cvt(OD + 2, OD, OD + 4)); P(dw(OD + 2, L_O)); P(cvt(OD + 3, OD + 1, OD + 5)); P(dw(OD + 3, L_O + PITCH))
    normalise()
    mark('owr')
    P.c('exp() ran without a shift: safe only while every row sum lies in [2^-30, 2^30); otherwise redo with the true row max')
    P(f"""v_subrev_u32 v{LD}, {(127 - 30) << 23}, v{LD}
    v_subrev_u32 v{LD + 1}, {(127 - 30) << 23}, v{LD + 1}
    v_max_u32 v{LD}, v{LD}, v{LD + 1}
    v_cmp_le_u32 vcc, {60 << 23}, v{LD}""")
    zl = list(range(QE, ACK + 8, 2))
    for r in zl[:4]: P(z2(r))
    P(f's_cbranch_vccnz {Lb("mx")}')
    P.label(Lb('mxok'), keep=True)
    def truemax():
        P.label(Lb('mx'))
        SXD, SMD, PL, MXR = QC, QD, ACV, QE
        P(f's_waitcnt lgkmcnt(0)\ns_barrier')
        for c in range(2):
            P(f'buffer_load_dwordx4 {vr(QA + 4 * c, 4)}, v{A2}, {SWS}, {sKV} offen offset:{1024 * c} sc1')
            P(f'ds_read_b128 {vr(ACQ + 4 * c, 4)}, v{R1} offset:{128 * c}\nds_read_b128 {vr(ACK + 4 * c, 4)}, v{R1} offset:{256 + 128 * c}')
        for d_, a_ in ((SXD, QA), (SMD, ACK)):
            P(f'{MF} {vr(d_, 4)}, {vr(a_, 4)}, {vr(ACQ, 4)}, 0\n{MF} {vr(d_, 4)}, {vr(a_ + 4, 4)}, {vr(ACQ + 4, 4)}, {vr(d_, 4)}')
        for d_ in (SXD, SMD):
            for r in range(2): P(f'v_add_f32_dpp v{d_ + r}, v{d_ + 2 + r}, v{d_ + r} {QP("[2,3,0,1]")}')
            for r in range(2): P(f'v_mov_b32_dpp v{d_ + r}, v{d_ + r} {QP("[0,1,0,1]")}')
        for r in range(2):
            P(f'v_mul_f32 v{SMD + r}, {sCB}, v{SMD + r}\nds_write_b32 v{R2}, v{SXD + r} offset:{L_O + 64 * r + 4 * w}')
        P('s_waitcnt lgkmcnt(0)\ns_barrier')
        for r in range(2): P(f'ds_read_b128 {vr(PL + 4 * r, 4)}, v{R2} offset:{L_O + 64 * r}')
        P('s_waitcnt lgkmcnt(0)\ns_barrier')
        sc = list(range(PL, PL + 8)) + [SMD, SMD + 1]
        P(f'v_max_f32 v{MXR}, v{sc[0]}, v{sc[1]}')
        for j in range(2, 10, 2): P(f'v_max3_f32 v{MXR}, v{MXR}, v{sc[j]}, v{sc[j + 1]}')
        for sw in ('v_permlane16_swap_b32', 'v_permlane32_swap_b32'):
            P(f'v_mov_b32 v{MXR + 1}, v{MXR}\n{sw} v{MXR}, v{MXR + 1}\nv_max_f32 v{MXR}, v{MXR}, v{MXR + 1}')
        for r in sc: P(f'v_sub_f32 v{r}, v{r}, v{MXR}')
        for r in sc: P(f'v_exp_f32 v{r}, v{r}')
        for r in range(4): P(cvt(PX + r, PL + r, PL + 4 + r))
        P(cvt(PM, SMD, SMD + 1)); P(cvt(PM + 3, SMD, SMD + 1))
        P(f'v_mov_b32 v{PM + 1}, 0\nv_mov_b32 v{PM + 2}, 0')
        for r in range(4): P(f'v_mov_b32 v{ONES + r}, 0x3f803f80')
        for x in pvx + pvm: P(x)
        P(f'ds_read_b128 {vr(ONES, 4)}, v{A2} offset:{L_TAB}')
        normalise()
        for r in zl[:4]: P(z2(r))
        P(f's_branch {Lb("mxok")}')
    retry.append(truemax)
    P(f's_cmp_eq_u32 {sSTEP}, {NSEG - 1}')
    P('s_waitcnt lgkmcnt(0)\ns_barrier')
    mark('obar1')
    ODUP = QA
    for c in range(4): P(f'ds_read_b128 {vr(ODUP + 4 * c, 4)}, v{R2} offset:{L_O + 64 * c}')
    for r in zl[4:]: P(z2(r))
    mark('obar')
    inc = 0 if 'samekv' in opt else SEG_STRIDE
    book = (f"""s_add_u32 {sKV}, {sKV}, {inc}
    s_add_u32 {sKV2}, {sKV2}, {inc}
    s_add_u32 {sPF}, {sPF}, {inc}
    s_add_u32 {sEXP}, {sEXP}, {SEG_STRIDE}
    s_add_u32 {sSTEP}, {sSTEP}, 1
    s_xor_b32 {sMR}, {sMR}, {0 if 'nocomm' in opt else MEM_SLOT}
    s_xor_b32 {sM8}, {sM8}, {0 if 'nocomm' in opt else MEM_SLOT}""")
    W = [QE, ACQ, ACQ + 4, ACK, ACK + 4]
    order = [0, 4, 1, 2, 3] if heavy else [0, 1, 2, 3]
    nd = len(order)
    mf = [f'{SM} {vr(W[d], 4)}, {vr(ODUP + 4 * c, 4)}, {bsrc(("d", d, c) if d < 4 else ("x", c))}, v{IDX}' for d in order for c in range(4)]
    side = {}
    fl = (F(('x', 2)) + F(('x', 3)) + F(('d', 1, 2)) + F(('d', 1, 3)) if heavy else []) + F(('d', 2, 2)) + F(('d', 2, 3)) + F(('d', 3, 2)) + F(('d', 3, 3))
    slots = [0, 0, 1, 2, 4, 4, 5, 6, 7, 8, 9, 10, 11, 12, 13, 14] if heavy else [2, 3, 4, 5, 6, 7, 8, 9]
    for i, x in zip(slots, fl): addside(side, i, x)
    addside(side, 3 if heavy else 0, f's_cbranch_scc1 {Lb("last")}')
    tagi = lambda d: f'v_bfi_b32 v{W[d]}, 1, {sTAG}, v{W[d]}'
    pst = lambda d: f'buffer_store_dwordx2 {vr(W[d], 2)}, v{A3}, {SWS}, {sPW[d]} offen {stf}'
    for j, d in enumerate(order[:-1]):
        i = max(4 * j + 5, T.get('d0', 5))
        addside(side, i, cvt(W[d], W[d], W[d] + 1), cvt(W[d] + 1, W[d] + 2, W[d] + 3), tagi(d))
        addside(side, i + 1, pst(d))
    kmrd = f'ds_read_b64 {vr(QE, 2)}, v{R1} offset:{256 + 128 * (w // 2) + 8 * (w % 2)}'
    addside(side, 15, kmrd, flip)
    addside(side, 10, f'v_mov_b64 {vr(QE + 2, 2)}, {vr(VM, 2)}')
    addside(side, 11, z2(W[order[1]])); addside(side, 12, z2(W[order[1]] + 2))
    n1 = T.get('n1', (2, 2, 2, 2))[w]
    if w > 0:
        SELR, RDS, sets = QA, [QB], [[VX], [ACV], [KX], [QOP]][:n1]
    else:
        SELR, RDS, sets = VX, [VX + 4, ACV], [[QA, QC], [KX, QOP]][:n1]
    srcs = [sPR, sPRX]
    h1ld = [[f'buffer_load_dwordx4 {vr(dat + 4 * q, 4)}, v{A2}, {SWS}, {srcs[u]} offen offset:{1024 * q} sc1' for u, dat in enumerate(st_) for q in range(2)] for st_ in sets]
    run(mf, side, 'w')
    d = order[-1]
    P(f'ds_read_b128 {vr(SELR, 4)}, v{A2} offset:{L_SEL}')
    P(cvt(W[d], W[d], W[d] + 1)); P(cvt(W[d] + 1, W[d] + 2, W[d] + 3)); P(tagi(d)); P(pst(d))
    mark('wend')
    for dd in order[2:]: P(z2(W[dd])); P(z2(W[dd] + 2))
    P(book)
    fill = F(('q', 0, 0)) + F(('q', 0, 1)) + F(('k', 0, 0))
    post = [f'v_lshlrev_b32 v{VM + 1}, 2, v{A2}'] + ([f'v_mov_b32 v{VM}, {sSTEP}'] if w == 1 else [])
    if 'nocomm' in opt:
        for x in fill + post: P(x)
        dly(100)
        if not tight: P(f's_mov_b32 m0, {L_MEM + 2048 * w}')
        P(f's_branch {Lb("top")}')
    dly(T.get('h1dly', (24, 40, 40, 56))[w])
    for j in range(n1):
        for x in h1ld[j]: P(x)
        if j == 0: mark('h1i')
        if j + 1 < n1: dly(T.get('gap1', 28))
    if w == 3 and 'standalone' not in opt:
        P(f's_waitcnt lgkmcnt(0)\ns_cmp_eq_u32 {sSTEP}, {7 * KV_EARLY - 2}\ns_cbranch_scc1 {Lb("kv")}')
        P.label(Lb('kvb'), keep=True)
        def kv1():
            P.label(Lb('kv'))
            P(f's_lshl_b32 {sT2}, {sH}, 2\ns_add_u32 {sT2}, {sT2}, {DB_P1}')
            P(f's_load_dword {sT3}, s[12:13], {sT2} glc\ns_branch {Lb("kvb")}', nowait=True)
            P.label(Lb('kv2'))
            P(f's_waitcnt lgkmcnt(0)\ns_cmp_ge_u32 {sT3}, 0x700\ns_cbranch_scc1 {Lb("top")}')
            P(f's_load_dword {sT3}, s[12:13], {sT2} glc\ns_add_u32 {sSPIN}, {sSPIN}, 1\ns_cmp_lt_u32 {sSPIN}, {SPIN_MAX}\ns_cbranch_scc1 {Lb("kv2")}\ns_branch {Lb("top")}', nowait=True)
        retry.append(kv1)
    pub = [(A5, sMW), (A5X, sMWX)]
    def reduce_check(st_, mk=False):
        for u, dat in enumerate(st_):
            rd = RDS[u]
            P(f'{MF} {vr(rd, 4)}, {vr(SELR, 4)}, {vr(dat, 4)}, 0')
            if mk and u == 0: mark('h1d')
            P(f'v_bitop3_b32 v{CK if u == 0 else CK2}, v{dat}, v{dat + 2}, {sTAG} bitop3:0x7e')
            if u: P(f'v_or_b32 v{CK}, v{CK}, v{CK2}')
            P(f'{MF} {vr(rd, 4)}, {vr(SELR, 4)}, {vr(dat + 4, 4)}, {vr(rd, 4)}')
            P(f'v_bitop3_b32 v{CK2}, v{dat + 4}, v{dat + 6}, {sTAG} bitop3:0x7e')
            if u + 1 < len(st_): P(f'v_or_b32 v{CK}, v{CK}, v{CK2}')
        P(f'v_bitop3_b32 v{CK}, v{CK}, v{CK2}, 1 bitop3:0xa8')
        P(f'v_cmp_ne_u32 vcc, 0, v{CK}')
    spec = (T.get('spec', 1) and n1 == 1)
    def publish(spec):
        if spec:
            P('s_cmp_eq_u64 vcc, 0')
            for u in range(len(RDS)): P(f's_cselect_b32 {(sT0, sT1)[u]}, {pub[u][1]}, {WS_SIZE}')
        for u, rd in enumerate(RDS):
            for rot in (4, 8):
                for r in range(2): P(f'v_add_f32_dpp v{rd + r}, v{rd + r}, v{rd + r} {DPP(f"row_ror:{rot}")}')
            P(cvt(rd, rd, rd + 1))
            P(f'buffer_store_dword v{rd}, v{pub[u][0]}, {SWS}, {(sT0, sT1)[u] if spec else pub[u][1]} offen {stf}')
    reduce_check(sets[0], True)
    if spec: publish(True)
    P(f's_cbranch_vccnz {Lb("h1r")}')
    if not spec:
        P.label(Lb('h1p'), keep=True)
        publish(False)
    P.label(Lb('h1ok'), keep=True)
    mark('pub')
    def r1():
        regsets = [[Ins(x).ws for x in l] for l in h1ld]
        P.label(Lb('h1r'), vm=[x for l in regsets[1:] for x in l])
        for j in range(n1):
            P('s_mov_b64 exec, vcc')
            for x in h1ld[j]: P(x)
            P(f's_mov_b64 exec, -1\n{DIAG}\ns_add_u32 {sSPIN}, {sSPIN}, 1')
            reduce_check(sets[(j + 1) % n1])
            P(f's_cbranch_vccz {Lb("h1p")}')
        P(f's_cmp_lt_u32 {sSPIN}, {SPIN_MAX}\ns_cbranch_scc1 {Lb("h1r")}')
        if spec:
            P.label(Lb('h1p'))
            P('s_nop 2')
            publish(False)
            P(f's_branch {Lb("h1ok")}')
        else: P(f's_branch {Lb("h1p")}')
    retry.append(r1)
    for u in range(len(RDS)): P(f's_xor_b32 {pub[u][1]}, {pub[u][1]}, {MEM_SLOT}')
    P(f's_xor_b32 {sTAG}, {sTAG}, 1')
    dly(T.get('h2dly', (24, 24, 0, 0))[w])
    P.label(Lb('h2'), keep=True)
    P(post[0])
    hop2_entry([f'buffer_store_dword v{TT}, v{pub[u][0]}, {SWS}, {pub[u][1]} offen {stf}' for u in range(len(RDS))], fill)
    for x in post[1:]: P(x)
    if w == 2 and 'steplog' in opt:
        P(f's_memrealtime s[80:81]\ns_lshl_b32 {sT2}, {sH}, 6\ns_add_u32 {sT2}, {sT2}, {sSTEP}\ns_lshl_b32 {sT2}, {sT2}, 3\ns_add_u32 {sT2}, {sT2}, {WS_STAMP + 0x40000}\ns_waitcnt lgkmcnt(0)')
        P(f'v_mov_b32 v{QC}, s80\nv_mov_b32 v{QC + 1}, {sSPIN}\ns_mov_b64 exec, 1\nbuffer_store_dwordx2 {vr(QC, 2)}, v{A2}, {SWS}, {sT2} offen\ns_mov_b64 exec, -1')
    if w == 3 and 'standalone' not in opt: P(f's_cmp_eq_u32 {sSTEP}, {7 * KV_EARLY - 2}\ns_cbranch_scc1 {Lb("kv2")}')
    P(f's_branch {Lb("top")}')
    for r in retry: r()
    P.label(Lb('last'))
    P('s_nop 7\ns_waitcnt vmcnt(0) lgkmcnt(0)')
    P(kmrd); P(f'v_mov_b64 {vr(QE + 2, 2)}, {vr(VM, 2)}')
    P(f's_add_u32 {sEXP}, {sEXP}, {SEG_STRIDE}')
    P(exp_)
    P('s_waitcnt vmcnt(0)\ns_barrier')
    if w == 1:
        P(f'v_mov_b32 v{VM}, {NSEG + 1}\ns_mov_b64 exec, 1\nbuffer_store_dword v{VM}, v{A2}, {SWS}, {sFLG} offen sc1\ns_mov_b64 exec, -1')
```

```python
S, D, H, DH, M, SEG, NSEG = 2048, 576, 32, 128, 8, 32, 64
MB = 1 << 20
WS_PART = 0
PART_DEST = 2048 + 128
PART_CHUNK = 32 * PART_DEST
WS_RS = 0x55000
WS_FLAG = 0x56000
WS_FO = 0x57000
WS_MEM = 0x58000
MEM_SLOT = 1 << 14
WS_M0 = 0x60000
SEG_STRIDE = 0xA0000
WS_KVX = 0x100000
WS_KVM = WS_KVX + 0x80000
WS_O   = 44 * MB
WS_OA  = 60 * MB
WS_G   = 63 * MB
WS_STAMP = 102 * MB
WS_SIZE = 256 * MB
SX, SWS, SDBG, SWQ, SWK, SWV, SWO, SMEM0, SWQKV, SWOA, SGATE, SOUT = [f's[{4+4*i}:{7+4*i}]' for i in range(12)]
SRD_LIST = [
    (4, 0, S*D*2), (8, 104, WS_SIZE), (12, 96, 256), (16, 40, D*H*DH*2), (20, 48, D*H*DH*2), (24, 56, D*H*DH*2),
    (28, 64, D*H*DH*2), (32, 32, M*D*2), (36, 8, D*3*D*2), (40, 16, D*D*2), (44, 80, D*2), (48, 88, S*D*2)]
import math
CB = math.log2(math.e) / math.sqrt(128.0)
import struct
def f32bits(x): return struct.unpack('<I', struct.pack('<f', x))[0]

DB_MASK, DB_ARMED, DB_ADONE, DB_SUR, DB_P1 = 0, 32, 36, 40, 128
L_BC = 163832
sG, sVER, sXCC = 's0', 's1', 's2'
CA = math.log2(math.e) / math.sqrt(18.0)
SPIN_MAX = 0x20000
KV_EARLY = 2

def verify(P, name, nvm, L_BC=L_BC, va='v33', vb='v32', vr_='v35'):
    P(f's_cmp_eq_u32 {sVER}, 1\ns_cbranch_scc1 {name}_ok\nv_mov_b32 {va}, {L_BC}\ns_cmp_eq_u32 s52, 0\ns_cbranch_scc0 {name}_b')
    P(f's_waitcnt vmcnt({nvm})\ns_mov_b64 exec, 1\nds_write_b32 {va}, {vr_}\ns_mov_b64 exec, -1\ns_waitcnt lgkmcnt(0)', nowait=True)
    P.label(name + '_b', keep=True)
    P(f's_barrier\nds_read_b32 {vb}, {va}\nv_readfirstlane_b32 s54, {vb}\ns_bitcmp1_b32 s54, {sG}\ns_cbranch_scc1 L_conf')
    P.label(name + '_ok', keep=True)
```

```python
from asmgen import *
from layout import *

sW, sJ, sT0, sT1, sT2, sT3 = 's52', 's53', 's54', 's55', 's56', 's57'
sH, sSEG, sXS, sM, sB0, sB1, sO, sSPIN, sN, sXM, sU0, sU1, sU2, sU3 = ['s%d' % i for i in range(58, 72)]
MF32 = 'v_mfma_f32_32x32x16_bf16'
MF = 'v_mfma_f32_16x16x32_bf16'
XBUF = 36864
RING = 36864
L, A2, XD, XR, WD0, WD1, RP, RN, T0, T1, T2, T3, RA = 200, 201, 202, 203, 207, 208, 209, 210, 211, 212, 213, 214, 215
XO = 32
cvt = lambda d, a, b: f'v_cvt_pk_bf16_f32 v{d}, v{a}, v{b}'
def wreg(i):
    return ('a', 4 * i) if i < 64 else ('v', 224 + 4 * (i - 64))
def wq(i):
    k, r = wreg(i); return vr(r, 4, k)

def common(P):
    P.c('---- worker per-lane constants')
    P(f'''v_and_b32 v{L}, 63, v0
    v_lshlrev_b32 v{A2}, 4, v{L}
    v_lshrrev_b32 v{T0}, 3, v{L}
    s_lshl_b32 {sT0}, {sW}, 3
    v_add_u32 v{T0}, {sT0}, v{T0}
    v_bfe_u32 v{T1}, v{T0}, 1, 3
    v_and_b32 v{T2}, 7, v{L}
    v_xor_b32 v{T1}, v{T1}, v{T2}
    v_mul_u32_u24 v{T0}, 1152, v{T0}
    v_lshl_add_u32 v{XD}, v{T1}, 4, v{T0}
    s_mul_i32 {sXM}, {sW}, 9216
    v_and_b32 v{T0}, 31, v{L}
    v_lshrrev_b32 v{T1}, 3, v{T0}
    v_mul_u32_u24 v{T1}, 9216, v{T1}
    v_and_b32 v{T2}, 7, v{T0}
    v_lshl_add_u32 v{T1}, v{T2}, 7, v{T1}
    v_bfe_u32 v{T2}, v{T0}, 1, 3
    v_lshrrev_b32 v{T3}, 5, v{L}
    v_xor_b32 v{T2}, v{T2}, v{T3}
    v_lshl_add_u32 v{XR}, v{T2}, 4, v{T1}
    v_xor_b32 v{XR + 1}, 32, v{XR}
    v_xor_b32 v{XR + 2}, 64, v{XR}
    v_xor_b32 v{XR + 3}, 0x60, v{XR}
    v_bfe_u32 v{T0}, v{L}, 2, 2
    v_lshl_add_u32 v{T1}, v{T3}, 3, v{T0}
    v_lshlrev_b32 v{T1}, 8, v{T1}
    v_xor_b32 v{T0}, {sW}, v{T0}
    v_lshl_add_u32 v{T1}, v{T0}, 6, v{T1}
    v_bfe_u32 v{T2}, v{L}, 4, 1
    v_and_b32 v{T0}, 3, v{L}
    v_lshl_add_u32 v{RN}, v{T2}, 5, v{T1}
    v_lshl_add_u32 v{RN}, v{T0}, 3, v{RN}
    v_lshl_add_u32 v{RP}, v{T2}, 4, v{T1}
    v_and_b32 v{T2}, 1, v{T0}
    v_lshl_add_u32 v{RP}, v{T2}, 3, v{RP}
    v_lshrrev_b32 v{T2}, 1, v{T0}
    v_lshl_add_u32 v{RP}, v{T2}, 5, v{RP}
    s_mov_b32 {sSPIN}, 0''')

def xdma(P, buf):
    for c in range(9):
        P(f's_add_u32 m0, {sXM}, {buf * XBUF + 896 * c}')
        P(f'buffer_load_dwordx4 v{XD}, {SX}, {sXS} offen offset:{128 * c} lds')

def wload(P, mats, stride, after_issue=None, extra={}):
    blocks = [(m, t) for t in range(9) for m in mats]
    n = len(blocks); NS = 7
    P(f's_lshl_b32 {sM}, {sW}, 10\ns_add_u32 {sM}, {sM}, {RING}')
    cnt = [0]; marks = {}
    def dma(j):
        (srd, va, base, _, _), t = blocks[j]
        for y in range(4):
            P(f's_add_u32 m0, {sM}, {(j % NS) * 16384 + y * 4096}\ns_add_u32 {sT0}, {base}, {(64 * t + 16 * y) * stride}')
            P(f'buffer_load_dwordx4 v{va}, {srd}, {sT0} offen lds')
        cnt[0] += 4; marks[j] = cnt[0]
    for j in range(NS - 1): dma(j)
    if after_issue: after_issue()
    for j, ((srd, va, base, ra, q0), t) in enumerate(blocks):
        P(f's_waitcnt vmcnt({cnt[0] - marks[j]}) lgkmcnt(0)\ns_barrier')
        if j + NS - 1 < n: dma(j + NS - 1)
        if j in extra: extra[j](); cnt[0] += 1
        P(f'v_add_u32 v{RA}, {RING + (j % NS) * 16384}, v{ra}')
        for kk in range(4):
            k, r = wreg(q0 + 4 * t + kk)
            for u in range(2): P(f'ds_read_b64_tr_b16 {vr(r + 2 * u, 2, k)}, v{RA} offset:{(16 * kk + 4 * u) * 256}')
    P('s_waitcnt lgkmcnt(0)\ns_barrier')

def gemm(P, buf, tiles):
    rd = lambda k: f'ds_read_b128 {vr(XO + 4 * (k % 4), 4)}, v{XR + k % 4} offset:{buf * XBUF + (k // 4) * 1024}'
    for k in range(3): P(rd(k))
    for k in range(36):
        x = vr(XO + 4 * (k % 4), 4)
        for j, (acc, q0, wa) in enumerate(tiles):
            c = '0' if k == 0 else vr(acc, 16)
            P(f'{MF32} {vr(acc, 16)}, {wq(q0 + k)}, {x}, {c}' if wa else f'{MF32} {vr(acc, 16)}, {x}, {wq(q0 + k)}, {c}')
            if j == 0 and k + 3 < 36: P(rd(k + 3))

def poll(P, name, srd, va, soff, cmp_, exec_, sleep=2):
    P(f's_cmp_eq_u32 {sW}, 0\ns_cbranch_scc0 {name}_d\ns_mov_b32 exec_hi, 0\ns_mov_b32 exec_lo, {exec_}')
    P.label(name)
    P(f'buffer_load_dword v{T0}, v{va}, {srd}, {soff} offen sc1\ns_add_u32 {sSPIN}, {sSPIN}, 1\ns_waitcnt vmcnt(0)')
    P(cmp_)
    P(f's_cbranch_vccz {name}_x\ns_sleep {sleep}\ns_cmp_lt_u32 {sSPIN}, {SPIN_MAX}\ns_cbranch_scc1 {name}')
    P.label(name + '_x')
    P('s_mov_b64 exec, -1')
    P.label(name + '_d')
    P('s_barrier')

def signal_add(P, name, off, val=1):
    P(f's_waitcnt vmcnt(0)\ns_barrier\ns_cmp_eq_u32 {sW}, 0\ns_cbranch_scc0 {name}')
    P(f'v_mov_b32 v{T0}, {val}\nv_mov_b32 v{T1}, 0\ns_mov_b64 exec, 1\nbuffer_atomic_add v{T0}, v{T1}, {SDBG}, {off} offen\ns_mov_b64 exec, -1')
    P.label(name)

def kv_addr(P, KA, VA):
    P(f'''; K unit address: (tok>>3)*2048 + (4*(j>>1) + 2*hf + (j&1))*16, j = tok&7
    v_bfe_u32 v{T0}, v{L}, 3, 2
    v_lshlrev_b32 v{KA}, 11, v{T0}
    v_bfe_u32 v{T0}, v{L}, 1, 2
    v_lshl_add_u32 v{KA}, v{T0}, 6, v{KA}
    v_lshrrev_b32 v{T1}, 5, v{L}
    v_lshl_add_u32 v{KA}, v{T1}, 5, v{KA}
    v_and_b32 v{T0}, 1, v{L}
    v_lshl_add_u32 v{KA}, v{T0}, 4, v{KA}
    v_bfe_u32 v{T0}, v{L}, 4, 1
    v_lshlrev_b32 v{VA}, 10, v{T0}
    v_lshl_add_u32 v{VA}, v{T1}, 9, v{VA}
    v_and_b32 v{T0}, 15, v{L}
    v_lshl_add_u32 v{VA}, v{T0}, 4, v{VA}
    s_lshl_b32 {sT0}, {sW}, 11
    s_add_u32 {sT0}, {sT0}, 8192
    v_add_u32 v{VA}, {sT0}, v{VA}''')

KA, VA = 216, 217
def head_src(P):
    P(f'''v_lshrrev_b32 v{T0}, 4, v{L}
    v_lshlrev_b32 v{T1}, 2, v{T0}
    v_and_b32 v{T2}, 15, v{L}
    v_xor_b32 v{T1}, v{T1}, v{T2}
    v_lshlrev_b32 v{T1}, 4, v{T1}
    v_lshl_add_u32 v{WD0}, v{T0}, 13, v{T1}
    s_lshl_b32 {sB0}, {sH}, 8
    s_lshl_b32 {sT0}, {sW}, 15
    s_add_u32 {sB0}, {sB0}, {sT0}''')

def phase_kv(P):
    P.c('==== phase 1: k_x (scaled) and v_x of head j/7 for segments j%7, +7, ...')
    P(f'''s_mul_i32 {sH}, {sJ}, 9363
    s_lshr_b32 {sH}, {sH}, 16
    s_mul_i32 {sT0}, {sH}, 7
    s_sub_u32 {sSEG}, {sJ}, {sT0}
    s_mul_i32 {sXS}, {sSEG}, {XBUF}''')
    xdma(P, 0)
    head_src(P)
    def after_issue():
        kv_addr(P, KA, VA)
        verify(P, 'W_ver', 9 + 24 + P.nextra)
        return 0
    def pf(srd):
        def f0():
            P(f's_lshl_b32 {sT0}, {sJ}, 13\ns_lshr_b32 {sT1}, {sJ}, 6\ns_or_b32 {sT1}, {sT1}, {sW}\ns_cmp_eq_u32 {sT1}, 0\ns_cselect_b32 {sT0}, {sT0}, 0x10000000')
            P(f'v_lshlrev_b32 v{T0}, 3, v{A2}\nbuffer_load_dword v196, v{T0}, {SWQ}, {sT0} offen')
        if srd is None: return f0
        def f():
            P.c('pull weights the recurrence needs later towards the memory-side cache with linear reads (speed only)')
            P(f'''s_mul_i32 {sT0}, {sJ}, 21120
            s_lshl_b32 {sT1}, {sW}, 13
            s_add_u32 {sT0}, {sT0}, {sT1}
            s_cmp_eq_u32 {sW}, 3
            s_cselect_b32 {sT0}, 0x10000000, {sT0}
            v_lshlrev_b32 v{T0}, 3, v{A2}
            buffer_load_dword v196, v{T0}, {srd}, {sT0} offen''')
        return f
    wload(P, [(SWK, WD0, sB0, RP, 0), (SWV, WD0, sB0, RN, 36)], 8192, after_issue, {j: pf({'q': SWQ, 'o': SWO, 'q0': None}[m]) for j, m in P.pf.items()})
    P.c('the token-attention workgroups clear their own progress word before anyone can look at it')
    P(f'''s_mul_i32 {sT1}, {sJ}, 21846
    s_lshr_b32 {sT1}, {sT1}, 16
    s_mul_i32 {sT2}, {sT1}, 3
    s_sub_u32 {sT2}, {sJ}, {sT2}
    s_lshl_b32 {sT2}, {sT2}, 7
    s_lshl_b32 {sT1}, {sT1}, 2
    s_add_u32 {sT1}, {sT1}, {sT2}
    s_add_u32 {sT1}, {sT1}, {WS_FO}
    s_cmp_lt_u32 {sJ}, 96
    s_cselect_b32 {sU3}, {sT1}, {WS_SIZE}
    v_mov_b32 v{T0}, 0
    s_mov_b64 exec, 1
    buffer_store_dword v{T0}, v{T0}, {SWS}, {sU3} offen sc1
    s_mov_b64 exec, -1''')
    P(f's_mov_b32 {sU0}, {f32bits(CB)}\ns_lshl_b32 {sU1}, {sW}, 9\ns_lshl_b32 {sU2}, {sH}, 2\ns_add_u32 {sU2}, {sU2}, {DB_P1}')
    P.stamp(1)
    P.label('KV_loop')
    for buf in range(2):
        P(f's_add_u32 {sXS}, {sXS}, {7 * XBUF}')
        xdma(P, 1 - buf)
        gemm(P, buf, [(0, 0, True), (16, 36, False)])
        P(f's_mul_i32 {sO}, {sSEG}, {SEG_STRIDE}\ns_lshl_b32 {sT1}, {sH}, 14\ns_add_u32 {sO}, {sO}, {sT1}\ns_add_u32 {sO}, {sO}, {WS_KVX}\ns_add_u32 {sT1}, {sO}, {sU1}')
        for r in range(16): P(f'v_mul_f32 v{r}, {sU0}, v{r}')
        for a in range(2):
            for r in range(4): P(cvt(48 + 4 * a + r, 8 * a + r, 8 * a + 4 + r))
            P(f'buffer_store_dwordx4 {vr(48 + 4 * a, 4)}, v{KA}, {SWS}, {sT1} offen offset:{256 * a} sc1')
        for a in range(2):
            for r in range(4): P(cvt(56 + 4 * a + r, 16 + 4 * r + 2 * a, 17 + 4 * r + 2 * a))
            P(f'buffer_store_dwordx4 {vr(56 + 4 * a, 4)}, v{VA}, {SWS}, {sO} offen offset:{256 * a} sc1')
        P(f's_add_u32 {sSEG}, {sSEG}, 7\ns_cmp_ge_u32 {sSEG}, {NSEG}\ns_cbranch_scc1 KV_done')
        if buf == (KV_EARLY - 1) % 2:
            P(f's_sub_u32 {sT0}, {sSEG}, {7 * KV_EARLY}\ns_cmp_lt_u32 {sT0}, 7\ns_cbranch_scc1 KV_early')
        P('s_waitcnt vmcnt(4)\ns_barrier')
        if buf == (KV_EARLY - 1) % 2: P.label('KV_cont')
    P('s_branch KV_loop')
    P.label('KV_early')
    signal_add(P, 'KV_sig0', sU2)
    P('s_branch KV_cont')
    P.label('KV_done')
    signal_add(P, 'KV_sig', sU2, 0x100)

def phase_attn(P):
    P.c('==== token attention: head j/3, segments j%3, +3, ...')
    QL = 2 * XBUF
    MASK, SX_, SM_, QO, KO, VO, VMO, OA, KM, VMA = 48, 64, 80, 96, 128, 160, 168, 0, 218, 219
    P(f'''s_mul_i32 {sH}, {sJ}, 21846
    s_lshr_b32 {sH}, {sH}, 16
    s_mul_i32 {sT0}, {sH}, 3
    s_sub_u32 {sSEG}, {sJ}, {sT0}
    s_mul_i32 {sXS}, {sSEG}, {XBUF}''')
    xdma(P, 0)
    head_src(P)
    wload(P, [(SWQ, WD0, sB0, RP, 0)], 8192)
    P(f'''; causal mask as accumulator start: key = 8*(r>>2) + 4*hf + (r&3) > query -> -1e30
    v_and_b32 v{T0}, 31, v{L}
    v_lshrrev_b32 v{T1}, 5, v{L}
    v_lshlrev_b32 v{T2}, 2, v{T1}
    v_sub_u32 v{T0}, v{T0}, v{T2}
    v_mov_b32 v{T3}, 0xf149f2ca''')
    for r in range(16):
        P(f'v_cmp_gt_i32 vcc, {8 * (r // 4) + r % 4}, v{T0}\nv_cndmask_b32 v{MASK + r}, 0, v{T3}, vcc')
    P(f'''v_and_b32 v{KM}, 0xff, v{KA}
    ; v_m: w*1024 + (32*hf + (n&15))*16 + 8 + 4*(n>>4)
    v_and_b32 v{T0}, 15, v{L}
    v_lshl_add_u32 v{T0}, v{T1}, 5, v{T0}
    v_lshlrev_b32 v{VMA}, 4, v{T0}
    v_bfe_u32 v{T0}, v{L}, 4, 1
    v_lshl_add_u32 v{VMA}, v{T0}, 2, v{VMA}
    s_lshl_b32 {sT0}, {sW}, 10
    s_add_u32 {sT0}, {sT0}, 8
    v_add_u32 v{VMA}, {sT0}, v{VMA}
    s_lshl_b32 {sT0}, {sW}, 11
    s_add_u32 {sT0}, {sT0}, {QL}
    v_add_u32 v{RA}, {sT0}, v{A2}
    v_add_u32 v{WD1}, {QL}, v{A2}
    s_mov_b32 {sU0}, {f32bits(CB)}
    s_lshl_b32 {sU1}, {sH}, 7
    s_add_u32 {sU1}, {sU1}, {WS_FLAG}
    s_lshl_b32 {sT2}, {sH}, 2
    s_add_u32 {sT2}, {sT2}, {DB_P1}
    s_mov_b32 {sT3}, {DB_ARMED}''')
    poll(P, 'AT_p1', SDBG, A2, sT2, f'v_cmp_gt_u32 vcc, 0x700, v{T0}', 1, 8)
    poll(P, 'AT_arm', SDBG, A2, sT3, f'v_cmp_gt_u32 vcc, 32, v{T0}', 1, 8)
    P.stamp(3)
    P.label('AT_loop')
    for buf in range(2):
        P(f's_lshl_b32 {sO}, {sSEG}, 5\ns_add_u32 {sO}, {sO}, {sH}\ns_mul_i32 {sN}, {sSEG}, {SEG_STRIDE}\ns_lshl_b32 {sT1}, {sH}, 14\ns_add_u32 {sT1}, {sT1}, {sN}\ns_add_u32 {sT1}, {sT1}, {WS_KVX}')
        for i in range(8): P(f'buffer_load_dwordx4 {vr(KO + 4 * i, 4)}, v{KA}, {SWS}, {sT1} offen offset:{256 * i} sc1')
        for a in range(2): P(f'buffer_load_dwordx4 {vr(VO + 4 * a, 4)}, v{VA}, {SWS}, {sT1} offen offset:{256 * a} sc1')
        P(f's_add_u32 {sXS}, {sXS}, {3 * XBUF}')
        xdma(P, 1 - buf)
        gemm(P, buf, [(0, 0, True)])
        for a in range(2):
            for r in range(4): P(cvt(16 + 4 * a + r, 8 * a + r, 8 * a + 4 + r))
            P(f'ds_write_b128 v{RA}, {vr(16 + 4 * a, 4)} offset:{1024 * a}')
        P('s_waitcnt lgkmcnt(0)\ns_barrier')
        for i in range(8): P(f'ds_read_b128 {vr(QO + 4 * i, 4)}, v{WD1} offset:{1024 * i}')
        for i in range(8): P(f'{MF32} {vr(SX_, 16)}, {vr(KO + 4 * i, 4)}, {vr(QO + 4 * i, 4)}, {vr(MASK if i == 0 else SX_, 16)}')
        P(f's_add_u32 {sU2}, {sSEG}, 2\ns_lshl_b32 {sT1}, {sH}, 12\ns_add_u32 {sT1}, {sT1}, {sN}\ns_add_u32 {sT1}, {sT1}, {WS_KVM}')
        MX = 16
        P(f'v_max3_f32 v{MX}, v{SX_}, v{SX_ + 1}, v{SX_ + 2}')
        for r in range(3, 15, 2): P(f'v_max3_f32 v{MX}, v{MX}, v{SX_ + r}, v{SX_ + r + 1}')
        P(f'v_max_f32 v{MX}, v{MX}, v{SX_ + 15}')
        P('s_waitcnt vmcnt(0)')
        poll(P, f'AT_m{buf}', SWS, A2, sU1, f'v_cmp_gt_u32 vcc, {sU2}, v{T0}', 1, 1)
        for i in range(8):
            c, g = i // 4, i % 4
            for hf in range(2): P(f'buffer_load_dwordx2 {vr(KO + 4 * i + 2 * hf, 2)}, v{KM}, {SWS}, {sT1} offen offset:{(2 * c + hf) * 1024 + g * 256} sc1')
        for b in range(2): P(f'buffer_load_dword v{VMO + b}, v{VMA}, {SWS}, {sT1} offen offset:{256 * b} sc1')
        for i in range(8): P(f'{MF32} {vr(SM_, 16)}, {vr(KO + 4 * i, 4)}, {vr(QO + 4 * i, 4)}, {"0" if i == 0 else vr(SM_, 16)}')
        P(f's_lshl_b32 {sO}, {sO}, 13\ns_lshl_b32 {sT0}, {sW}, 11\ns_add_u32 {sO}, {sO}, {sT0}\ns_add_u32 {sO}, {sO}, {WS_O}')
        for r in range(4): P(f'v_mul_f32 v{SM_ + r}, {sU0}, v{SM_ + r}')
        P(f'''v_max3_f32 v{MX}, v{MX}, v{SM_}, v{SM_ + 1}
        v_max3_f32 v{MX}, v{MX}, v{SM_ + 2}, v{SM_ + 3}
        v_mov_b32 v{MX + 1}, v{MX}
        v_permlane32_swap_b32 v{MX}, v{MX + 1}
        v_max_f32 v{MX}, v{MX}, v{MX + 1}''')
        sc = list(range(SX_, SX_ + 16)) + list(range(SM_, SM_ + 4))
        for r in sc: P(f'v_sub_f32 v{r}, v{r}, v{MX}')
        for r in sc: P(f'v_exp_f32 v{r}, v{r}')
        PO = 20
        for a in range(2):
            for r in range(4): P(cvt(PO + 4 * a + r, SX_ + 4 * r + 2 * a, SX_ + 4 * r + 2 * a + 1))
        P(cvt(PO + 8, SM_, SM_ + 1)); P(cvt(PO + 9, SM_ + 2, SM_ + 3))
        P(f'{MF32} {vr(OA, 16)}, {vr(VO, 4)}, {vr(PO, 4)}, 0')
        P(f'v_add_f32 v{MX}, v{sc[0]}, v{sc[1]}')
        for r in sc[2:8]: P(f'v_add_f32 v{MX}, v{MX}, v{r}')
        P(f'{MF32} {vr(OA, 16)}, {vr(VO + 4, 4)}, {vr(PO + 4, 4)}, {vr(OA, 16)}')
        for r in sc[8:14]: P(f'v_add_f32 v{MX}, v{MX}, v{r}')
        P(f'v_mfma_f32_32x32x8_bf16 {vr(OA, 16)}, {vr(VMO, 2)}, {vr(PO + 8, 2)}, {vr(OA, 16)}')
        for r in sc[14:]: P(f'v_add_f32 v{MX}, v{MX}, v{r}')
        P(f'''v_mov_b32 v{MX + 1}, v{MX}
        v_permlane32_swap_b32 v{MX}, v{MX + 1}
        v_add_f32 v{MX}, v{MX}, v{MX + 1}
        v_rcp_f32 v{MX}, v{MX}''')
        for a in range(2):
            for r in range(8): P(f'v_mul_f32 v{OA + 8 * a + r}, v{MX}, v{OA + 8 * a + r}')
            for r in range(4): P(cvt(PO + 4 * a + r, OA + 8 * a + 2 * r, OA + 8 * a + 2 * r + 1))
            P(f'buffer_store_dwordx4 {vr(PO + 4 * a, 4)}, v{A2}, {SWS}, {sO} offen offset:{1024 * a} sc1')
        P(f'''s_add_u32 {sSEG}, {sSEG}, 3
        v_mov_b32 v{T1}, {sSEG}
        s_waitcnt vmcnt(0)
        s_barrier
        s_cmp_eq_u32 {sW}, 0
        s_cselect_b32 {sT0}, {sU3}, {WS_SIZE}
        s_mov_b64 exec, 1
        buffer_store_dword v{T1}, v{A2}, {SWS}, {sT0} offen sc1
        s_mov_b64 exec, -1
        s_cmp_ge_u32 {sSEG}, {NSEG}
        s_cbranch_scc1 L_exit''')
    P('s_branch AT_loop')

def phase_a(P):
    P.c('==== branch A: 4 heads x 128 tokens (qkv projection, dilated local attention), and the gate of 16 tokens')
    RL, PA = 2 * XBUF, 516
    sG, sRUN = sU0, sU1
    P(f'''s_sub_u32 {sT0}, {sJ}, 96
    s_lshr_b32 {sG}, {sT0}, 4
    s_and_b32 {sRUN}, {sT0}, 15
    s_lshl_b32 {sXS}, {sRUN}, 2
    s_sub_u32 {sXS}, {sXS}, 1
    s_max_i32 {sXS}, {sXS}, 0
    s_mul_i32 {sXS}, {sXS}, {XBUF}''')
    xdma(P, 0)
    P.c('gate: 4 tokens per wave, 16 lanes per token, 72 B per lane')
    GX, GW = 48, 68
    P(f'''v_and_b32 v{T0}, 15, v{L}
    v_mul_u32_u24 v{T0}, 72, v{T0}
    v_lshrrev_b32 v{T1}, 4, v{L}
    v_mul_u32_u24 v{T2}, 1152, v{T1}
    v_add_u32 v{T2}, v{T2}, v{T0}
    s_lshl_b32 {sT0}, {sT0}, 2
    s_add_u32 {sU2}, {sT0}, {sW}
    s_mul_i32 {sT1}, {sU2}, {4 * 1152}''')
    for base, va, srd, so in ((GX, T2, SX, sT1), (GW, T0, SGATE, '0')):
        for i in range(4): P(f'buffer_load_dwordx4 {vr(base + 4 * i, 4)}, v{va}, {srd}, {so} offen offset:{16 * i}')
        P(f'buffer_load_dwordx2 {vr(base + 16, 2)}, v{va}, {srd}, {so} offen offset:64')
    P(f'v_mov_b32 v0, 0\nv_mov_b32 v1, 0x3f803f80')
    for i in range(18):
        P(f'''v_lshlrev_b32 v2, 16, v{GX + i}
        v_lshlrev_b32 v3, 16, v{GW + i}
        v_and_b32 v4, 0xffff0000, v{GX + i}
        v_and_b32 v5, 0xffff0000, v{GW + i}
        v_mul_f32 v2, v2, v3
        v_mul_f32 v4, v4, v5
        v_cvt_pk_bf16_f32 v2, v2, v4
        v_lshlrev_b32 v3, 16, v2
        v_and_b32 v4, 0xffff0000, v2
        v_add_f32 v0, v0, v3
        v_add_f32 v0, v0, v4''')
    for rot in (1, 2, 4, 8): P(f'v_add_f32_dpp v0, v0, v0 row_ror:{rot} row_mask:0xf bank_mask:0xf')
    P(f'''v_cvt_pk_bf16_f32 v0, v0, v0
    v_lshlrev_b32 v0, 16, v0
    v_mul_f32 v0, {f32bits(-math.log2(math.e))}, v0
    v_exp_f32 v0, v0
    v_add_f32 v0, 1.0, v0
    v_rcp_f32 v0, v0
    v_cvt_pk_bf16_f32 v0, v0, v0
    v_lshlrev_b32 v0, 16, v0
    v_lshlrev_b32 v{T1}, 2, v{T1}
    s_lshl_b32 {sT1}, {sU2}, 4
    s_add_u32 {sT1}, {sT1}, {WS_G}
    s_mov_b64 exec, 0x0001000100010001
    buffer_store_dword v0, v{T1}, {SWS}, {sT1} offen sc1
    s_mov_b64 exec, -1'''.replace('s_mov_b64 exec, 0x0001000100010001', 's_mov_b32 exec_lo, 0x00010001\ns_mov_b32 exec_hi, 0x00010001'))
    P.c('weight sources: virtual chunk cv = 16m + (p ^ 4r): 1152*(cv/9) + 16*(cv%9), cv >= 27 is padding')
    P(f'''v_lshrrev_b32 v{T0}, 4, v{L}
    v_lshlrev_b32 v{T1}, 2, v{T0}
    v_and_b32 v{T2}, 15, v{L}
    v_xor_b32 v{T1}, v{T1}, v{T2}
    v_mul_u32_u24 v{T0}, 3456, v{T0}
    v_mov_b32 v2, 0x40000000''')
    for m, wd in enumerate((WD0, WD1)):
        P(f'''v_add_u32 v{T2}, {16 * m}, v{T1}
        v_mul_u32_u24 v{T3}, 57, v{T2}
        v_lshrrev_b32 v{T3}, 9, v{T3}
        v_mul_u32_u24 v{T3}, 1008, v{T3}
        v_lshl_add_u32 v{T3}, v{T2}, 4, v{T3}
        v_add_u32 v{T3}, v{T3}, v{T0}
        v_cmp_lt_u32 vcc, 26, v{T2}
        v_cndmask_b32 v{wd}, v{T3}, v2, vcc''')
    P(f's_mul_i32 {sB0}, {sG}, 144\ns_mul_i32 {sT0}, {sW}, {4 * 3456}\ns_add_u32 {sB0}, {sB0}, {sT0}')
    P('s_waitcnt vmcnt(0)')
    wload(P, [(SWQKV, WD0, sB0, RN, 0), (SWQKV, WD1, sB0, RN, 36)], 3456)
    P.stamp(3)
    WA, RB_, OAD = 218, 219, 220
    P(f'''; qkv row write address: (l&31)*PA + 64w + 8*hf
    v_and_b32 v{T0}, 31, v{L}
    v_mul_u32_u24 v{WA}, {PA}, v{T0}
    v_lshrrev_b32 v{T1}, 5, v{L}
    v_lshl_add_u32 v{WA}, v{T1}, 3, v{WA}
    s_lshl_b32 {sT0}, {sW}, 6
    s_add_u32 {sT0}, {sT0}, {RL}
    v_add_u32 v{WA}, {sT0}, v{WA}
    s_lshl_b32 {sXS}, {sRUN}, 2
    s_mul_i32 {sXS}, {sXS}, {XBUF}''')
    for tile in range(5):
        buf = tile % 2
        if tile < 4:
            xdma(P, 1 - buf)
            P(f's_add_u32 {sXS}, {sXS}, {XBUF}')
        gemm(P, buf, [(0, 0, True), (16, 36, True)])
        for m in range(2):
            for qd in range(4):
                P(cvt(48, 16 * m + 4 * qd, 16 * m + 4 * qd + 1)); P(cvt(49, 16 * m + 4 * qd + 2, 16 * m + 4 * qd + 3))
                o = (256 * m + 16 * qd) // 4
                P(f'ds_write2_b32 v{WA}, v48, v49 offset0:{o} offset1:{o + 1}')
        P(f'v_add_u32 v{WA}, {32 * PA}, v{WA}')
        P('s_waitcnt vmcnt(0) lgkmcnt(0)\ns_barrier')
    P.c('attention: wave = head, lane = token, two rounds of 64 tokens')
    Q, KV, SC, O = 0, 16, 100, 112
    P(f'''v_mul_u32_u24 v{RB_}, {PA}, v{L}
    s_mul_i32 {sT0}, {sW}, 36
    s_add_u32 {sT1}, {sT0}, {RL + (32 - 14) * PA}
    v_add_u32 v{RB_}, {sT1}, v{RB_}
    v_mul_u32_u24 v{OAD}, 1152, v{L}
    s_mul_i32 {sT1}, {sG}, 144
    s_add_u32 {sT0}, {sT0}, {sT1}
    s_mul_i32 {sT1}, {sRUN}, {128 * 1152}
    s_add_u32 {sO}, {sT0}, {sT1}
    s_add_u32 {sO}, {sO}, {WS_OA}
    s_lshl_b32 {sN}, {sRUN}, 7
    s_mov_b32 {sT3}, {f32bits(CA)}''')
    def rd9(dst, off):
        for i in range(9): P(f'ds_read_b32 v{dst + i}, v{RB_} offset:{off + 4 * i}')
    for rnd in range(2):
        rd9(Q, 14 * PA)
        for j in range(8): rd9(KV + 9 * j, (14 - 2 * j) * PA + 144)
        for j in range(8): P(f'v_mov_b32 v{SC + j}, 0')
        for i in range(9):
            for j in range(8): P(f'v_dot2c_f32_bf16 v{SC + j}, v{Q + i}, v{KV + 9 * j + i}')
        for j in range(8): rd9(KV + 9 * j, (14 - 2 * j) * PA + 288)
        P(f'v_add_u32 v{T0}, {sN}, v{L}\nv_mov_b32 v{T1}, 0xf149f2ca')
        for j in range(8): P(f'v_mul_f32 v{SC + j}, {sT3}, v{SC + j}')
        for j in range(1, 8): P(f'v_cmp_gt_u32 vcc, {2 * j}, v{T0}\nv_cndmask_b32 v{SC + j}, v{SC + j}, v{T1}, vcc')
        P(f'''v_max3_f32 v{T2}, v{SC}, v{SC + 1}, v{SC + 2}
        v_max3_f32 v{T2}, v{T2}, v{SC + 3}, v{SC + 4}
        v_max3_f32 v{T2}, v{T2}, v{SC + 5}, v{SC + 6}
        v_max_f32 v{T2}, v{T2}, v{SC + 7}''')
        for j in range(8): P(f'v_sub_f32 v{SC + j}, v{SC + j}, v{T2}')
        for j in range(8): P(f'v_exp_f32 v{SC + j}, v{SC + j}')
        P(f'v_add_f32 v{T2}, v{SC}, v{SC + 1}')
        for j in range(2, 8): P(f'v_add_f32 v{T2}, v{T2}, v{SC + j}')
        P(f'v_rcp_f32 v{T2}, v{T2}\nv_mov_b32 v{T3}, 0')
        for j in range(8): P(f'v_mul_f32 v{SC + j}, v{T2}, v{SC + j}')
        for i in range(18): P(f'v_mov_b32 v{O + i}, 0')
        for j in range(8):
            P(cvt(Q + 2 * (j % 2), SC + j, T3)); P(cvt(Q + 1 + 2 * (j % 2), T3, SC + j))
            for i in range(9):
                P(f'v_dot2c_f32_bf16 v{O + 2 * i}, v{KV + 9 * j + i}, v{Q + 2 * (j % 2)}')
                P(f'v_dot2c_f32_bf16 v{O + 2 * i + 1}, v{KV + 9 * j + i}, v{Q + 1 + 2 * (j % 2)}')
        for i in range(9): P(cvt(132 + i, O + 2 * i, O + 2 * i + 1))
        P(f'''buffer_store_dwordx4 v[132:135], v{OAD}, {SWS}, {sO} offen sc1
        buffer_store_dwordx4 v[136:139], v{OAD}, {SWS}, {sO} offen offset:16 sc1
        buffer_store_dword v140, v{OAD}, {SWS}, {sO} offen offset:32 sc1''')
        if rnd == 0:
            P(f'v_add_u32 v{RB_}, {64 * PA}, v{RB_}\ns_add_u32 {sN}, {sN}, 64\ns_add_u32 {sO}, {sO}, {64 * 1152}')
    P(f's_mov_b32 {sT2}, {DB_ADONE}')
    signal_add(P, 'A_sig', sT2)

def phase_out(P):
    P.c('==== output projection + gated mix: 16 tokens x 32 columns per step, K split over the waves')
    def oreg(i):
        return ('a', 4 * i) if i < 64 else ('v', 216 + 4 * (i - 64))
    sSET, sHALF, sSL = sU0, sU1, sU2
    DAT, ACB, ACA, OB, OAA, GA, OUT, RO = 0, 148, 156, 164, 165, 166, 167, 168
    P(f'''s_sub_u32 {sT0}, {sJ}, 96
    s_mul_i32 {sT1}, {sT0}, 3641
    s_lshr_b32 {sT1}, {sT1}, 16
    s_mul_i32 {sT2}, {sT1}, 18
    s_sub_u32 {sSL}, {sT0}, {sT2}
    s_and_b32 {sHALF}, {sT1}, 1
    s_lshr_b32 {sSET}, {sT1}, 1
    v_lshrrev_b32 v{T0}, 2, v{L}
    v_mul_u32_u24 v{T0}, 1152, v{T0}
    v_and_b32 v{T1}, 3, v{L}
    v_lshl_add_u32 v{WD0}, v{T1}, 4, v{T0}
    s_lshl_b32 {sT0}, {sSL}, 6
    s_mul_i32 {sT1}, {sW}, {1024 * 1152}
    s_add_u32 {sB0}, {sT0}, {sT1}
    s_mul_i32 {sT1}, {sW}, {160 * 1152}
    s_add_u32 {sB1}, {sT0}, {sT1}
    s_mul_i32 {sM}, {sW}, 40960
    v_bfe_u32 v{T0}, v{L}, 2, 2
    v_lshlrev_b32 v{T1}, 4, v{T1}
    v_add_u32 v{T1}, {sM}, v{T1}
    v_lshl_add_u32 v{T1}, v{T0}, 6, v{T1}
    v_lshrrev_b32 v{T2}, 4, v{L}
    v_lshl_add_u32 v{RN}, v{T2}, 9, v{T1}
    v_lshrrev_b32 v{T3}, 5, v{L}
    v_lshl_add_u32 v{RP}, v{T3}, 10, v{T1}
    v_and_b32 v{T3}, 1, v{T2}
    v_lshl_add_u32 v{RP}, v{T3}, 8, v{RP}''')
    NS = 20
    def dma(k):
        for y in range(2):
            srd, base, row = (SWO, sB0, 32 * k) if k < 32 else (SWOA, sB1, 32 * (k - 32))
            P(f's_add_u32 m0, {sM}, {(k % NS) * 2048 + 1024 * y}\ns_add_u32 {sT0}, {base}, {(row + 16 * y) * 1152}')
            P(f'buffer_load_dwordx4 v{WD0}, {srd}, {sT0} offen lds')
    for k in range(NS - 1): dma(k)
    for k in range(37):
        P(f's_waitcnt vmcnt({2 * (min(37, k + NS - 1) - k - 1)}) lgkmcnt(0)')
        if k + NS - 1 < 37: dma(k + NS - 1)
        for t in range(2):
            kind, r = oreg(2 * k + t)
            for u in range(2):
                P(f'ds_read_b64_tr_b16 {vr(r + 2 * u, 2, kind)}, v{RP if k < 32 else RN} offset:{(k % NS) * 2048 + 8 * t + (512 if k < 32 else 256) * u}')
    P(f'''; operand addresses: O_B unit (g>>1)*1024 + ((g&1)*32 + 16*half + n)*16 ; O_A row (16*half + n)*1152 + 16g
    v_and_b32 v{T0}, 15, v{L}
    s_lshl_b32 {sT0}, {sHALF}, 4
    v_add_u32 v{T0}, {sT0}, v{T0}
    v_lshl_add_u32 v{T1}, v{T3}, 5, v{T0}
    v_lshlrev_b32 v{OB}, 4, v{T1}
    v_lshrrev_b32 v{T1}, 5, v{L}
    v_lshl_add_u32 v{OB}, v{T1}, 10, v{OB}
    v_mul_u32_u24 v{OUT}, 1152, v{T0}
    v_lshl_add_u32 v{OUT}, v{T2}, 4, v{OUT}
    v_lshlrev_b32 v{GA}, 2, v{T0}
    v_lshlrev_b32 v{WD1}, 2, v{L}
    s_lshl_b32 {sT0}, {sW}, 11
    v_add_u32 v{RO}, {sT0}, v{A2}
    s_mov_b32 {sSEG}, {sSET}
    s_lshl_b32 {sN}, {sSET}, 7
    s_add_u32 {sN}, {sN}, {WS_FO}
    s_mov_b32 {sT2}, {DB_P1}
    s_mov_b32 {sT3}, {DB_ADONE}
    s_waitcnt lgkmcnt(0)''')
    P.stamp(5)
    poll(P, 'O_p1', SDBG, WD1, sT2, f'v_cmp_gt_u32 vcc, 0x700, v{T0}', -1, 16)
    poll(P, 'O_a', SDBG, WD1, sT3, f'v_cmp_gt_u32 vcc, 0x80, v{T0}', 1, 16)
    P.stamp(6)
    P.label('O_loop')
    P(f'''s_mul_i32 {sO}, {sSEG}, {XBUF}
    s_mul_i32 {sT0}, {sW}, 320
    s_add_u32 {sT1}, {sO}, {sT0}
    s_add_u32 {sT1}, {sT1}, {WS_OA}
    s_cmp_eq_u32 {sW}, 3
    s_cselect_b32 {sT2}, {WS_SIZE}, {sT1}''')
    for k in range(5): P(f'buffer_load_dwordx4 {vr(DAT + 128 + 4 * k, 4)}, v{OUT}, {SWS}, {sT1 if k < 3 else sT2} offen offset:{64 * k} sc1')
    P(f's_lshl_b32 {sT1}, {sSEG}, 7\ns_add_u32 {sT1}, {sT1}, {WS_G}\nbuffer_load_dword v{OAA}, v{GA}, {SWS}, {sT1} offen sc1')
    def mm(acc, k, first):
        for t in range(2):
            kind, r = oreg(2 * k + t)
            P(f'{MF} {vr(acc + 4 * t, 4)}, {vr(r, 4, kind)}, {vr(DAT + 4 * k, 4)}, {"0" if first else vr(acc + 4 * t, 4)}')
    for k in range(32, 37): mm(ACA, k, k == 32)
    for r in range(8): P(f'v_mul_f32 v{ACA + r}, v{OAA}, v{ACA + r}')
    P(f'''v_sub_f32 v{OAA}, 1.0, v{OAA}
    v_cvt_pk_bf16_f32 v{OAA}, v{OAA}, v{OAA}
    v_lshlrev_b32 v{OAA}, 16, v{OAA}
    s_add_u32 {sU3}, {sSEG}, 3
    s_lshl_b32 {sT1}, {sSEG}, 18
    s_lshl_b32 {sT0}, {sW}, 16
    s_add_u32 {sT1}, {sT1}, {sT0}
    s_add_u32 {sB0}, {sT1}, {WS_O}''')
    poll(P, 'O_b', SWS, WD1, sN, f'v_cmp_gt_u32 vcc, {sU3}, v{T0}', -1, 1)
    for k in range(32):
        P(f'buffer_load_dwordx4 {vr(DAT + 4 * k, 4)}, v{OB}, {SWS}, {sB0} offen offset:{2048 * (k % 2)} sc1')
        if k % 2: P(f's_add_u32 {sB0}, {sB0}, 4096')
    for k in range(32): mm(ACB, k, k == 0)
    for r in range(8): P(f'v_fmac_f32 v{ACA + r}, v{OAA}, v{ACB + r}')
    P(f'''ds_write_b128 v{RO}, {vr(ACA, 4)}
    ds_write_b128 v{RO}, {vr(ACA + 4, 4)} offset:1024
    s_lshl_b32 {sT0}, {sSL}, 6
    s_add_u32 {sO}, {sO}, {sT0}
    s_mov_b32 {sSEG}, {sU3}
    s_waitcnt lgkmcnt(0)
    s_barrier
    s_cmp_eq_u32 {sW}, 0
    s_cbranch_scc0 O_next''')
    for i in range(6): P(f'ds_read_b128 {vr(DAT + 4 * i, 4)}, v{A2} offset:{2048 + 1024 * i}')
    for i in range(6):
        for r in range(4): P(f'v_add_f32 v{ACA + 4 * (i % 2) + r}, v{ACA + 4 * (i % 2) + r}, v{DAT + 4 * i + r}')
    for r in range(4): P(cvt(ACB + r, ACA + 2 * r, ACA + 2 * r + 1))
    P(f'buffer_store_dwordx4 {vr(ACB, 4)}, v{OUT}, {SOUT}, {sO} offen\ns_nop 1')
    P.label('O_next')
    P(f's_cmp_lt_u32 {sSEG}, {NSEG}\ns_cbranch_scc1 O_loop')

def worker(P):
    P.nextra = P.entry_extra()
    common(P)
    phase_kv(P)
    P.stamp(2)
    if P.plog: P('s_branch L_exit')
    P(f's_cmp_lt_u32 {sJ}, 96\ns_cbranch_scc0 W_a')
    phase_attn(P)
    P.label('W_a')
    phase_a(P)
    P.stamp(4)
    P(f's_cmp_lt_u32 {sJ}, 204\ns_cbranch_scc0 L_exit')
    phase_out(P)
```

```python
import re

REG = re.compile(r'(?<![\w.])([vas])(?:\[(\d+):(\d+)\]|(\d+))(?![\w])')
TRANS = ('v_exp_', 'v_log_', 'v_rcp_', 'v_rsq_', 'v_sqrt_', 'v_sin_', 'v_cos_')

def regs_of(op):
    op = op.strip()
    out = []
    for m in REG.finditer(op):
        k = m.group(1)
        if m.group(2) is not None:
            out += [(k, i) for i in range(int(m.group(2)), int(m.group(3)) + 1)]
        else:
            out.append((k, int(m.group(4))))
    if re.search(r'\bvcc\b', op): out += [('s', 106), ('s', 107)]
    if re.search(r'\bvcc_lo\b', op): out += [('s', 106)]
    if re.search(r'\bvcc_hi\b', op): out += [('s', 107)]
    if re.search(r'\bexec\b', op): out += [('s', 126), ('s', 127)]
    if re.search(r'\bm0\b', op): out += [('s', 124)]
    return out

def split_ops(s):
    out, depth, cur = [], 0, ''
    for ch in s:
        if ch in '[(': depth += 1
        if ch in '])': depth -= 1
        if ch == ',' and depth == 0:
            out.append(cur); cur = ''
        else: cur += ch
    if cur.strip(): out.append(cur)
    return [o.strip() for o in out]

class Ins:
    def __init__(self, text):
        self.text = text
        t = text.split(';')[0].strip()
        p = t.split(None, 1)
        self.op = p[0]; rest = p[1] if len(p) > 1 else ''
        ops = split_ops(rest)
        self.ops = ops
        op = self.op
        self.states = 1
        self.kind = 'salu'; self.w = []; self.r = []
        self.passes = 0; self.C = []; self.AB = []
        R = lambda i: regs_of(ops[i]) if i < len(ops) else []
        allr = lambda a: [x for o in ops[a:] for x in regs_of(o)]
        if op.startswith('v_mfma') or op.startswith('v_smfmac'):
            self.kind = 'mfma'
            self.sparse = op.startswith('v_smfmac')
            self.passes = 8 if '32x32' in op else 4
            self.w = R(0)
            if self.sparse:
                self.C = R(0); self.AB = R(1) + R(2) + R(3)
            else:
                self.C = R(3); self.AB = R(1) + R(2)
            self.r = self.C + self.AB
        elif op.startswith('v_'):
            self.kind = 'valu'
            self.dpp = ('quad_perm' in t or 'row_' in t or 'wave_' in t)
            if op.startswith('v_cmpx'):
                self.w = R(0) + [('s', 126), ('s', 127)]; self.r = allr(1)
            elif op.startswith('v_permlane') and 'swap' in op or op.startswith('v_swap'):
                self.w = R(0) + R(1); self.r = R(0) + R(1)
            elif re.match(r'v_(add|sub|subrev|addc|subb)_co', op) or op.startswith('v_mad_u64'):
                self.w = R(0) + R(1); self.r = allr(2)
            elif op == 'v_nop':
                pass
            else:
                self.w = R(0); self.r = allr(1)
                if op.startswith(('v_fmac', 'v_dot2c', 'v_writelane', 'v_pk_fmac')) or self.dpp or 'UNUSED_PRESERVE' in t or 'op_sel' in t and op.startswith('v_cvt'):
                    self.r = self.r + R(0)
        elif op.startswith('ds_'):
            self.kind = 'ds'
            if op.startswith(('ds_read', 'ds_bpermute', 'ds_permute', 'ds_swizzle')) or '_rtn' in op:
                self.w = R(0); self.r = allr(1)
            else:
                self.r = allr(0)
        elif op.startswith(('buffer_', 'global_')):
            self.kind = 'vmem'
            lds = bool(re.search(r'\blds\b', t)) or '_lds_' in op
            self.ldsdma = lds
            if op.startswith(('buffer_inv', 'buffer_wbl2')):
                pass
            elif lds:
                self.r = allr(0) + [('s', 124)]
            elif 'load' in op:
                self.w = R(0); self.r = allr(1)
                if 'd16' in op: self.r = self.r + R(0)
            elif 'atomic' in op:
                self.r = allr(0)
                if re.search(r'\bsc0\b', t): self.w = R(0)
            else:
                self.r = allr(0)
                self.wide = ('x3' in op or 'x4' in op)
                self.data = R(0) if op.startswith('buffer_') else R(1)
        elif op.startswith(('s_load', 's_buffer_load', 's_memtime', 's_memrealtime', 's_atomic')):
            self.kind = 'smem'; self.w = R(0); self.r = allr(1)
        elif op == 's_nop':
            self.kind = 'nop'; self.states = int(ops[0], 0) + 1
        elif op == 's_waitcnt':
            self.kind = 'wait'
        elif op.startswith(('s_cmp', 's_bitcmp', 's_cbranch', 's_branch', 's_barrier', 's_sleep', 's_setprio', 's_endpgm')):
            self.r = allr(0)
            if 'vcc' in op: self.r += [('s', 106), ('s', 107)]
        else:
            self.w = R(0); self.r = allr(1)
            if 'saveexec' in op: self.w += [('s', 126), ('s', 127)]
        self.ws = set(self.w); self.rs = set(self.r)

class TSet(set):
    t = -10 ** 9

class Prog:
    def __init__(self):
        self.lines = []; self.hist = []
        self.vm = []; self.lg = []
        self.smem = set()
        self.t = 0; self.tm = -999; self.tmh = 0; self.tmp = 0
        self.annot = False
        self.uid = 0
    def raw(self, s): self.lines.append(s)
    def c(self, s): self.lines.append('; ' + s)
    def newlabel(self, base):
        self.uid += 1; return f'{base}_{self.uid}'
    def label(self, name, keep=False, vm=None, lg=None):
        self.lines.append(name + ':')
        if not keep:
            self.hist = []
            self.vm = list(vm) if vm else []
            self.lg = list(lg) if lg else []
            self.smem = set()
    def snapshot(self): return (list(self.hist), list(self.vm), list(self.lg), set(self.smem), self.t, self.tm, self.tmh, self.tmp)
    def restore(self, s):
        self.hist, self.vm, self.lg, self.smem = list(s[0]), list(s[1]), list(s[2]), set(s[3])
        self.t, self.tm, self.tmh, self.tmp = s[4:]
    def _put(self, i):
        t = self.t
        if i.kind == 'mfma': t = max(t, self.tm + self.tmp)
        elif i.kind == 'valu': t = max(t, self.tm + self.tmh)
        if i.kind == 'mfma':
            self.tm = t; self.tmp = 4 * i.passes; self.tmh = 12 if i.sparse else 8
        cost = 4 * i.states
        if i.kind == 'valu' and i.op.startswith(TRANS): cost = 8
        if i.kind in ('ds', 'vmem'): cost = 8
        if i.op == 's_barrier' or i.op.startswith('s_cbranch'): cost = 12
        self.t = t + cost
        self.lines.append('  ' + i.text + (f'   ; t={t}' if self.annot else ''))
        self.hist.append(i)
        if len(self.hist) > 40: self.hist.pop(0)
        if i.kind == 'vmem': self.vm.append(i.ws)
        elif i.kind == 'ds':
            ws = TSet(i.ws); ws.t = t; self.lg.append(ws)
        elif i.kind == 'smem': self.smem |= i.ws | {('x', 0)}
        elif i.kind == 'wait':
            m = re.search(r'vmcnt\((\d+)\)', i.text)
            if m:
                n = int(m.group(1)); self.vm = self.vm[len(self.vm) - n:] if n < len(self.vm) and n > 0 else ([] if n == 0 else self.vm)
            m = re.search(r'lgkmcnt\((\d+)\)', i.text)
            if m:
                n = int(m.group(1))
                if n == 0: self.lg = []; self.smem = set()
                elif not self.smem and n < len(self.lg): self.lg = self.lg[len(self.lg) - n:]
    def _need(self, p, c):
        n = 0; timed = False
        touch = c.rs | c.ws
        if p.kind == 'mfma':
            if p.ws & touch:
                full = {4: 8, 8: 12}[p.passes]
                if c.kind == 'mfma':
                    timed = True
                    if p.ws & set(c.AB): n = full
                    elif p.ws & set(c.C):
                        n = 0 if (set(c.C) == p.ws and c.passes == p.passes) else {4: 6, 8: 10}[p.passes]
                    else:
                        n = 0 if (c.ws == p.ws and c.passes == p.passes) else {4: 6, 8: 10}[p.passes]
                elif c.kind == 'valu': n = full; timed = True
                elif c.kind in ('ds', 'vmem'): n = full
            elif c.kind == 'valu' and set(p.C) & c.ws:
                n = {4: 3, 8: 7}[p.passes]; timed = True
        elif p.kind == 'valu':
            vw = {x for x in p.ws if x[0] != 's'}; sw = {x for x in p.ws if x[0] == 's'}
            if c.kind == 'mfma':
                if vw & c.rs: n = 2
                if ('s', 126) in sw: n = max(n, 4)
            elif c.kind == 'valu':
                if vw & c.rs:
                    if c.dpp and vw & set(regs_of(c.ops[1])): n = 2
                    if c.op.startswith('v_permlane'): n = 2
                    if c.op.startswith(('v_readlane', 'v_readfirstlane')): n = max(n, 1)
                    if p.op.startswith(TRANS): n = max(n, 1)
                    if 'sdwa' in p.op or 'op_sel' in p.text: n = max(n, 1)
                    if p.op.startswith('v_dot') and not (c.op == p.op and not (vw & set(regs_of(c.ops[1]) + regs_of(c.ops[2])))): n = max(n, 3)
                if p.op.startswith('v_dot') and vw & c.ws and c.op != p.op: n = max(n, 3)
                if sw & c.rs:
                    n = max(n, 4 if c.op.startswith(('v_readlane', 'v_writelane', 'v_div_fmas')) else 2)
                if ('s', 126) in sw:
                    if c.dpp: n = max(n, 5)
                    if c.op.startswith(('v_readlane', 'v_readfirstlane', 'v_writelane', 'v_permlane')): n = max(n, 4)
            elif c.kind == 'vmem':
                if sw & c.rs: n = 5
            elif c.kind in ('salu', 'smem'):
                if sw & c.rs and not c.op.startswith('s_cbranch'): n = 1
        elif p.kind == 'vmem':
            if getattr(p, 'wide', False) and set(p.data) & c.ws: n = 2 if c.kind == 'valu' else 1
        elif p.kind == 'salu':
            if ('s', 124) in p.ws and c.kind == 'vmem' and c.ldsdma: n = 1
        return n, timed
    def _dist(self, k, c, timed):
        if not timed:
            return sum(i.states for i in self.hist[k + 1:])
        t = 0; tm = None
        seq = self.hist[k:] + [c]
        for j, i in enumerate(seq):
            if j > 0:
                t += 8 if seq[j - 1].op.startswith(TRANS) else 4 * seq[j - 1].states
                if tm is not None:
                    if i.kind == 'mfma': t = max(t, tm + tp)
                    elif i.kind == 'valu': t = max(t, tm + th)
            if i.kind == 'mfma': tm = t; tp = 4 * i.passes; th = 12 if i.sparse else 8
        return t // 4 - 1
    def __call__(self, text, nowait=False):
        for line in text.split('\n'):
            line = line.strip()
            if not line: continue
            if line.startswith(';'): self.raw(line); continue
            self._one(Ins(line), nowait)
    def wait_writes(self):
        k = max([j for j, x in enumerate(self.lg) if not x], default=-1)
        if k >= 0: self(f's_waitcnt lgkmcnt({0 if self.smem else min(15, len(self.lg) - 1 - k)})')
    def prewait(self, text, ahead=(), age=100):
        i = Ins(text)
        for x in ahead:
            a = Ins(x)
            k = max([j for j, q in enumerate(self.lg) if q & a.rs], default=-1)
            if k >= 0 and self.t - getattr(self.lg[k], 't', -10 ** 9) >= age: i.rs = i.rs | (a.rs & self.lg[k])
        self._waits(i)
    def _waits(self, i):
        w = []
        tv = i.rs | (i.ws if i.kind != 'vmem' else set())
        k = max([j for j, s in enumerate(self.vm) if s & tv], default=-1)
        if k >= 0: w.append(f'vmcnt({min(63, len(self.vm) - 1 - k)})')
        tl = i.rs | (i.ws if i.kind != 'ds' else set())
        k = max([j for j, s in enumerate(self.lg) if s & tl], default=-1)
        if self.smem & (i.rs | i.ws) or (k >= 0 and self.smem): w.append('lgkmcnt(0)')
        elif k >= 0: w.append(f'lgkmcnt({min(15, len(self.lg) - 1 - k)})')
        if w: self._put(Ins('s_waitcnt ' + ' '.join(w)))
    def _one(self, i, nowait):
        if not nowait and i.kind not in ('wait', 'nop'): self._waits(i)
        while True:
            short = 0
            for k, p in enumerate(self.hist):
                n, timed = self._need(p, i)
                if n:
                    d = self._dist(k, i, timed)
                    if d < n:
                        add = 1
                        while True:
                            self.hist.append(Ins(f's_nop {add - 1}'))
                            d2 = self._dist(k, i, timed)
                            self.hist.pop()
                            if d2 >= n or add >= 16: break
                            add += 1
                        short = max(short, add)
            if not short: break
            self._put(Ins(f's_nop {short - 1}'))
        self._put(i)
    def text(self): return '\n'.join(self.lines) + '\n'

def vr(b, n=1, k='v'):
    return f'{k}{b}' if n == 1 else f'{k}[{b}:{b + n - 1}]'
```

```python
from asmgen import *
from layout import *

QA, QB, QC, QD, QE = 0, 4, 8, 12, 16
ACQ, ACK, ACV, KX, VX, QOP, ONES, VM = 20, 28, 36, 44, 52, 60, 68, 72
IDX, A1, A2, R1, R2, R3 = 74, 75, 76, 77, 78, 79
A3, A5, A5X, TT = ONES, ONES + 1, ONES + 2, ONES + 3
sW, sH, sT0, sT1, sT2, sT3 = 's52', 's53', 's54', 's55', 's56', 's57'
sKV, sKV2, sPR, sPRX, sMW, sMWX, sMR, sM8, sSTEP, sSPIN, sEXP, sCB, sPF, sFLG, sTAG = ['s%d' % i for i in range(58, 73)]
sPW = ['s73', 's74', 's75', 's76', 's77']
sMODE = 's3'
L_ROW, PITCH = 0, 576
L_MEM = 8 * PITCH
L_O = L_MEM + 4096
L_TAB = L_MEM + 9216
L_SEL = L_TAB + 1024
L_SCR = L_SEL + 1024
L_W = 16384
SM = 'v_smfmac_f32_16x16x64_bf16'
MF = 'v_mfma_f32_16x16x32_bf16'
MF16 = 'v_mfma_f32_16x16x16_bf16'

blocks_lds = [('q', 0), ('k', 0), ('k', 2), ('k', 4), ('k', 5), ('x',), ('d', 0, 0), ('d', 1, 1), ('d', 2, 1)]
blocks_reg = [b for b in [(m, t) for m in 'qkv' for t in range(9)] + [('d', d, b) for d in range(4) for b in (0, 1)] if b not in blocks_lds]
def block_ops(b):
    if b[0] in 'qkv': return [(b[0], b[1], 0), (b[0], b[1], 1)]
    if b[0] == 'x': return [('x', c) for c in range(4)]
    return [('d', b[1], 2 * b[2]), ('d', b[1], 2 * b[2] + 1)]
HOME = {}
_free = [('v', 80 + 8 * i) for i in range(22)] + [('a', 8 * i) for i in range(32)]
for b in blocks_reg:
    for o in block_ops(b): HOME[o] = _free.pop(0)
assert not _free
for j, b in enumerate(blocks_lds):
    for x, o in enumerate(block_ops(b)): HOME[o] = ('lds', j, x)

def lds_fetch(o, dst, w):
    _, j, x = HOME[o]
    off = L_W + j * 16384 + (w * 4096 if o[0] != 'x' else (w - 2) * 8192) + x * 2048
    if off < 0x10000: base = A2
    elif off < 0x18000: base = A1; off -= 0x10000
    else: base = A1; off -= 0x18000
    return [f'ds_read_b128 {vr(dst, 4)}, v{base} offset:{off}', f'ds_read_b128 {vr(dst + 4, 4)}, v{base} offset:{off + 1024}']

def prologue(P):
    P.c('---- chain prologue: per-lane constants')
    L, N, G, T0, T1, T2, T3 = 0, 1, 2, 3, 4, 5, 6
    DQ, DX, DD, RQ0, RQ1, RX0, RD, RA, RB = 8, 9, 10, 11, 12, 13, 14, 15, 16
    P(f'''v_and_b32 v{L}, 63, v0
    v_and_b32 v{N}, 15, v{L}
    v_lshrrev_b32 v{G}, 4, v{L}''')
    P(f'''v_and_b32 v{T0}, 1, v{G}
    s_lshl_b32 {sT0}, {sW}, 1
    v_add_u32 v{T0}, {sT0}, v{T0}
    v_lshlrev_b32 v{T0}, 1, v{T0}
    v_xor_b32 v{T0}, v{T0}, v{N}
    v_lshlrev_b32 v{T0}, 4, v{T0}
    v_lshl_add_u32 v{DQ}, v{G}, 13, v{T0}''')
    blocks = (getattr(P, 'border', None) or (lambda b: b))(blocks_reg) + blocks_lds
    sHQ, sHO, sM = 's78', 's79', sT3
    P(f'''s_lshl_b32 {sHQ}, {sH}, 8
    s_lshl_b32 {sT0}, {sW}, 15
    s_add_u32 {sHQ}, {sHQ}, {sT0}
    s_mul_i32 {sHO}, {sH}, 147456
    s_lshl_b32 {sM}, {sW}, 10
    s_add_u32 {sM}, {sM}, {L_W}''')
    def dma(j):
        b = blocks[j]; slot = j % 9
        for y in range(4):
            if b[0] in 'qkv':
                srd, va, base, off = {'q': SWQ, 'k': SWK, 'v': SWV}[b[0]], DQ, sHQ, (64 * b[1] + 16 * y) * 8192
            elif b[0] == 'x':
                srd, va, base, off = SWO, DX, sHO, 32 * y * 1152 + 1024
            else:
                srd, va, base, off = SWO, DD, sHO, (64 * b[2] + 8 * (y & 1) + 32 * (y >> 1)) * 1152 + 256 * b[1]
            P(f'''s_add_u32 m0, {sM}, {slot * 16384 + y * 4096}
            s_add_u32 {sT0}, {base}, {off}
            buffer_load_dwordx4 v{va}, {srd}, {sT0} offen {P.wfl} lds''')
    marks = {}
    cnt = [0]
    def note(n): cnt[0] += n
    if getattr(P, 'plog', False): P(f's_memrealtime s[86:87]\ns_waitcnt lgkmcnt(0)\nv_writelane_b32 v34, s86, 0')
    if P.entry_extra: note(P.entry_extra())
    WIN = P.win
    for j in range(WIN):
        dma(j); note(4); marks[j] = cnt[0]
        if j == 0 and P.tlb:
            P.c('each member looks up a different page once, so the die\'s shared TLB fills in parallel (speed only)')
            P(f's_and_b32 {sT1}, {sH}, 7\ns_lshl_b32 {sT1}, {sT1}, 20\ns_lshr_b32 {sT2}, {sH}, 3\ns_cmp_eq_u32 {sW}, 3\ns_cselect_b32 {sT2}, {sT2}, 9\nv_mov_b32 v7, 0\ns_mov_b64 exec, 1')
            for m, srd in enumerate((SWQ, SWK, SWV, SWO)):
                P(f's_cmp_eq_u32 {sT2}, {m}\ns_cselect_b32 {sT0}, {sT1}, {WS_SIZE}\nbuffer_load_dword v36, v7, {srd}, {sT0} offen', nowait=True)
            P(f's_lshl_b32 {sT2}, {sT2}, 21\ns_cmp_eq_u32 {sT1}, {7 << 20}\ns_cselect_b32 {sT0}, {sT2}, {WS_SIZE}\ns_cmp_eq_u32 {sW}, 3\ns_cselect_b32 {sT0}, {sT0}, {WS_SIZE}')
            P(f'buffer_load_dword v36, v7, {SWS}, {sT0} offen offset:{PART_DEST - 128} sc1\ns_mov_b64 exec, -1', nowait=True)
    P(f'''v_lshlrev_b32 v{A2}, 4, v{L}
    v_add_u32 v{A1}, 0x10000, v{A2}
    ; i(n) = 2*(n>>2) + (n&1), half = (n>>1)&1
    v_lshrrev_b32 v{T0}, 2, v{N}
    v_and_b32 v{T1}, 1, v{N}
    v_lshl_add_u32 v{T0}, v{T0}, 1, v{T1}
    v_bfe_u32 v{T1}, v{N}, 1, 1
    v_mul_u32_u24 v{IDX}, 0xaaaa, v{T1}
    v_add_u32 v{IDX}, 0x4444, v{IDX}
    v_mul_u32_u24 v{T2}, {PITCH}, v{T0}
    v_add_u32 v{T2}, {L_ROW}, v{T2}
    v_lshl_add_u32 v{R2}, v{G}, 4, v{T2}
    v_lshl_add_u32 v{R1}, v{G}, 5, v{T2}
    v_lshl_add_u32 v{R1}, v{T1}, 4, v{R1}
    v_mul_u32_u24 v{RA}, 1152, v{T0}
    v_lshl_add_u32 v{RA}, v{G}, 5, v{RA}
    v_lshl_add_u32 v{RA}, v{T1}, 4, v{RA}
    s_lshl_b32 {sT0}, {sW}, 8
    buffer_load_dwordx4 v[20:23], v{RA}, {SMEM0}, {sT0} offen
    buffer_load_dwordx4 v[24:27], v{RA}, {SMEM0}, {sT0} offen offset:128
    buffer_load_dwordx4 v[28:31], v{RA}, {SMEM0}, 0 offen offset:1024''')
    P(f'''; R3
    v_mul_u32_u24 v{R3}, {2 * PITCH}, v{G}
    v_lshl_add_u32 v{R3}, v{N}, 2, v{R3}
    s_lshl_b32 {sT0}, {sW}, 6
    s_add_u32 {sT0}, {sT0}, {L_ROW}
    v_add_u32 v{R3}, {sT0}, v{R3}
    v_lshrrev_b32 v{T2}, 3, v{L}
    v_mul_u32_u24 v{A3}, {PART_DEST}, v{T2}
    v_and_b32 v{T2}, 7, v{L}
    v_lshl_add_u32 v{A3}, v{T2}, 3, v{A3}
    v_and_b32 v{T2}, 1, v{G}
    v_lshlrev_b32 v{T2}, 4, v{T2}
    v_lshl_add_u32 v{T2}, v{N}, 2, v{T2}
    v_mov_b32 v{T3}, 0x40000000
    v_cmp_lt_u32 vcc, 3, v{N}
    v_cndmask_b32 v{T2}, v{T2}, v{T3}, vcc
    v_lshrrev_b32 v{T3}, 1, v{G}
    v_lshl_add_u32 v{A5}, v{T3}, 10, v{T2}
    v_lshl_add_u32 v{A5X}, v{T3}, 8, v{T2}
    v_mov_b32 v{TT}, -1
    ds_write_b128 v{A2}, {vr(ONES, 4)} offset:{L_TAB}
    v_and_b32 v{T2}, 3, v{N}
    v_lshrrev_b32 v{T3}, 2, v{N}
    v_lshl_add_u32 v{T2}, v{T2}, 2, v{T3}
    v_and_b32 v{T3}, 1, v{T2}
    v_lshlrev_b32 v{T3}, 4, v{T3}
    v_mov_b32 v7, 0x3f80
    v_lshlrev_b32 v{T3}, v{T3}, v7
    v_lshrrev_b32 v{T2}, 1, v{T2}''')
    for q in range(4):
        P(f'v_cmp_eq_u32 vcc, {q}, v{T2}\nv_cndmask_b32 v{40 + q}, 0, v{T3}, vcc')
    P(f'ds_write_b128 v{A2}, v[40:43] offset:{L_SEL}')
    P.c('DMA source offsets')
    P(f'''s_and_b32 {sT0}, {sW}, 1
    s_lshr_b32 {sT1}, {sW}, 1
    v_lshrrev_b32 v{T0}, 3, v{L}
    v_and_b32 v{T1}, 1, v{T0}
    v_lshlrev_b32 v{T1}, 4, v{T1}
    v_and_b32 v{T2}, 6, v{T0}
    v_add_u32 v{T1}, v{T1}, v{T2}
    s_lshl_b32 {sT2}, {sT1}, 3
    s_add_u32 {sT2}, {sT2}, {sT0}
    v_add_u32 v{T1}, {sT2}, v{T1}
    v_mul_u32_u24 v{T1}, 1152, v{T1}
    v_and_b32 v{T2}, 2, v{T0}
    v_lshlrev_b32 v{T2}, 1, v{T2}
    v_and_b32 v{T3}, 7, v{L}
    v_xor_b32 v{T3}, v{T3}, v{T2}
    v_lshl_add_u32 v{DX}, v{T3}, 4, v{T1}
    v_and_b32 v{T1}, 1, v{G}
    v_lshlrev_b32 v{T1}, 4, v{T1}
    v_and_b32 v{T2}, 2, v{G}
    v_add_u32 v{T1}, v{T1}, v{T2}
    s_lshl_b32 {sT2}, {sT1}, 2
    s_add_u32 {sT2}, {sT2}, {sT0}
    v_add_u32 v{T1}, {sT2}, v{T1}
    v_mul_u32_u24 v{T1}, 1152, v{T1}
    v_lshlrev_b32 v{T3}, 1, v{G}
    v_xor_b32 v{T3}, v{T3}, v{N}
    v_lshl_add_u32 v{DD}, v{T3}, 4, v{T1}''')
    P.c('transposing-read addresses; r = n>>2, c = n&3')
    B0, B1, G0, G1, C = 17, 18, 19, 72, 73
    P(f'''v_bfe_u32 v{B0}, v{N}, 2, 1
    v_bfe_u32 v{B1}, v{N}, 3, 1
    v_and_b32 v{G0}, 1, v{G}
    v_lshrrev_b32 v{G1}, 1, v{G}
    v_and_b32 v{C}, 3, v{N}
    v_lshl_add_u32 v{T0}, v{G0}, 1, v{B0}
    v_lshl_add_u32 v{T3}, v{B1}, 2, v{T0}
    ; qkv: row = 16*g1 + 4*g0 + b0 + 8*b1 ; byte = (64w + 8c) ^ (32*rho3)
    v_lshl_add_u32 v{T1}, v{G1}, 4, v{B0}
    v_lshl_add_u32 v{T1}, v{G0}, 2, v{T1}
    v_lshl_add_u32 v{T1}, v{B1}, 3, v{T1}
    v_lshlrev_b32 v{T1}, 8, v{T1}
    s_lshl_b32 {sT0}, {sW}, 6
    v_lshl_add_u32 v{T2}, v{C}, 3, {sT0}
    v_lshlrev_b32 v7, 5, v{T3}
    v_xor_b32 v{T2}, v{T2}, v7
    v_add_u32 v{RQ0}, v{T1}, v{T2}
    v_xor_b32 v{RQ1}, 32, v{RQ0}
    ; x: (rho2 + 4*g1)*128 + ((2*(w&1) + b1) ^ (2*g0))*32 + 8c
    v_lshl_add_u32 v{T1}, v{G1}, 2, v{T0}
    v_lshlrev_b32 v{T1}, 7, v{T1}
    v_lshl_add_u32 v{T1}, v{C}, 3, v{T1}
    s_and_b32 {sT0}, {sW}, 1
    v_xor_b32 v7, {sT0}, v{G0}
    v_lshl_add_u32 v7, v7, 1, v{B1}
    v_lshl_add_u32 v{RX0}, v7, 5, v{T1}
    v_lshlrev_b32 v{T1}, 11, v{G1}
    v_lshl_add_u32 v{T1}, v{C}, 3, v{T1}
    v_lshl_add_u32 v{T2}, v{T0}, 8, v{T1}
    v_lshl_add_u32 v7, v{B1}, 2, {sW}
    v_xor_b32 v7, v7, v{T0}
    v_lshl_add_u32 v{RD}, v7, 5, v{T2}''')
    P.c('scalar bases')
    P(f'''s_lshl_b32 {sT0}, {sH}, 14
    s_lshl_b32 {sT1}, {sW}, 11
    s_add_u32 {sT0}, {sT0}, {WS_KVX}
    s_add_u32 {sKV}, {sT0}, {sT1}
    s_add_u32 {sKV2}, {sKV}, 8192
    s_lshl_b32 {sT1}, {sW}, 12
    s_add_u32 {sPF}, {sT0}, {sT1}
    s_add_u32 {sPF}, {sPF}, {SEG_STRIDE}
    s_lshl_b32 {sT0}, {sH}, 12
    s_lshl_b32 {sT1}, {sW}, 10
    s_add_u32 {sT0}, {sT0}, {sT1}
    s_add_u32 {sEXP}, {sT0}, {WS_KVM - SEG_STRIDE}
    s_lshl_b32 {sT0}, {sH}, 7
    s_add_u32 {sFLG}, {sT0}, {WS_FLAG}
    s_lshl_b32 {sT0}, {sH}, 6
    s_mul_i32 {sT1}, {sW}, {8 * PART_DEST}
    s_add_u32 {sT1}, {sT0}, {sT1}
    s_add_u32 {sPW[0]}, {sT1}, {WS_PART}
    s_add_u32 {sPW[1]}, {sT1}, {WS_PART + PART_CHUNK}
    s_add_u32 {sPW[2]}, {sT1}, {WS_PART + 2 * PART_CHUNK}
    s_add_u32 {sPW[3]}, {sT1}, {WS_PART + 3 * PART_CHUNK}
    s_and_b32 {sT2}, {sW}, 1
    s_mul_i32 {sT1}, {sT2}, {8 * PART_DEST}
    s_add_u32 {sT1}, {sT0}, {sT1}
    s_add_u32 {sPW[4]}, {sT1}, {WS_PART + 4 * PART_CHUNK}
    s_mul_i32 {sT0}, {sW}, {PART_CHUNK}
    s_mul_i32 {sT1}, {sH}, {PART_DEST}
    s_add_u32 {sT0}, {sT0}, {sT1}
    s_add_u32 {sPR}, {sT0}, {WS_PART}
    s_and_b32 {sT2}, {sH}, 15
    s_mul_i32 {sT1}, {sT2}, {PART_DEST}
    s_add_u32 {sPRX}, {sT1}, {WS_PART + 4 * PART_CHUNK}
    s_lshl_b32 {sT0}, {sW}, 11
    s_add_u32 {sMR}, {sT0}, {WS_MEM}
    s_mov_b32 {sM8}, {WS_MEM + 8192}
    s_lshl_b32 {sT1}, {sH}, 5
    s_add_u32 {sT0}, {sT0}, {sT1}
    s_add_u32 {sMW}, {sT0}, {WS_MEM + MEM_SLOT}
    s_lshr_b32 {sT0}, {sT2}, 3
    s_lshl_b32 {sT0}, {sT0}, 9
    s_and_b32 {sT1}, {sT2}, 7
    s_lshl_b32 {sT1}, {sT1}, 5
    s_add_u32 {sT0}, {sT0}, {sT1}
    s_add_u32 {sMWX}, {sT0}, {WS_MEM + MEM_SLOT + 8192}
    s_mov_b32 {sSTEP}, 0
    s_mov_b32 {sSPIN}, 0
    s_mov_b32 {sTAG}, 0
    s_mov_b32 {sCB}, {f32bits(CB)}''')
    TMP = [36, 52]
    pend = None
    for j, b in enumerate(blocks):
        P(f's_waitcnt vmcnt({cnt[0] - marks[j]}) lgkmcnt(0)')
        P('s_barrier')
        if getattr(P, 'plog', False):
            P(f's_memrealtime s[86:87]\ns_waitcnt lgkmcnt(0)\nv_writelane_b32 v34, s86, {j + 1}')
        if pend: pend(); pend = None
        if j + WIN < 36:
            dma(j + WIN); note(4); marks[j + WIN] = cnt[0]
        if P.cpf and j in (8, 14, 20):
            P.c('keep the code ahead in L2 while the weights stream through it')
            P(f's_getpc_b64 s[80:81]\nv_lshlrev_b32 v7, 2, v{A2}\nglobal_load_dword v35, v7, s[80:81] offset:1024', nowait=True); note(1)
        if j == P.verj and not P.standalone: verify(P, 'C_ver', min(63, cnt[0]), 16320)
        if j == P.armj:
            P.c('arm this wave\'s partial-sum inbox, the ring slots (heads 0 and 1 do that) and the progress word; all written through')
            P(f"""v_mov_b32 v4, -1
            v_mov_b32 v5, -1
            v_mov_b64 v[6:7], v[4:5]
            v_mov_b32 v3, 0
            s_lshl_b32 {sT2}, {sH}, 14
            s_xor_b32 {sT0}, {sMR}, {sT2}
            s_xor_b32 {sT1}, {sM8}, {sT2}
            s_cmp_lt_u32 {sH}, 2
            s_cselect_b32 {sT0}, {sT0}, {WS_SIZE}
            s_cselect_b32 {sT1}, {sT1}, {WS_SIZE}
            s_lshr_b32 {sT2}, {sH}, 4
            s_or_b32 {sT2}, {sT2}, {sW}
            s_cmp_eq_u32 {sT2}, 0
            s_cselect_b32 {sT2}, {sPRX}, {WS_SIZE}""")
            for sb_, o in ((sPR, 0), (sPR, 1024), (sT2, 0), (sT2, 1024), (sT0, 0), (sT0, 1024), (sT1, 0)):
                P(f'buffer_store_dwordx4 v[4:7], v{A2}, {SWS}, {sb_} offen offset:{o} sc1')
            P(f's_mov_b64 exec, 1\nbuffer_store_dword v3, v3, {SWS}, {sFLG} offen sc1\ns_mov_b64 exec, -1')
            P.c('mem0 goes straight into the staging space')
            for r in range(20, 32): P(f'v_min_u32 v{r}, -2, v{r}')
            P(f's_lshl_b32 {sT0}, {sW}, 11\nv_add_u32 v3, {sT0}, v{A2}')
            P(f'ds_write_b128 v3, v[20:23] offset:{L_MEM}\nds_write_b128 v3, v[24:27] offset:{L_MEM + 1024}\nds_write_b128 v{A2}, v[28:31] offset:{L_MEM + 8192}')
        if j == P.armj + 9:
            P.c('every wave has waited for those stores (before this iteration\'s barrier)')
            P(f's_cmp_eq_u32 {sW}, 0\ns_cselect_b32 {sT0}, {DB_ARMED}, 0x1000\nv_mov_b32 v32, 1\nv_mov_b32 v7, 0')
            P(f's_mov_b64 exec, 1\nbuffer_atomic_add v32, v7, {SDBG}, {sT0} offen\ns_mov_b64 exec, -1'); note(1)
        if j == P.tchj:
            P.c('bring the ring slots, and the loop code, into L2 (speed only)')
            P(f'v_lshlrev_b32 v7, 3, v{A2}\ns_lshl_b32 {sT0}, {sW}, 13\ns_add_u32 {sT0}, {sT0}, {WS_MEM}')
            P(f's_bitcmp1_b32 {sW}, 0\ns_cselect_b64 exec, 0xff, -1\nbuffer_load_dword v35, v7, {SWS}, {sT0} offen sc1\ns_mov_b64 exec, -1', nowait=True)
            for s in P.tch:
                P(f'v_lshlrev_b32 v7, 1, v{A2}\nbuffer_load_dword v35, v7, {SWS}, {dict(p=sPR, x=sPRX, k=sKV, v=sKV2)[s]} offen sc1', nowait=True); note(1)
            if P.cpf:
                P(f's_getpc_b64 s[80:81]')
                P.label('C_pc', keep=True)
                P(f's_mov_b32 {sT1}, (L_w0 - C_pc)')
                for m in range(1, 4): P(f's_cmp_eq_u32 {sW}, {m}\ns_cselect_b32 {sT1}, (L_w{m} - C_pc), {sT1}')
                P(f'v_lshl_add_u32 v7, v{A2}, 3, {sT1}\nglobal_load_dword v35, v7, s[80:81]', nowait=True); note(1)
        if j == P.statj and not P.standalone:
            P(f's_lshl_b32 {sT0}, {sH}, 2\ns_add_u32 {sT0}, {sT0}, {DB_P1}\nv_lshrrev_b32 v20, 2, v{A2}\nv_writelane_b32 v20, {sT0}, 16')
            P(f'buffer_load_dword v21, v20, {SDBG}, 0 offen sc1'); note(1)
        sb = L_W + (j % 9) * 16384
        if b[0] in 'qkv':
            P(f'v_add_u32 v{RA}, {sb}, v{RQ0}\nv_add_u32 v{RB}, {sb}, v{RQ1}')
        else:
            P(f'v_add_u32 v{RA}, {sb}, v{RX0 if b[0] == "x" else RD}')
        if b[0] == 'x': P('s_waitcnt lgkmcnt(0)')
        acts = []
        for x, o in enumerate(block_ops(b)):
            hm = HOME[o]
            k, r = hm if hm[0] in 'va' else ('v', (TMP[j % 2] if b[0] != 'x' else 36) + 8 * x)
            for q in (0, 2, 4, 6):
                if b[0] in 'qkv': ad, off = (RA, RB)[x], (32 * (q // 4) + 2 * ((q % 4) // 2)) * 256
                elif b[0] == 'x': ad, off = RA, ((q % 4) // 2 + 2 * (q // 4) + 4 * x) * 1024
                else: ad, off = RA, ((q % 4) // 2 + 4 * (q // 4) + 8 * x) * 1024
                P(f'ds_read_b64_tr_b16 {vr(r + q, 2, k)}, v{ad} offset:{off}')
            if hm[0] == 'lds': acts.append((x, r))
        if acts:
            def mk(acts=acts, sb=sb, b=b):
                if b[0] == 'x': P(f's_and_b32 {sT0}, {sW}, 1\ns_lshl_b32 {sT0}, {sT0}, 13')
                else: P(f's_lshl_b32 {sT0}, {sW}, 12')
                P(f's_add_u32 {sT0}, {sT0}, {sb}\nv_add_u32 v7, {sT0}, v{A2}')
                for x, r in acts:
                    for hf in range(2): P(f'ds_write_b128 v7, {vr(r + 4 * hf, 4)} offset:{x * 2048 + hf * 1024}')
            pend = mk
    P('s_waitcnt vmcnt(0) lgkmcnt(0)\ns_barrier')
    pend()
    P('s_waitcnt lgkmcnt(0)')
    if getattr(P, 'plog', False):
        P(f's_lshl_b32 {sT0}, {sH}, 10\ns_add_u32 {sT0}, {sT0}, {WS_STAMP + 0x50000}\nbuffer_store_dword v34, v{A2}, {SWS}, {sT0} offen\ns_waitcnt vmcnt(0)')

def ready(P):
    P.c('go once all 32 members are armed and the first k_x / v_x segments of this head are complete;')
    P.c('plain stores are enough only if all 32 slots were claimed on die 0, otherwise write through')
    P('s_branch C_rd1')
    P.label('C_rd0')
    P(f's_sleep 2\nbuffer_load_dword v21, v20, {SDBG}, 0 offen sc1\ns_waitcnt vmcnt(0)')
    P.label('C_rd1')
    P(f"""s_mov_b32 {sMODE}, 1
    s_add_u32 {sSPIN}, {sSPIN}, 1
    s_cmp_ge_u32 {sSPIN}, {SPIN_MAX}
    s_cbranch_scc1 C_rd2
    v_readlane_b32 {sT0}, v21, {DB_ARMED // 4}
    v_readlane_b32 {sT1}, v21, 16
    v_readlane_b32 {sT2}, v21, 0
    s_cmp_lt_u32 {sT0}, 32
    s_cbranch_scc1 C_rd0
    s_and_b32 {sT1}, {sT1}, 0xff
    s_cmp_lt_u32 {sT1}, 7
    s_cbranch_scc1 C_rd0
    s_cmp_eq_u32 {sT2}, -1
    s_cselect_b32 {sMODE}, 0, 1""")
    P.label('C_rd2')

def is_valu(s): return s.startswith('v_')

def step_loop(P, w, tag, opt=(), T=None):
    T = T or {}
    stf = P.stf
    heavy = w >= 2
    DIAG = 's_add_u32 s84, s84, 1' if 'diag' in opt else ''
    Lb = lambda s: f'C{tag}{w}_{s}'
    DPP = lambda p: f'{p} row_mask:0xf bank_mask:0xf'
    QP = lambda p: DPP(f'quad_perm:{p}')
    AGE = T.get('age', 96)
    def mark(name):
        if 'marks' in opt and name in T.get('marks', ()):
            k = T['marks'].index(name)
            P.raw(f'  s_memtime s[{16 + 2 * k}:{17 + 2 * k}]   ; {name}')
    def run(mf, side, pre):
        for i, m in enumerate(mf):
            P(m); t0 = P.tm
            mark(f'{pre}{i}')
            ss = side.get(i, [])
            nv = [s for s in ss if callable(s) or not is_valu(s)]; va = [s for s in ss if not callable(s) and is_valu(s)]
            for s in nv: s() if callable(s) else P(s)
            if i + 1 < len(mf):
                n0 = len(P.lines)
                room = P.t + 4 <= t0 + (P.tmh if va else 16)
                snap = P.snapshot(); P.prewait(mf[i + 1]); need = len(P.lines) > n0
                del P.lines[n0:]; P.restore(snap)
                if need or room: P.prewait(mf[i + 1], mf[i + 2:i + 5], AGE)
            for s in va: P(s)
    def addside(side, i, *ins): side[i] = side.get(i, []) + list(ins)
    def dly(n):
        while n > 0:
            P(f's_nop {min(n, 16) - 1}'); n -= 16
    bufs = {('q', 0, 0): QOP, ('q', 0, 1): KX}
    for t in (0, 2, 4, 5): bufs[('k', t, 0)] = ACV; bufs[('k', t, 1)] = QOP
    bufs.update({('d', 0, 0): KX, ('d', 0, 1): QOP, ('d', 1, 2): VX, ('d', 1, 3): ACV, ('d', 2, 2): KX, ('d', 2, 3): QOP,
                 ('x', 0): VX, ('x', 1): ACV, ('x', 2): KX, ('x', 3): QOP})
    def bsrc(o, buf=None):
        hm = HOME[o]
        return vr(hm[1], 8, hm[0]) if hm[0] in 'va' else vr(buf or bufs[o], 8)
    F = lambda o: lds_fetch(o, bufs[o], w)
    AQ = [QA, QB, QC, QD, QA, QB, QE, QD, QC]
    rdA = lambda t: f'ds_read_b128 {vr(AQ[t], 4)}, v{A2} offset:{L_MEM + 1024 * t}'
    ACC = {'q': ACQ, 'k': ACK, 'v': ACV}
    def sm(s, buf=None):
        m, t, x = s[0], int(s[1]), 'ab'.index(s[2])
        return f'{SM} {vr(ACC[m] + 4 * x, 4)}, {vr(AQ[t], 4)}, {bsrc((m, t, x), buf)}, v{IDX}'
    add = lambda d, a: f'v_add_f32 v{d}, v{d}, v{a}'
    cvt = lambda d, a, b: f'v_cvt_pk_bf16_f32 v{d}, v{a}, v{b}'
    z2 = lambda d: f'v_mov_b64 {vr(d, 2)}, 0'
    dw = lambda r, o: f'ds_write_b32 v{R3}, v{r} offset:{o}'
    flip = f'v_xor_b32 v{A1}, 0x8000, v{A1}'
    quad = lambda r: set(('v', r + j) for j in range(4))
    WW = P.wait_writes
    retry = []
    CK, CK2 = VM, VM + 1
    def maxtree(regs):
        out = [f'v_max3_u32 v{CK}, v{regs[0]}, v{regs[1]}, v{regs[2]}']
        for j in range(3, len(regs) - 1, 2): out.append(f'v_max3_u32 v{CK}, v{CK}, v{regs[j]}, v{regs[j + 1]}')
        return out + [f'v_max_u32 v{CK}, v{CK}, v{regs[-1]}']
    tchunks = T.get('tchunks', ((0, 1), (2,), (3,), ()))[w]
    nlate = {2: 2, 3: 3}.get(w, 0)
    nunit = 2 if w == 3 else 1
    DMA = ('d', 0)
    fill = F(('q', 0, 0)) + F(('q', 0, 1)) + F(('k', 0, 0))
    tsh = f'v_lshlrev_b32 v{VM + 1}, 2, v{A2}'

    P.c(f'---- chain wave {w}')
    for r in range(0, 16, 2): P(z2(ACQ + r))
    P(f's_mov_b32 s78, 0x3f803f80\ns_mov_b32 s79, s78\ns_mov_b32 {sM8}, {WS_MEM}\ns_mov_b32 m0, {L_SCR}\n{tsh}\nv_mov_b32 v{VM}, 0')
    for x in fill + [rdA(0), rdA(1)]: P(x)
    P(f's_branch {Lb("top2")}')
    P.raw('.p2align 6')
    P.label(Lb('h2'))
    P.t = 0; P.tm = -999
    own = 2 * nunit
    P(tsh)
    if nlate: P(f's_mov_b32 m0, {L_MEM + 2048 * w}')
    if tchunks and 'nocomm' not in opt:
        HD = [(VX + 4 * q, t) for q, t in enumerate(tchunks)]
        nl = len(HD)
        ld = [f'buffer_load_dwordx4 {vr(r, 4)}, v{A2}, {SWS}, {sM8} offen offset:{1024 * t} sc1' for r, t in HD]
        wr = [f'ds_write_b128 v{A2}, {vr(r, 4)} offset:{L_MEM + 1024 * t}' for r, t in HD]
        ck = maxtree([r + j for r, t in HD for j in range(4)]) + [f'v_cmp_eq_u32 vcc, -1, v{CK}']
        n2, gap = T.get('n2', (3, 3, 3, 3))[w], T.get('gap2', 18)
        dly(T.get('h2dly', (28, 20, 4, 0))[w])
        for j in range(n2):
            for x in ld: P(x, nowait=True)
            if j == 0: mark('h2i')
            if j == n2 - 1:
                P(f's_waitcnt vmcnt({own + nl * n2})')
                for x in fill: P(x, nowait=True)
            else: dly(gap)
        P(f's_waitcnt vmcnt({nl * (n2 - 1)})')
        for x in ck[:-1] + wr + ck[-1:]: P(x, nowait=True)
        P(f's_cbranch_vccnz {Lb("h2r")}')
        def r2():
            P.label(Lb('h2r'))
            for j in range(4):
                P('s_mov_b64 exec, vcc')
                for x in ld: P(x, nowait=True)
                P(f's_mov_b64 exec, -1\ns_add_u32 {sSPIN}, {sSPIN}, 1\ns_waitcnt vmcnt({nl * (n2 - 1)})')
                wf = T.get('wf2', 1)
                for x in ck[:-1] + (wr if wf else []) + ck[-1:]: P(x, nowait=True)
                P(f's_cbranch_vccz {Lb("h2w" if wf else "h2ok")}')
            P(f's_cmp_lt_u32 {sSPIN}, {SPIN_MAX}\ns_cbranch_scc1 {Lb("h2r")}')
            P.label(Lb('h2ok'))
            for x in wr: P(x, nowait=True)
            P(f's_branch {Lb("h2w")}')
        retry.append(r2)
    else:
        P(f's_waitcnt vmcnt({own})')
        for x in fill: P(x, nowait=True)
        if w == 3:
            P(f'v_mov_b32 v{VM}, {sSTEP}')
            if 'steplog' in opt:
                P(f's_memrealtime s[80:81]\ns_lshl_b32 {sT0}, {sH}, 6\ns_add_u32 {sT0}, {sT0}, {sSTEP}\ns_lshl_b32 {sT0}, {sT0}, 3\ns_add_u32 {sT0}, {sT0}, {WS_STAMP + 0x40000}\ns_waitcnt lgkmcnt(0)')
                P(f'v_mov_b32 v{QC}, s80\nv_mov_b32 v{QC + 1}, {sSPIN}\ns_mov_b64 exec, 1\nbuffer_store_dwordx2 {vr(QC, 2)}, v{A2}, {SWS}, {sT0} offen\ns_mov_b64 exec, -1')
            if 'standalone' not in opt: P(f's_cmp_eq_u32 {sSTEP}, {7 * KV_EARLY - 2}\ns_cbranch_scc1 {Lb("kv2")}')
    P.label(Lb('h2w'), lg=[set()])
    mark('h2w')
    P('s_waitcnt lgkmcnt(0)\ns_barrier')
    P.t = 0
    mark('top')
    P(rdA(0)); P(rdA(1))
    if 'nocomm' in opt: P('s_mov_b32 m0, 0x28000')
    for q in range(nlate):
        P(f'buffer_load_dwordx4 v{A2}, {SWS}, {sMR} offen offset:{1024 * q} sc1 lds')
        P.vm[-1] = {DMA}
    P.label(Lb('top2'), keep=True)
    P(rdA(2))
    if nlate: P(f's_mov_b32 m0, {L_SCR}')
    P.t = 60
    seq = T.get('seq', 'q0a q0b q1a k0a q1b k1a k1b k0b q2a q2b k2a q3a q3b k3a k3b k2b q4a q4b k4a q5a q5b q6a k4b q6b q7a k5a q8a q7b q8b k5b k6a k7a k8a k6b k7b k8b').split()
    mf = [sm(s) for s in seq]
    side = {}
    at = {s: i for i, s in enumerate(seq)}
    bl = T.get('bl', 12)
    def dma_wait():
        k = max(j for j, x in enumerate(P.vm) if DMA in x)
        P(f's_waitcnt vmcnt({len(P.vm) - 1 - k})')
    kx = [f'buffer_load_dwordx4 {vr(KX + 4 * c, 4)}, v{A2}, {SWS}, {sKV} offen offset:{1024 * c} sc1' for c in range(2)]
    vx = [f'buffer_load_dwordx4 {vr(VX + 4 * c, 4)}, v{A2}, {SWS}, {sKV2} offen offset:{1024 * c} sc1' for c in range(2)]
    exp_ = f'buffer_store_dwordx4 {vr(QE, 4)}, v{A2}, {SWS}, {sEXP} offen sc1'
    touch = f'buffer_load_dword v{VM + 1}, {SWS}, {sPF} offen lds'
    for i, s in zip(T.get('vm_at', lambda w: (2, 4, 6, 7, (8, 10, 13, 15)[w], (13, 13, 9, 9)[w] + 1))(w), (kx[0], kx[1], vx[0], vx[1], exp_, touch)):
        if 'noexp' in opt and s is exp_ or 'notouch' in opt and s is touch: continue
        addside(side, i, s)
    if nlate: addside(side, bl - 1, dma_wait)
    addside(side, bl, 's_barrier', rdA(4))
    ds_at = T.get('ds_at', dict(k0b=(0, 1), k2a=(3, 4), r3=5, k2b=(8, 9), k4a=(10, 11), r5=13, r7=19, k4b=(15, 17), r6=16, k5a=(18, 20), r8=21, k5b=(22, 23)))
    for k_, v_ in ds_at.items():
        if k_[0] == 'r': addside(side, v_, rdA(int(k_[1])))
        else:
            for i, x in zip(v_, F((k_[0], int(k_[1]), 'ab'.index(k_[2])))): addside(side, i, x)
    if w == 3 and 'noexp' not in opt:
        addside(side, 24, 's_mov_b64 exec, 1', f'buffer_store_dword v{VM}, v{A2}, {SWS}, {sFLG} offen sc1', 's_mov_b64 exec, -1')
    addside(side, 22, f'v_mov_b64 {vr(ONES, 2)}, s[78:79]'); addside(side, 23, f'v_mov_b64 {vr(ONES + 2, 2)}, s[78:79]')
    for j, i in enumerate((25, 26, 27, 33)): addside(side, i, z2(ACV + 2 * j))
    qv = [add(ACQ, ACQ + 2), add(ACQ + 1, ACQ + 3), add(ACQ + 4, ACQ + 6), cvt(ACQ + 2, ACQ, ACQ + 4), dw(ACQ + 2, 0),
          add(ACQ + 5, ACQ + 7), cvt(ACQ + 3, ACQ + 1, ACQ + 5), dw(ACQ + 3, PITCH)]
    addside(side, 28, qv[0]); addside(side, 29, qv[1]); addside(side, 30, qv[2], qv[3]); addside(side, 31, *qv[4:7])
    addside(side, 32, qv[7], f'v_cmp_u_f32 vcc, v{ACQ}, v{ACQ + 1}')
    ka = [add(ACK, ACK + 2), add(ACK + 1, ACK + 3)]
    addside(side, 34, *ka)
    def nanbr():
        P(f's_cbranch_vccnz {Lb("rec")}')
        P.label(Lb('recok'), keep=True)
    addside(side, 35, nanbr)
    run(mf, side, 'q')
    def recover():
        P.label(Lb('rec'))
        P('s_nop 7\ns_waitcnt vmcnt(0) lgkmcnt(0)')
        for x in maxtree(list(range(QA, QE + 4))): P(x)
        P(f'v_cmp_eq_u32 vcc, -1, v{CK}\ns_cbranch_vccz {Lb("recok")}')
        P('s_barrier')
        if nlate:
            HD = [QA + 4 * q for q in range(nlate)]
            P.label(Lb('recp'))
            for q, r in enumerate(HD): P(f'buffer_load_dwordx4 {vr(r, 4)}, v{A2}, {SWS}, {sMR} offen offset:{1024 * q} sc1')
            P(f's_add_u32 {sSPIN}, {sSPIN}, 1\ns_cmp_lt_u32 {sSPIN}, {SPIN_MAX}\ns_cselect_b32 {sT0}, -2, -1')
            if 'diag' in opt: P('s_add_u32 s86, s86, 1')
            for x in maxtree([r + j for r in HD for j in range(4)]): P(x)
            P(f'v_cmp_lt_u32 vcc, {sT0}, v{CK}\ns_cbranch_vccnz {Lb("recp")}')
            for q, r in enumerate(HD): P(f'ds_write_b128 v{A2}, {vr(r, 4)} offset:{L_MEM + 1024 * (2 * w + q)}')
        for r in range(0, 16, 2): P(z2(ACQ + r))
        P('s_waitcnt lgkmcnt(0)\ns_barrier')
        for t in range(9):
            P(rdA(t))
            for s in (f'q{t}a', f'q{t}b', f'k{t}a', f'k{t}b'):
                o = (s[0], t, 'ab'.index(s[2]))
                if HOME[o][0] == 'lds':
                    for x in lds_fetch(o, QOP, w): P(x)
                P(sm(s, QOP))
        for x in qv + ka: P(x)
        P(f's_waitcnt lgkmcnt(0)\ns_nop 1\ns_branch {Lb("recok")}')
    retry.append(recover)
    W0, W1 = ('d', 0, 0), ('d', 0, 1)
    KOP = ACQ; PX = ACK + 4; PM = ACK; OD = QA; LD = QC
    S0, S1 = KOP + 4, KOP + 5
    sx = [f'{MF} {vr(KX, 4)}, {vr(KX, 4)}, {vr(QOP, 4)}, 0', f'{MF} {vr(KX, 4)}, {vr(KX + 4, 4)}, {vr(QOP + 4, 4)}, {vr(KX, 4)}']
    smm = [f'{MF} {vr(KOP, 4)}, {vr(KOP, 4)}, {vr(QOP, 4)}, 0', f'{MF} {vr(KOP, 4)}, {vr(KOP + 4, 4)}, {vr(QOP + 4, 4)}, {vr(KOP, 4)}']
    pvx = [f'{MF} {vr(LD, 4)}, {vr(PX, 4)}, {vr(ONES, 4)}, 0', f'{MF} {vr(OD, 4)}, {vr(PX, 4)}, {vr(VX, 4)}, 0', f'{MF} {vr(OD + 4, 4)}, {vr(PX, 4)}, {vr(VX + 4, 4)}, 0']
    pvm = [f'{MF16} {vr(LD, 4)}, {vr(PM, 2)}, {vr(ONES, 2)}, {vr(LD, 4)}', f'{MF16} {vr(OD, 4)}, {vr(PM, 2)}, {vr(VM, 2)}, {vr(OD, 4)}',
           f'{MF16} {vr(OD + 4, 4)}, {vr(PM + 2, 2)}, {vr(VM, 2)}, {vr(OD + 4, 4)}']
    v = [sm(s) for s in 'v6a v6b v4a v4b v5a v5b v8a v8b v7a v7b v0a v0b v1a v2a v3a v1b v2b v3b'.split()]
    mf = v[:6] + sx + v[6:11] + smm + v[11:] + pvx + pvm
    def vmw(regs, lg):
        def f():
            k = max([j for j, x in enumerate(P.vm) if x & regs], default=-1)
            P('s_waitcnt ' + (f'vmcnt({len(P.vm) - 1 - k}) ' if k >= 0 else '') + f'lgkmcnt({lg})')
        return f
    W = [QE, ACQ, ACQ + 4, ACK + 4, ACK]
    side = {0: [WW, 's_barrier', f'ds_read_b128 {vr(QOP, 4)}, v{R1}'],
            1: [f'ds_read_b128 {vr(QOP + 4, 4)}, v{R1} offset:128', add(ACK + 4, ACK + 6), cvt(ACK + 2, ACK, ACK + 4)],
            2: [dw(ACK + 2, 256), add(ACK + 5, ACK + 7), cvt(ACK + 3, ACK + 1, ACK + 5)],
            3: [dw(ACK + 3, 256 + PITCH), flip],
            4: [rdA(0), f'v_mov_b32 v{PM + 1}, 0'],
            5: [vmw(quad(KX) | quad(KX + 4), 3), f'v_mov_b32 v{PM + 2}, 0'],
            6: [rdA(1), WW],
            7: ['s_barrier'],
            8: [f'ds_read_b128 {vr(KOP, 4)}, v{R1} offset:256', f'ds_read_b128 {vr(KOP + 4, 4)}, v{R1} offset:384'],
            9: [rdA(2), f'v_add_f32_dpp v{VM}, v{KX + 2}, v{KX} {QP("[2,3,0,1]")}', f'v_add_f32_dpp v{VM + 1}, v{KX + 3}, v{KX + 1} {QP("[2,3,0,1]")}'],
            10: ['s_waitcnt lgkmcnt(4)', f'v_exp_f32_dpp v{VM}, v{VM} {QP("[0,1,0,1]")}'],
            11: [rdA(3), f'v_exp_f32_dpp v{VM + 1}, v{VM + 1} {QP("[0,1,0,1]")}'],
            12: ['s_waitcnt lgkmcnt(2)', cvt(VM, VM, VM + 1)],
            13: [f'ds_write_b32 v{R2}, v{VM} offset:{512 + 4 * w}', z2(QE)],
            14: [F(W0)[0], z2(QE + 2)],
            15: [F(W0)[1]],
            16: [f'v_add_f32_dpp v{S0}, v{KOP + 2}, v{KOP} {QP("[2,3,0,1]")}', f'v_add_f32_dpp v{S1}, v{KOP + 3}, v{KOP + 1} {QP("[2,3,0,1]")}'],
            17: [WW, 's_barrier', f'ds_read_b128 {vr(PX, 4)}, v{R2} offset:512'],
            18: [F(W1)[0], f'v_mul_f32 v{S0}, {sCB}, v{S0}'],
            19: [F(W1)[1], f'v_mul_f32 v{S1}, {sCB}, v{S1}'],
            20: [f'v_exp_f32_dpp v{S0}, v{S0} {QP("[0,1,0,1]")}'],
            21: [vmw(quad(VX) | quad(VX + 4), 2), f'v_exp_f32_dpp v{S1}, v{S1} {QP("[0,1,0,1]")}'],
            22: [add(ACV, ACV + 2), add(ACV + 1, ACV + 3)],
            23: [add(ACV + 4, ACV + 6), add(ACV + 5, ACV + 7)],
            24: [cvt(PM, S0, S1), cvt(VM, ACV, ACV + 1), cvt(VM + 1, ACV + 4, ACV + 5)],
            25: [cvt(PM + 3, S0, S1), z2(ACQ)],
            26: [f'ds_read_b128 {vr(ONES, 4)}, v{A2} offset:{L_TAB}', z2(ACQ + 2)]}
    run(mf, side, 'v')
    def normalise():
        P(f'v_rcp_f32 v{LD + 2}, v{LD}\nv_rcp_f32 v{LD + 3}, v{LD + 1}')
        for r in (0, 1, 4, 5): P(f'v_mul_f32 v{OD + r}, v{LD + 2 + r % 2}, v{OD + r}')
        P(cvt(OD + 2, OD, OD + 4)); P(dw(OD + 2, L_O)); P(cvt(OD + 3, OD + 1, OD + 5)); P(dw(OD + 3, L_O + PITCH))
    normalise()
    mark('owr')
    P.c('exp() ran without a shift: safe only while every row sum and its reciprocal stay below 2^30; otherwise redo with the true row max')
    P(f"""v_max3_f32 v{LD}, v{LD}, v{LD + 1}, v{LD + 2}
    v_max_f32 v{LD}, v{LD}, v{LD + 3}
    v_cmp_le_f32 vcc, {(127 + 30) << 23}, v{LD}""")
    P(z2(ACQ + 4)); P(z2(ACQ + 6))
    P(f's_cbranch_vccnz {Lb("mx")}')
    P.label(Lb('mxok'), keep=True)
    def truemax():
        P.label(Lb('mx'))
        SXD, SMD, PL, MXR = QC, QD, ACV, QE
        P(f's_waitcnt lgkmcnt(0)\ns_barrier')
        for c in range(2):
            P(f'buffer_load_dwordx4 {vr(QA + 4 * c, 4)}, v{A2}, {SWS}, {sKV} offen offset:{1024 * c} sc1')
            P(f'ds_read_b128 {vr(ACQ + 4 * c, 4)}, v{R1} offset:{128 * c}\nds_read_b128 {vr(ACK + 4 * c, 4)}, v{R1} offset:{256 + 128 * c}')
        for d_, a_ in ((SXD, QA), (SMD, ACK)):
            P(f'{MF} {vr(d_, 4)}, {vr(a_, 4)}, {vr(ACQ, 4)}, 0\n{MF} {vr(d_, 4)}, {vr(a_ + 4, 4)}, {vr(ACQ + 4, 4)}, {vr(d_, 4)}')
        for d_ in (SXD, SMD):
            for r in range(2): P(f'v_add_f32_dpp v{d_ + r}, v{d_ + 2 + r}, v{d_ + r} {QP("[2,3,0,1]")}')
            for r in range(2): P(f'v_mov_b32_dpp v{d_ + r}, v{d_ + r} {QP("[0,1,0,1]")}')
        for r in range(2):
            P(f'v_mul_f32 v{SMD + r}, {sCB}, v{SMD + r}\nds_write_b32 v{R2}, v{SXD + r} offset:{L_O + 64 * r + 4 * w}')
        P('s_waitcnt lgkmcnt(0)\ns_barrier')
        for r in range(2): P(f'ds_read_b128 {vr(PL + 4 * r, 4)}, v{R2} offset:{L_O + 64 * r}')
        P('s_waitcnt lgkmcnt(0)\ns_barrier')
        sc = list(range(PL, PL + 8)) + [SMD, SMD + 1]
        P(f'v_max_f32 v{MXR}, v{sc[0]}, v{sc[1]}')
        for j in range(2, 10, 2): P(f'v_max3_f32 v{MXR}, v{MXR}, v{sc[j]}, v{sc[j + 1]}')
        for sw in ('v_permlane16_swap_b32', 'v_permlane32_swap_b32'):
            P(f'v_mov_b32 v{MXR + 1}, v{MXR}\n{sw} v{MXR}, v{MXR + 1}\nv_max_f32 v{MXR}, v{MXR}, v{MXR + 1}')
        for r in sc: P(f'v_sub_f32 v{r}, v{r}, v{MXR}')
        for r in sc: P(f'v_exp_f32 v{r}, v{r}')
        for r in range(4): P(cvt(PX + r, PL + r, PL + 4 + r))
        P(cvt(PM, SMD, SMD + 1)); P(cvt(PM + 3, SMD, SMD + 1))
        P(f'v_mov_b32 v{PM + 1}, 0\nv_mov_b32 v{PM + 2}, 0')
        for r in range(4): P(f'v_mov_b32 v{ONES + r}, 0x3f803f80')
        for x in pvx + pvm: P(x)
        P(f'ds_read_b128 {vr(ONES, 4)}, v{A2} offset:{L_TAB}')
        normalise()
        for r in range(QE, ACQ + 8, 2): P(z2(r))
        P(f's_branch {Lb("mxok")}')
    retry.append(truemax)
    P('s_waitcnt lgkmcnt(0)\ns_barrier')
    mark('obar1')
    ODUP = QA
    for c in range(4): P(f'ds_read_b128 {vr(ODUP + 4 * c, 4)}, v{R2} offset:{L_O + 64 * c}')
    P(f's_cmp_eq_u32 {sSTEP}, {NSEG - 1}\ns_cbranch_scc1 {Lb("last")}')
    order = [0, 1, 2, 3, 4] if heavy else [0, 1, 2, 3]
    mf = [f'{SM} {vr(W[d], 4)}, {vr(ODUP + 4 * c, 4)}, {bsrc(("d", d, c) if d < 4 else ("x", c))}, v{IDX}' for d in order for c in range(4)]
    side = {}
    fl = F(('d', 1, 2)) + F(('d', 1, 3)) + F(('d', 2, 2)) + F(('d', 2, 3)) + (F(('x', 0)) + F(('x', 1)) + F(('x', 2)) + F(('x', 3)) if heavy else [])
    for i, x in zip(T.get('w_at', [0, 1, 2, 3, 3, 4, 4, 5, 7, 8, 9, 11, 12, 12, 13, 15]), fl): addside(side, i, x)
    tagi = lambda d: f'v_bfi_b32 v{W[d]}, 1, {sTAG}, v{W[d]}'
    pst = lambda d: f'buffer_store_dwordx2 {vr(W[d], 2)}, v{A3}, {SWS}, {sPW[d]} offen {stf}'
    held = T.get('hold', ())
    for j, d in enumerate(order[:-1]):
        i = 4 * j + 5
        addside(side, i, cvt(W[d], W[d], W[d] + 1), cvt(W[d] + 1, W[d] + 2, W[d] + 3), tagi(d))
        if d not in held: addside(side, i + 1, pst(d))
    kmrd = f'ds_read_b64 {vr(QE, 2)}, v{R1} offset:{256 + 128 * (w // 2) + 8 * (w % 2)}'
    addside(side, 7, z2(W[3])); addside(side, 8, z2(W[3] + 2))
    if heavy: addside(side, 11, z2(W[4])); addside(side, 14, z2(W[4] + 2))
    n1 = T.get('n1', (2, 2, 2, 2))[w]
    if nunit == 1: SELR, RDS, sets = QA, [QB], [[VX], [ACV], [KX], [QOP]][:n1]
    else: SELR, RDS, sets = VX, [VX + 4, ACV], [[QA, QC], [KX, QOP]][:n1]
    srcs = [sPR, sPRX]
    h1ld = [[f'buffer_load_dwordx4 {vr(dat + 4 * q, 4)}, v{A2}, {SWS}, {srcs[u]} offen offset:{1024 * q} sc1' for u, dat in enumerate(st_) for q in range(2)] for st_ in sets]
    run(mf, side, 'w')
    d = order[-1]
    P(f'ds_read_b128 {vr(SELR, 4)}, v{A2} offset:{L_SEL}'); P(kmrd)
    P(f'v_mov_b64 {vr(QE + 2, 2)}, {vr(VM, 2)}'); P(flip)
    P(cvt(W[d], W[d], W[d] + 1)); P(cvt(W[d] + 1, W[d] + 2, W[d] + 3)); P(tagi(d))
    early = bool(held) and not heavy and 'nocomm' not in opt
    if early:
        dly(T.get('edly', (0, 0))[w])
        for x in h1ld[0]: P(x)
        mark('h1i')
    if held: dly(T.get('sdly', (0, 0, 0, 0))[w])
    for dd in order:
        if dd in held or dd == d: P(pst(dd))
    mark('wend')
    for r in range(ACQ, ACK + 8, 2): P(z2(r))
    inc = 0 if 'samekv' in opt else SEG_STRIDE
    P(f"""s_add_u32 {sKV}, {sKV}, {inc}
    s_add_u32 {sKV2}, {sKV2}, {inc}
    s_add_u32 {sPF}, {sPF}, {inc}
    s_add_u32 {sEXP}, {sEXP}, {SEG_STRIDE}
    s_add_u32 {sSTEP}, {sSTEP}, 1
    s_xor_b32 {sMR}, {sMR}, {MEM_SLOT}
    s_xor_b32 {sM8}, {sM8}, {MEM_SLOT}""")
    if 'diag' in opt:
        P(f's_cmp_eq_u32 {sSTEP}, 4\ns_cbranch_scc0 {Lb("dg")}')
        P.raw(f'  s_memtime s[92:93]\n  s_memrealtime s[88:89]\n  s_mov_b32 s84, 0\n  s_mov_b32 s86, 0\n  s_mov_b32 {sSPIN}, 0')
        P.label(Lb('dg'), keep=True)
    if 'nocomm' in opt:
        dly(100)
        P(f's_branch {Lb("h2")}')
    dly(T.get('h1dly', (20, 40, 40, 58))[w])
    for j in range(1 if early else 0, n1):
        for x in h1ld[j]: P(x)
        if j == 0: mark('h1i')
        if j + 1 < n1: dly(T.get('gap1', 28))
    P('s_waitcnt lgkmcnt(0)')
    if w == 3 and 'standalone' not in opt:
        P(f's_cmp_eq_u32 {sSTEP}, {7 * KV_EARLY - 2}\ns_cbranch_scc1 {Lb("kv")}')
        P.label(Lb('kvb'), keep=True)
        def kv1():
            P.label(Lb('kv'))
            P(f's_lshl_b32 {sT2}, {sH}, 2\ns_add_u32 {sT2}, {sT2}, {DB_P1}')
            P(f's_load_dword {sT3}, s[12:13], {sT2} glc\ns_branch {Lb("kvb")}', nowait=True)
            P.label(Lb('kv2'))
            P(f's_waitcnt lgkmcnt(0)\ns_cmp_ge_u32 {sT3}, 0x700\ns_cbranch_scc1 {Lb("h2w")}')
            P(f's_load_dword {sT3}, s[12:13], {sT2} glc\ns_add_u32 {sSPIN}, {sSPIN}, 1\ns_cmp_lt_u32 {sSPIN}, {SPIN_MAX}\ns_cbranch_scc1 {Lb("kv2")}\ns_branch {Lb("h2w")}', nowait=True)
        retry.append(kv1)
    pub = [(A5, sMW), (A5X, sMWX)]
    def reduce_check(st_, mk=False):
        for u, dat in enumerate(st_):
            rd = RDS[u]
            P(f'{MF} {vr(rd, 4)}, {vr(SELR, 4)}, {vr(dat, 4)}, 0')
            if mk and u == 0: mark('h1d')
            P(f'v_bitop3_b32 v{CK if u == 0 else CK2}, v{dat}, v{dat + 2}, {sTAG} bitop3:0x7e')
            if u: P(f'v_or_b32 v{CK}, v{CK}, v{CK2}')
            P(f'{MF} {vr(rd, 4)}, {vr(SELR, 4)}, {vr(dat + 4, 4)}, {vr(rd, 4)}')
            P(f'v_bitop3_b32 v{CK2}, v{dat + 4}, v{dat + 6}, {sTAG} bitop3:0x7e')
            if u + 1 < len(st_): P(f'v_or_b32 v{CK}, v{CK}, v{CK2}')
        P(f'v_bitop3_b32 v{CK}, v{CK}, v{CK2}, 1 bitop3:0xa8')
        P(f'v_cmp_ne_u32 vcc, 0, v{CK}')
    spec = T.get('spec', 1)
    def publish(spec):
        if spec:
            P('s_cmp_eq_u64 vcc, 0')
            for u in range(nunit): P(f's_cselect_b32 {(sT0, sT1)[u]}, {pub[u][1]}, {WS_SIZE}')
        for rot in (4, 8):
            for rd in RDS:
                for r in range(2): P(f'v_add_f32_dpp v{rd + r}, v{rd + r}, v{rd + r} {DPP(f"row_ror:{rot}")}')
        for u, rd in enumerate(RDS):
            P(cvt(rd, rd, rd + 1))
            P(f'buffer_store_dword v{rd}, v{pub[u][0]}, {SWS}, {(sT0, sT1)[u] if spec else pub[u][1]} offen {stf}')
    def finish():
        mark('pub')
        for u in range(nunit): P(f's_xor_b32 {pub[u][1]}, {pub[u][1]}, {MEM_SLOT}\nbuffer_store_dword v{TT}, v{pub[u][0]}, {SWS}, {pub[u][1]} offen {stf}')
        P(f's_xor_b32 {sTAG}, {sTAG}, 1\ns_branch {Lb("h2")}')
    reduce_check(sets[0], True)
    if spec: publish(True)
    P(f's_cbranch_vccnz {Lb("h1r")}')
    if not spec: publish(False)
    finish()
    regsets = [[Ins(x).ws for x in l] for l in h1ld]
    def rounds():
        for j in range(n1):
            P('s_mov_b64 exec, vcc')
            for x in h1ld[j]: P(x)
            P(f's_mov_b64 exec, -1\n{DIAG}\ns_add_u32 {sSPIN}, {sSPIN}, 1')
            reduce_check(sets[(j + 1) % n1])
            P(f's_cbranch_vccz {Lb("h1p")}')
    P.label(Lb('h1r'), vm=[x for l in regsets[1:] for x in l] + [set()] * (nunit if spec else 0))
    rounds()
    P.label(Lb('h1s'), vm=[x for l in regsets[1:] for x in l])
    rounds()
    P(f's_cmp_lt_u32 {sSPIN}, {SPIN_MAX}\ns_cbranch_scc1 {Lb("h1s")}')
    P.label(Lb('h1p'))
    P('s_nop 2')
    publish(False)
    finish()
    for r in retry: r()
    P.label(Lb('last'))
    P('s_waitcnt vmcnt(0) lgkmcnt(0)')
    P(kmrd); P(f'v_mov_b64 {vr(QE + 2, 2)}, {vr(VM, 2)}')
    P(f's_add_u32 {sEXP}, {sEXP}, {SEG_STRIDE}')
    P(exp_)
    P('s_waitcnt vmcnt(0)\ns_barrier')
    if w == 3:
        P(f'v_mov_b32 v{VM}, {NSEG + 1}\ns_mov_b64 exec, 1\nbuffer_store_dword v{VM}, v{A2}, {SWS}, {sFLG} offen sc1\ns_mov_b64 exec, -1')
```

```python
import re

REG = re.compile(r'(?<![\w.])([vas])(?:\[(\d+):(\d+)\]|(\d+))(?![\w])')
TRANS = ('v_exp_', 'v_log_', 'v_rcp_', 'v_rsq_', 'v_sqrt_', 'v_sin_', 'v_cos_')

def regs_of(op):
    op = op.strip()
    out = []
    for m in REG.finditer(op):
        k = m.group(1)
        if m.group(2) is not None:
            out += [(k, i) for i in range(int(m.group(2)), int(m.group(3)) + 1)]
        else:
            out.append((k, int(m.group(4))))
    if re.search(r'\bvcc\b', op): out += [('s', 106), ('s', 107)]
    if re.search(r'\bvcc_lo\b', op): out += [('s', 106)]
    if re.search(r'\bvcc_hi\b', op): out += [('s', 107)]
    if re.search(r'\bexec\b', op): out += [('s', 126), ('s', 127)]
    if re.search(r'\bm0\b', op): out += [('s', 124)]
    return out

def split_ops(s):
    out, depth, cur = [], 0, ''
    for ch in s:
        if ch in '[(': depth += 1
        if ch in '])': depth -= 1
        if ch == ',' and depth == 0:
            out.append(cur); cur = ''
        else: cur += ch
    if cur.strip(): out.append(cur)
    return [o.strip() for o in out]

class Ins:
    def __init__(self, text):
        self.text = text
        t = text.split(';')[0].strip()
        p = t.split(None, 1)
        self.op = p[0]; rest = p[1] if len(p) > 1 else ''
        ops = split_ops(rest)
        self.ops = ops
        op = self.op
        self.states = 1
        self.kind = 'salu'; self.w = []; self.r = []
        self.passes = 0; self.C = []; self.AB = []
        R = lambda i: regs_of(ops[i]) if i < len(ops) else []
        allr = lambda a: [x for o in ops[a:] for x in regs_of(o)]
        if op.startswith('v_mfma') or op.startswith('v_smfmac'):
            self.kind = 'mfma'
            self.sparse = op.startswith('v_smfmac')
            self.passes = 8 if '32x32' in op else 4
            self.w = R(0)
            if self.sparse:
                self.C = R(0); self.AB = R(1) + R(2) + R(3)
            else:
                self.C = R(3); self.AB = R(1) + R(2)
            self.r = self.C + self.AB
        elif op.startswith('v_'):
            self.kind = 'valu'
            self.dpp = ('quad_perm' in t or 'row_' in t or 'wave_' in t)
            if op.startswith('v_cmpx'):
                self.w = R(0) + [('s', 126), ('s', 127)]; self.r = allr(1)
            elif op.startswith('v_permlane') and 'swap' in op or op.startswith('v_swap'):
                self.w = R(0) + R(1); self.r = R(0) + R(1)
            elif re.match(r'v_(add|sub|subrev|addc|subb)_co', op) or op.startswith('v_mad_u64'):
                self.w = R(0) + R(1); self.r = allr(2)
            elif op == 'v_nop':
                pass
            else:
                self.w = R(0); self.r = allr(1)
                if op.startswith(('v_fmac', 'v_dot2c', 'v_writelane', 'v_pk_fmac')) or self.dpp or 'UNUSED_PRESERVE' in t or 'op_sel' in t and op.startswith('v_cvt'):
                    self.r = self.r + R(0)
        elif op.startswith('ds_'):
            self.kind = 'ds'
            if op.startswith(('ds_read', 'ds_bpermute', 'ds_permute', 'ds_swizzle')) or '_rtn' in op:
                self.w = R(0); self.r = allr(1)
            else:
                self.r = allr(0)
        elif op.startswith(('buffer_', 'global_')):
            self.kind = 'vmem'
            lds = bool(re.search(r'\blds\b', t)) or '_lds_' in op
            self.ldsdma = lds
            if op.startswith(('buffer_inv', 'buffer_wbl2')):
                pass
            elif lds:
                self.r = allr(0) + [('s', 124)]
            elif 'load' in op:
                self.w = R(0); self.r = allr(1)
                if 'd16' in op: self.r = self.r + R(0)
            elif 'atomic' in op:
                self.r = allr(0)
                if re.search(r'\bsc0\b', t): self.w = R(0)
            else:
                self.r = allr(0)
                self.wide = ('x3' in op or 'x4' in op)
                self.data = R(0) if op.startswith('buffer_') else R(1)
        elif op.startswith(('s_load', 's_buffer_load', 's_memtime', 's_memrealtime', 's_atomic')):
            self.kind = 'smem'; self.w = R(0); self.r = allr(1)
        elif op == 's_nop':
            self.kind = 'nop'; self.states = int(ops[0], 0) + 1
        elif op == 's_waitcnt':
            self.kind = 'wait'
        elif op.startswith(('s_cmp', 's_bitcmp', 's_cbranch', 's_branch', 's_barrier', 's_sleep', 's_setprio', 's_endpgm')):
            self.r = allr(0)
            if 'vcc' in op: self.r += [('s', 106), ('s', 107)]
        else:
            self.w = R(0); self.r = allr(1)
            if 'saveexec' in op: self.w += [('s', 126), ('s', 127)]
        self.ws = set(self.w); self.rs = set(self.r)

class TSet(set):
    t = -10 ** 9

class Prog:
    def __init__(self):
        self.lines = []; self.hist = []
        self.vm = []; self.lg = []
        self.smem = set()
        self.t = 0; self.tm = -999; self.tmh = 0; self.tmp = 0
        self.annot = False
        self.uid = 0
    def raw(self, s): self.lines.append(s)
    def c(self, s): self.lines.append('; ' + s)
    def newlabel(self, base):
        self.uid += 1; return f'{base}_{self.uid}'
    def label(self, name, keep=False, vm=None, lg=None):
        self.lines.append(name + ':')
        if not keep:
            self.hist = []
            self.vm = list(vm) if vm else []
            self.lg = list(lg) if lg else []
            self.smem = set()
    def snapshot(self): return (list(self.hist), list(self.vm), list(self.lg), set(self.smem), self.t, self.tm, self.tmh, self.tmp)
    def restore(self, s):
        self.hist, self.vm, self.lg, self.smem = list(s[0]), list(s[1]), list(s[2]), set(s[3])
        self.t, self.tm, self.tmh, self.tmp = s[4:]
    def _put(self, i):
        t = self.t
        if i.kind == 'mfma': t = max(t, self.tm + self.tmp)
        elif i.kind == 'valu': t = max(t, self.tm + self.tmh)
        if i.kind == 'mfma':
            self.tm = t; self.tmp = 4 * i.passes; self.tmh = 12 if i.sparse else 8
        cost = 4 * i.states
        if i.kind == 'valu' and i.op.startswith(TRANS): cost = 8
        if i.kind in ('ds', 'vmem'): cost = 8
        if i.op == 's_barrier' or i.op.startswith('s_cbranch'): cost = 12
        self.t = t + cost
        self.lines.append('  ' + i.text + (f'   ; t={t}' if self.annot else ''))
        if getattr(self, 'trace', None) is not None and i.kind not in ('wait', 'nop'): self.trace.append(i)
        self.hist.append(i)
        if len(self.hist) > 40: self.hist.pop(0)
        if i.kind == 'vmem': self.vm.append(i.ws)
        elif i.kind == 'ds':
            ws = TSet(i.ws); ws.t = t; ws.text = i.text; self.lg.append(ws)
        elif i.kind == 'smem': self.smem |= i.ws | {('x', 0)}
        elif i.kind == 'wait':
            m = re.search(r'vmcnt\((\d+)\)', i.text)
            if m:
                n = int(m.group(1)); self.vm = self.vm[len(self.vm) - n:] if n < len(self.vm) and n > 0 else ([] if n == 0 else self.vm)
            m = re.search(r'lgkmcnt\((\d+)\)', i.text)
            if m:
                n = int(m.group(1))
                if n == 0: self.lg = []; self.smem = set()
                elif not self.smem and n < len(self.lg): self.lg = self.lg[len(self.lg) - n:]
    def _need(self, p, c):
        n = 0; timed = False
        touch = c.rs | c.ws
        if p.kind == 'mfma':
            if p.ws & touch:
                full = {4: 8, 8: 12}[p.passes]
                if c.kind == 'mfma':
                    timed = True
                    if p.ws & set(c.AB): n = full
                    elif p.ws & set(c.C):
                        n = 0 if (set(c.C) == p.ws and c.passes == p.passes) else {4: 6, 8: 10}[p.passes]
                    else:
                        n = 0 if (c.ws == p.ws and c.passes == p.passes) else {4: 6, 8: 10}[p.passes]
                elif c.kind == 'valu': n = full; timed = True
                elif c.kind in ('ds', 'vmem'): n = full
            elif c.kind == 'valu' and set(p.C) & c.ws:
                n = {4: 3, 8: 7}[p.passes]; timed = True
        elif p.kind == 'valu':
            vw = {x for x in p.ws if x[0] != 's'}; sw = {x for x in p.ws if x[0] == 's'}
            if c.kind == 'mfma':
                if vw & c.rs: n = 2
                if ('s', 126) in sw: n = max(n, 4)
            elif c.kind == 'valu':
                if vw & c.rs:
                    if c.dpp and vw & set(regs_of(c.ops[1])): n = 2
                    if c.op.startswith('v_permlane'): n = 2
                    if c.op.startswith(('v_readlane', 'v_readfirstlane')): n = max(n, 1)
                    if p.op.startswith(TRANS): n = max(n, 1)
                    if 'sdwa' in p.op or 'op_sel' in p.text: n = max(n, 1)
                    if p.op.startswith('v_dot') and not (c.op == p.op and not (vw & set(regs_of(c.ops[1]) + regs_of(c.ops[2])))): n = max(n, 3)
                if p.op.startswith('v_dot') and vw & c.ws and c.op != p.op: n = max(n, 3)
                if sw & c.rs:
                    n = max(n, 4 if c.op.startswith(('v_readlane', 'v_writelane', 'v_div_fmas')) else 2)
                if ('s', 126) in sw:
                    if c.dpp: n = max(n, 5)
                    if c.op.startswith(('v_readlane', 'v_readfirstlane', 'v_writelane', 'v_permlane')): n = max(n, 4)
            elif c.kind == 'vmem':
                if sw & c.rs: n = 5
            elif c.kind in ('salu', 'smem'):
                if sw & c.rs and not c.op.startswith('s_cbranch'): n = 1
        elif p.kind == 'vmem':
            if getattr(p, 'wide', False) and set(p.data) & c.ws: n = 2 if c.kind == 'valu' else 1
        elif p.kind == 'salu':
            if ('s', 124) in p.ws and c.kind == 'vmem' and c.ldsdma: n = 1
        return n, timed
    def _dist(self, k, c, timed):
        if not timed:
            return sum(i.states for i in self.hist[k + 1:])
        t = 0; tm = None
        seq = self.hist[k:] + [c]
        for j, i in enumerate(seq):
            if j > 0:
                t += 8 if seq[j - 1].op.startswith(TRANS) else 4 * seq[j - 1].states
                if tm is not None:
                    if i.kind == 'mfma': t = max(t, tm + tp)
                    elif i.kind == 'valu': t = max(t, tm + th)
            if i.kind == 'mfma': tm = t; tp = 4 * i.passes; th = 12 if i.sparse else 8
        return t // 4 - 1
    def __call__(self, text, nowait=False):
        for line in text.split('\n'):
            line = line.strip()
            if not line: continue
            if line.startswith(';'): self.raw(line); continue
            self._one(Ins(line), nowait)
    def wait_writes(self):
        k = max([j for j, x in enumerate(self.lg) if not x], default=-1)
        if k >= 0: self(f's_waitcnt lgkmcnt({0 if self.smem else min(15, len(self.lg) - 1 - k)})')
    def prewait(self, text, ahead=(), age=100):
        i = Ins(text)
        for x in ahead:
            a = Ins(x)
            k = max([j for j, q in enumerate(self.lg) if q & a.rs], default=-1)
            if k >= 0 and self.t - getattr(self.lg[k], 't', -10 ** 9) >= age: i.rs = i.rs | (a.rs & self.lg[k])
        self._waits(i)
    def _waits(self, i):
        w = []
        tv = i.rs | (i.ws if i.kind != 'vmem' else set())
        k = max([j for j, s in enumerate(self.vm) if s & tv], default=-1)
        if k >= 0: w.append(f'vmcnt({min(63, len(self.vm) - 1 - k)})')
        tl = i.rs | (i.ws if i.kind != 'ds' else set())
        k = max([j for j, s in enumerate(self.lg) if s & tl], default=-1)
        if self.smem & (i.rs | i.ws) or (k >= 0 and self.smem): w.append('lgkmcnt(0)')
        elif k >= 0: w.append(f'lgkmcnt({min(15, len(self.lg) - 1 - k)})')
        if w: self._put(Ins('s_waitcnt ' + ' '.join(w)))
    def _one(self, i, nowait):
        if not nowait and i.kind not in ('wait', 'nop'): self._waits(i)
        while True:
            short = 0
            for k, p in enumerate(self.hist):
                n, timed = self._need(p, i)
                if n and p.kind == 'mfma' and i.kind in ('ds', 'vmem'):
                    redone = set().union(*[q.ws for q in self.hist[k + 1:] if q.kind == 'valu'])
                    if not (p.ws & (i.rs | i.ws)) - redone: n = 0
                if n:
                    d = self._dist(k, i, timed)
                    if d < n:
                        add = 1
                        while True:
                            self.hist.append(Ins(f's_nop {add - 1}'))
                            d2 = self._dist(k, i, timed)
                            self.hist.pop()
                            if d2 >= n or add >= 16: break
                            add += 1
                        short = max(short, add)
            if not short: break
            self._put(Ins(f's_nop {short - 1}'))
        self._put(i)
    def text(self): return '\n'.join(self.lines) + '\n'

def vr(b, n=1, k='v'):
    return f'{k}{b}' if n == 1 else f'{k}[{b}:{b + n - 1}]'
```

```python
from asmgen import *
from layout import *

QA, QB, QC, QD, QE = 0, 4, 8, 12, 16
ACQ, ACK, ACV, KX, VX, QOP, ONES, VM = 20, 28, 36, 44, 52, 60, 68, 72
IDX, A1, A2, R1, R2, R3 = 74, 75, 76, 77, 78, 79
A3, A5, A5X, TT = ONES, ONES + 1, ONES + 2, ONES + 3
sW, sH, sT0, sT1, sT2, sT3 = 's52', 's53', 's54', 's55', 's56', 's57'
sKV, sKV2, sPR, sPRX, sMW, sMWX, sMR, sM8, sSTEP, sSPIN, sEXP, sCB, sPF, sFLG, sTAG = ['s%d' % i for i in range(58, 73)]
sPW = ['s73', 's74', 's75', 's76', 's77']
sMODE, sDM = 's3', 's85'
L_ROW, PITCH = 0, 576
L_MEM = 8 * PITCH
L_O = L_MEM + 4096
L_TAB = L_MEM + 9216
L_SEL = L_TAB + 1024
L_SCR = L_SEL + 1024
L_ZERO = L_SEL + 32
L_W = 16384
SM = 'v_smfmac_f32_16x16x64_bf16'
MF = 'v_mfma_f32_16x16x32_bf16'
MF16 = 'v_mfma_f32_16x16x16_bf16'

blocks_lds = [('k', 0), ('k', 1), ('k', 4), ('q', 6), ('k', 5), ('x',), ('d', 0, 0), ('d', 1, 1), ('d', 2, 1)]
blocks_reg = [b for b in [(m, t) for m in 'qkv' for t in range(9)] + [('d', d, b) for d in range(4) for b in (0, 1)] if b not in blocks_lds]
def block_ops(b):
    if b[0] in 'qkv': return [(b[0], b[1], 0), (b[0], b[1], 1)]
    if b[0] == 'x': return [('x', c) for c in range(4)]
    return [('d', b[1], 2 * b[2]), ('d', b[1], 2 * b[2] + 1)]
HOME = {}
_free = [('v', 80 + 8 * i) for i in range(22)] + [('a', 8 * i) for i in range(32)]
for b in blocks_reg:
    for o in block_ops(b): HOME[o] = _free.pop(0)
assert not _free
for j, b in enumerate(blocks_lds):
    for x, o in enumerate(block_ops(b)): HOME[o] = ('lds', j, x)

def lds_fetch(o, dst, w):
    _, j, x = HOME[o]
    off = L_W + j * 16384 + (w * 4096 if o[0] != 'x' else (w - 2) * 8192) + x * 2048
    if off < 0x10000: base = A2
    elif off < 0x18000: base = A1; off -= 0x10000
    else: base = A1; off -= 0x18000
    return [f'ds_read_b128 {vr(dst, 4)}, v{base} offset:{off}', f'ds_read_b128 {vr(dst + 4, 4)}, v{base} offset:{off + 1024}']

def prologue(P):
    P.c('---- chain prologue: per-lane constants')
    L, N, G, T0, T1, T2, T3 = 0, 1, 2, 3, 4, 5, 6
    DQ, DX, DD, RQ0, RQ1, RX0, RD, RA, RB = 8, 9, 10, 11, 12, 13, 14, 15, 16
    P(f'''v_and_b32 v{L}, 63, v0
    v_and_b32 v{N}, 15, v{L}
    v_lshrrev_b32 v{G}, 4, v{L}''')
    P(f'''v_and_b32 v{T0}, 1, v{G}
    s_lshl_b32 {sT0}, {sW}, 1
    v_add_u32 v{T0}, {sT0}, v{T0}
    v_lshlrev_b32 v{T0}, 1, v{T0}
    v_xor_b32 v{T0}, v{T0}, v{N}
    v_lshlrev_b32 v{T0}, 4, v{T0}
    v_lshl_add_u32 v{DQ}, v{G}, 13, v{T0}''')
    blocks = (getattr(P, 'border', None) or (lambda b: b))(blocks_reg) + blocks_lds
    sHQ, sHO, sM = 's78', 's79', sT3
    P(f'''s_lshl_b32 {sHQ}, {sH}, 8
    s_lshl_b32 {sT0}, {sW}, 15
    s_add_u32 {sHQ}, {sHQ}, {sT0}
    s_mul_i32 {sHO}, {sH}, 147456
    s_lshl_b32 {sM}, {sW}, 10
    s_add_u32 {sM}, {sM}, {L_W}''')
    def dma(j):
        b = blocks[j]; slot = j % 9
        for y in range(4):
            if b[0] in 'qkv':
                srd, va, base, off = {'q': SWQ, 'k': SWK, 'v': SWV}[b[0]], DQ, sHQ, (64 * b[1] + 16 * y) * 8192
            elif b[0] == 'x':
                srd, va, base, off = SWO, DX, sHO, 32 * y * 1152 + 1024
            else:
                srd, va, base, off = SWO, DD, sHO, (64 * b[2] + 8 * (y & 1) + 32 * (y >> 1)) * 1152 + 256 * b[1]
            P(f'''s_add_u32 m0, {sM}, {slot * 16384 + y * 4096}
            s_add_u32 {sT0}, {base}, {off}
            buffer_load_dwordx4 v{va}, {srd}, {sT0} offen {P.wfl} lds''')
    marks = {}
    cnt = [0]
    def note(n): cnt[0] += n
    if getattr(P, 'plog', False): P(f's_memrealtime s[86:87]\ns_waitcnt lgkmcnt(0)\nv_writelane_b32 v34, s86, 0')
    if P.entry_extra and P.cpf0 == 0: note(P.entry_extra())
    WIN = P.win
    for j in range(WIN):
        dma(j); note(4); marks[j] = cnt[0]
        if P.entry_extra and j + 1 == P.cpf0: note(P.entry_extra())
        if j == 0 and P.tlb:
            P.c('each member looks up a different page once, so the die\'s shared TLB fills in parallel (speed only)')
            P(f's_and_b32 {sT1}, {sH}, 7\ns_lshl_b32 {sT1}, {sT1}, 20\ns_lshr_b32 {sT2}, {sH}, 3\ns_cmp_eq_u32 {sW}, 3\ns_cselect_b32 {sT2}, {sT2}, 9\nv_mov_b32 v7, 0\ns_mov_b64 exec, 1')
            for m, srd in enumerate((SWQ, SWK, SWV, SWO)):
                P(f's_cmp_eq_u32 {sT2}, {m}\ns_cselect_b32 {sT0}, {sT1}, {WS_SIZE}\nbuffer_load_dword v36, v7, {srd}, {sT0} offen', nowait=True)
            P(f's_lshl_b32 {sT2}, {sT2}, 21\ns_cmp_eq_u32 {sT1}, {7 << 20}\ns_cselect_b32 {sT0}, {sT2}, {WS_SIZE}\ns_cmp_eq_u32 {sW}, 3\ns_cselect_b32 {sT0}, {sT0}, {WS_SIZE}')
            P(f'buffer_load_dword v36, v7, {SWS}, {sT0} offen offset:{PART_DEST - 128} sc1\ns_mov_b64 exec, -1', nowait=True)
    P(f'''v_lshlrev_b32 v{A2}, 4, v{L}
    v_add_u32 v{A1}, 0x10000, v{A2}
    ; i(n) = 2*(n>>2) + (n&1), half = (n>>1)&1
    v_lshrrev_b32 v{T0}, 2, v{N}
    v_and_b32 v{T1}, 1, v{N}
    v_lshl_add_u32 v{T0}, v{T0}, 1, v{T1}
    v_bfe_u32 v{T1}, v{N}, 1, 1
    v_mul_u32_u24 v{IDX}, 0xaaaa, v{T1}
    v_add_u32 v{IDX}, 0x4444, v{IDX}
    v_mul_u32_u24 v{T2}, {PITCH}, v{T0}
    v_add_u32 v{T2}, {L_ROW}, v{T2}
    v_lshl_add_u32 v{R2}, v{G}, 4, v{T2}
    v_lshl_add_u32 v{R1}, v{G}, 5, v{T2}
    v_lshl_add_u32 v{R1}, v{T1}, 4, v{R1}
    v_mul_u32_u24 v{RA}, 1152, v{T0}
    v_lshl_add_u32 v{RA}, v{G}, 5, v{RA}
    v_lshl_add_u32 v{RA}, v{T1}, 4, v{RA}
    s_lshl_b32 {sT0}, {sW}, 8
    buffer_load_dwordx4 v[20:23], v{RA}, {SMEM0}, {sT0} offen
    buffer_load_dwordx4 v[24:27], v{RA}, {SMEM0}, {sT0} offen offset:128
    buffer_load_dwordx4 v[28:31], v{RA}, {SMEM0}, 0 offen offset:1024''')
    P(f'''; R3
    v_mul_u32_u24 v{R3}, {2 * PITCH}, v{G}
    v_lshl_add_u32 v{R3}, v{N}, 2, v{R3}
    s_lshl_b32 {sT0}, {sW}, 6
    s_add_u32 {sT0}, {sT0}, {L_ROW}
    v_add_u32 v{R3}, {sT0}, v{R3}
    v_lshrrev_b32 v{T2}, 3, v{L}
    v_mul_u32_u24 v{A3}, {PART_DEST}, v{T2}
    v_and_b32 v{T2}, 7, v{L}
    v_lshl_add_u32 v{A3}, v{T2}, 3, v{A3}
''')
    if CYC[0]:
        P(f'''; A3 = j*4096 + (((j + (h>>2)) & 7) ^ j)*256 + (h&3)*64 + (l&7)*8, j = l>>3
        v_lshrrev_b32 v{T3}, 3, v{L}
        s_lshr_b32 {sT0}, {sH}, 2
        v_add_u32 v{A3}, {sT0}, v{T3}
        v_and_b32 v{A3}, 7, v{A3}
        v_xor_b32 v{A3}, v{A3}, v{T3}
        v_lshlrev_b32 v{A3}, 8, v{A3}
        v_lshl_add_u32 v{A3}, v{T3}, 12, v{A3}
        v_lshl_add_u32 v{A3}, v{T2}, 3, v{A3}
        s_and_b32 {sT0}, {sH}, 3
        s_lshl_b32 {sT0}, {sT0}, 6
        v_add_u32 v{A3}, {sT0}, v{A3}''')
    P(f'''v_and_b32 v{T2}, 1, v{G}
    v_lshlrev_b32 v{T2}, 4, v{T2}
    v_lshl_add_u32 v{T2}, v{N}, 2, v{T2}
    v_mov_b32 v{T3}, 0x40000000
    v_cmp_lt_u32 vcc, 3, v{N}
    v_cndmask_b32 v{T2}, v{T2}, v{T3}, vcc
    v_lshrrev_b32 v{T3}, 1, v{G}
    v_lshl_add_u32 v{A5}, v{T3}, 10, v{T2}
    v_lshl_add_u32 v{A5X}, v{T3}, 8, v{T2}
    v_mov_b32 v{TT}, -1
    ds_write_b128 v{A2}, {vr(ONES, 4)} offset:{L_TAB}
    v_and_b32 v{T2}, 3, v{N}
    v_lshrrev_b32 v{T3}, 2, v{N}
    v_lshl_add_u32 v{T2}, v{T2}, 2, v{T3}
    v_and_b32 v{T3}, 1, v{T2}
    v_lshlrev_b32 v{T3}, 4, v{T3}
    v_mov_b32 v7, 0x3f80
    v_lshlrev_b32 v{T3}, v{T3}, v7
    v_lshrrev_b32 v{T2}, 1, v{T2}''')
    for q in range(4):
        P(f'v_cmp_eq_u32 vcc, {q}, v{T2}\nv_cndmask_b32 v{40 + q}, 0, v{T3}, vcc')
    P(f'ds_write_b128 v{A2}, v[40:43] offset:{L_SEL}')
    P.c('DMA source offsets')
    P(f'''s_and_b32 {sT0}, {sW}, 1
    s_lshr_b32 {sT1}, {sW}, 1
    v_lshrrev_b32 v{T0}, 3, v{L}
    v_and_b32 v{T1}, 1, v{T0}
    v_lshlrev_b32 v{T1}, 4, v{T1}
    v_and_b32 v{T2}, 6, v{T0}
    v_add_u32 v{T1}, v{T1}, v{T2}
    s_lshl_b32 {sT2}, {sT1}, 3
    s_add_u32 {sT2}, {sT2}, {sT0}
    v_add_u32 v{T1}, {sT2}, v{T1}
    v_mul_u32_u24 v{T1}, 1152, v{T1}
    v_and_b32 v{T2}, 2, v{T0}
    v_lshlrev_b32 v{T2}, 1, v{T2}
    v_and_b32 v{T3}, 7, v{L}
    v_xor_b32 v{T3}, v{T3}, v{T2}
    v_lshl_add_u32 v{DX}, v{T3}, 4, v{T1}
    v_and_b32 v{T1}, 1, v{G}
    v_lshlrev_b32 v{T1}, 4, v{T1}
    v_and_b32 v{T2}, 2, v{G}
    v_add_u32 v{T1}, v{T1}, v{T2}
    s_lshl_b32 {sT2}, {sT1}, 2
    s_add_u32 {sT2}, {sT2}, {sT0}
    v_add_u32 v{T1}, {sT2}, v{T1}
    v_mul_u32_u24 v{T1}, 1152, v{T1}
    v_lshlrev_b32 v{T3}, 1, v{G}
    v_xor_b32 v{T3}, v{T3}, v{N}
    v_lshl_add_u32 v{DD}, v{T3}, 4, v{T1}''')
    P.c('transposing-read addresses; r = n>>2, c = n&3')
    B0, B1, G0, G1, C = 17, 18, 19, 72, 73
    P(f'''v_bfe_u32 v{B0}, v{N}, 2, 1
    v_bfe_u32 v{B1}, v{N}, 3, 1
    v_and_b32 v{G0}, 1, v{G}
    v_lshrrev_b32 v{G1}, 1, v{G}
    v_and_b32 v{C}, 3, v{N}
    v_lshl_add_u32 v{T0}, v{G0}, 1, v{B0}
    v_lshl_add_u32 v{T3}, v{B1}, 2, v{T0}
    ; qkv: row = 16*g1 + 4*g0 + b0 + 8*b1 ; byte = (64w + 8c) ^ (32*rho3)
    v_lshl_add_u32 v{T1}, v{G1}, 4, v{B0}
    v_lshl_add_u32 v{T1}, v{G0}, 2, v{T1}
    v_lshl_add_u32 v{T1}, v{B1}, 3, v{T1}
    v_lshlrev_b32 v{T1}, 8, v{T1}
    s_lshl_b32 {sT0}, {sW}, 6
    v_lshl_add_u32 v{T2}, v{C}, 3, {sT0}
    v_lshlrev_b32 v7, 5, v{T3}
    v_xor_b32 v{T2}, v{T2}, v7
    v_add_u32 v{RQ0}, v{T1}, v{T2}
    v_xor_b32 v{RQ1}, 32, v{RQ0}
    ; x: (rho2 + 4*g1)*128 + ((2*(w&1) + b1) ^ (2*g0))*32 + 8c
    v_lshl_add_u32 v{T1}, v{G1}, 2, v{T0}
    v_lshlrev_b32 v{T1}, 7, v{T1}
    v_lshl_add_u32 v{T1}, v{C}, 3, v{T1}
    s_and_b32 {sT0}, {sW}, 1
    v_xor_b32 v7, {sT0}, v{G0}
    v_lshl_add_u32 v7, v7, 1, v{B1}
    v_lshl_add_u32 v{RX0}, v7, 5, v{T1}
    v_lshlrev_b32 v{T1}, 11, v{G1}
    v_lshl_add_u32 v{T1}, v{C}, 3, v{T1}
    v_lshl_add_u32 v{T2}, v{T0}, 8, v{T1}
    v_lshl_add_u32 v7, v{B1}, 2, {sW}
    v_xor_b32 v7, v7, v{T0}
    v_lshl_add_u32 v{RD}, v7, 5, v{T2}''')
    P.c('scalar bases')
    P(f'''s_lshl_b32 {sT0}, {sH}, 14
    s_lshl_b32 {sT1}, {sW}, 11
    s_add_u32 {sT0}, {sT0}, {WS_KVX}
    s_add_u32 {sKV}, {sT0}, {sT1}
    s_add_u32 {sKV2}, {sKV}, 8192
    s_lshl_b32 {sT1}, {sW}, 12
    s_add_u32 {sPF}, {sT0}, {sT1}
    s_add_u32 {sPF}, {sPF}, {SEG_STRIDE}
    s_lshl_b32 {sT0}, {sH}, 12
    s_lshl_b32 {sT1}, {sW}, 10
    s_add_u32 {sT0}, {sT0}, {sT1}
    s_add_u32 {sEXP}, {sT0}, {WS_KVM - SEG_STRIDE}
    s_lshl_b32 {sT0}, {sH}, 6
    s_mul_i32 {sT1}, {sW}, {8 * PART_DEST}
    s_add_u32 {sT1}, {sT0}, {sT1}
    s_add_u32 {sPW[0]}, {sT1}, {WS_PART}
    s_add_u32 {sPW[1]}, {sT1}, {WS_PART + PART_CHUNK}
    s_add_u32 {sPW[2]}, {sT1}, {WS_PART + 2 * PART_CHUNK}
    s_add_u32 {sPW[3]}, {sT1}, {WS_PART + 3 * PART_CHUNK}
    s_and_b32 {sT2}, {sW}, 1
    s_mul_i32 {sT1}, {sT2}, {8 * PART_DEST}
    s_add_u32 {sT1}, {sT0}, {sT1}
    s_add_u32 {sPW[4]}, {sT1}, {WS_PART + 4 * PART_CHUNK}
    s_mul_i32 {sT0}, {sW}, {PART_CHUNK}
    s_mul_i32 {sT1}, {sH}, {PART_DEST}
    s_add_u32 {sT0}, {sT0}, {sT1}
    s_add_u32 {sPR}, {sT0}, {WS_PART}
    s_and_b32 {sT2}, {sH}, 15
    s_mul_i32 {sT1}, {sT2}, {PART_DEST}
    s_add_u32 {sPRX}, {sT1}, {WS_PART + 4 * PART_CHUNK}
''')
    if CYC[0]:
        P(f's_lshr_b32 {sT0}, {sW}, 1\ns_lshl_b32 {sT0}, {sT0}, 15\ns_and_b32 {sT1}, {sW}, 1\ns_lshl_b32 {sT1}, {sT1}, 11\ns_add_u32 {sT0}, {sT0}, {sT1}')
        for c in range(4): P(f's_add_u32 {sPW[c]}, {sT0}, {WS_PART + c * 65536}')
        P(f's_add_u32 {sPW[4]}, {sT1}, {WS_PART + 8 * 32768}')
        part_inbox(P, sH, sW, sPR, sPRX, sT0, sT1)
    P(f'''; mem ring: publishes start on slot 1
    s_lshl_b32 {sT0}, {sW}, 11
    s_add_u32 {sMR}, {sT0}, {WS_MEM}
    s_mov_b32 {sM8}, {WS_MEM + 8192}
    s_lshl_b32 {sT1}, {sH}, 5
    s_add_u32 {sT0}, {sT0}, {sT1}
    s_add_u32 {sMW}, {sT0}, {WS_MEM + MEM_SLOT}
    s_lshr_b32 {sT0}, {sT2}, 3
    s_lshl_b32 {sT0}, {sT0}, 9
    s_and_b32 {sT1}, {sT2}, 7
    s_lshl_b32 {sT1}, {sT1}, 5
    s_add_u32 {sT0}, {sT0}, {sT1}
    s_add_u32 {sMWX}, {sT0}, {WS_MEM + MEM_SLOT + 8192}
    s_mov_b32 {sSTEP}, 0
    s_mov_b32 {sSPIN}, 0
    s_mov_b32 {sTAG}, 0
    s_mov_b32 {sCB}, {f32bits(CB)}''')
    TMP = [36, 52]
    pend = None
    for j, b in enumerate(blocks):
        P(f's_waitcnt vmcnt({cnt[0] - marks[j]}) lgkmcnt(0)')
        P('s_barrier')
        if getattr(P, 'plog', False):
            P(f's_memrealtime s[86:87]\ns_waitcnt lgkmcnt(0)\nv_writelane_b32 v34, s86, {j + 1}')
        if pend: pend(); pend = None
        if j + WIN < 36:
            dma(j + WIN); note(4); marks[j + WIN] = cnt[0]
        if P.cpf and j in (8, 14, 20):
            P.c('keep the code ahead in L2 while the weights stream through it')
            P(f's_getpc_b64 s[80:81]\nv_lshlrev_b32 v7, 2, v{A2}\nglobal_load_dword v19, v7, s[80:81] offset:1024', nowait=True); note(1)
        if not P.standalone and j == P.clj: claim(P); note(1); clm = cnt[0]
        if j == P.verj and not P.standalone: verify(P, 'C_ver', cnt[0] - clm, 16320)
        if j == P.armj and P.standalone:
            P.c('arm this wave\'s partial-sum inbox, the ring slots (heads 0 and 1 do that); all written through')
            P(f"""v_mov_b32 v4, -1
            v_mov_b32 v5, -1
            v_mov_b64 v[6:7], v[4:5]
            s_lshl_b32 {sT2}, {sH}, 14
            s_xor_b32 {sT0}, {sMR}, {sT2}
            s_xor_b32 {sT1}, {sM8}, {sT2}
            s_cmp_lt_u32 {sH}, 2
            s_cselect_b32 {sT0}, {sT0}, {WS_SIZE}
            s_cselect_b32 {sT1}, {sT1}, {WS_SIZE}
            s_lshr_b32 {sT2}, {sH}, 4
            s_or_b32 {sT2}, {sT2}, {sW}
            s_cmp_eq_u32 {sT2}, 0
            s_cselect_b32 {sT2}, {sPRX}, {WS_SIZE}""")
            for sb_, o in ((sPR, 0), (sPR, 1024), (sT2, 0), (sT2, 1024), (sT0, 0), (sT0, 1024), (sT1, 0)):
                P(f'buffer_store_dwordx4 v[4:7], v{A2}, {SWS}, {sb_} offen offset:{o} sc1')
        if j == P.armj:
            P.c('mem0 goes straight into the staging space')
            for r in range(20, 32): P(f'v_min_u32 v{r}, -2, v{r}')
            P(f's_lshl_b32 {sT0}, {sW}, 11\nv_add_u32 v3, {sT0}, v{A2}')
            P(f'ds_write_b128 v3, v[20:23] offset:{L_MEM}\nds_write_b128 v3, v[24:27] offset:{L_MEM + 1024}\nds_write_b128 v{A2}, v[28:31] offset:{L_MEM + 8192}')
        if j == P.armj + 9 and P.standalone:
            P.c('every wave has waited for those stores (before this iteration\'s barrier)')
            P(f's_cmp_eq_u32 {sW}, 0\ns_cselect_b32 {sT0}, {DB_ARMED}, 0x1000\nv_mov_b32 v32, 1\nv_mov_b32 v7, 0')
            P(f's_mov_b64 exec, 1\nbuffer_atomic_add v32, v7, {SDBG}, {sT0} offen\ns_mov_b64 exec, -1'); note(1)
        if j == P.tchj:
            P.c('bring the ring slots, and the loop code, into L2 (speed only)')
            P(f'v_lshlrev_b32 v7, 3, v{A2}\ns_lshl_b32 {sT0}, {sW}, 13\ns_add_u32 {sT0}, {sT0}, {WS_MEM}')
            P(f's_bitcmp1_b32 {sW}, 0\ns_cselect_b64 exec, 0xff, -1\nbuffer_load_dword v35, v7, {SWS}, {sT0} offen sc1\ns_mov_b64 exec, -1', nowait=True)
            for s in P.tch:
                P(f'v_lshlrev_b32 v7, 1, v{A2}\nbuffer_load_dword v35, v7, {SWS}, {dict(p=sPR, x=sPRX, k=sKV, v=sKV2)[s]} offen sc1', nowait=True); note(1)
            if P.cpf:
                P(f's_getpc_b64 s[80:81]')
                P.label('C_pc', keep=True)
                P(f's_mov_b32 {sT1}, (L_w0 - C_pc)')
                for m in range(1, 4): P(f's_cmp_eq_u32 {sW}, {m}\ns_cselect_b32 {sT1}, (L_w{m} - C_pc), {sT1}')
                P(f'v_lshl_add_u32 v7, v{A2}, 3, {sT1}\nglobal_load_dword v35, v7, s[80:81]', nowait=True); note(1)
        if j == P.statj and not P.standalone:
            P(f'v_lshrrev_b32 v20, 2, v{A2}')
            P(f'buffer_load_dword v21, v20, {SDBG}, 0 offen sc1'); note(1)
        sb = L_W + (j % 9) * 16384
        if b[0] in 'qkv':
            P(f'v_add_u32 v{RA}, {sb}, v{RQ0}\nv_add_u32 v{RB}, {sb}, v{RQ1}')
        else:
            P(f'v_add_u32 v{RA}, {sb}, v{RX0 if b[0] == "x" else RD}')
        if b[0] == 'x': P('s_waitcnt lgkmcnt(0)')
        acts = []
        for x, o in enumerate(block_ops(b)):
            hm = HOME[o]
            k, r = hm if hm[0] in 'va' else ('v', (TMP[j % 2] if b[0] != 'x' else 36) + 8 * x)
            for q in (0, 2, 4, 6):
                if b[0] in 'qkv': ad, off = (RA, RB)[x], (32 * (q // 4) + 2 * ((q % 4) // 2)) * 256
                elif b[0] == 'x': ad, off = RA, ((q % 4) // 2 + 2 * (q // 4) + 4 * x) * 1024
                else: ad, off = RA, ((q % 4) // 2 + 4 * (q // 4) + 8 * x) * 1024
                P(f'ds_read_b64_tr_b16 {vr(r + q, 2, k)}, v{ad} offset:{off}')
            if hm[0] == 'lds': acts.append((x, r))
        if acts:
            def mk(acts=acts, sb=sb, b=b):
                if b[0] == 'x': P(f's_and_b32 {sT0}, {sW}, 1\ns_lshl_b32 {sT0}, {sT0}, 13')
                else: P(f's_lshl_b32 {sT0}, {sW}, 12')
                P(f's_add_u32 {sT0}, {sT0}, {sb}\nv_add_u32 v7, {sT0}, v{A2}')
                for x, r in acts:
                    for hf in range(2): P(f'ds_write_b128 v7, {vr(r + 4 * hf, 4)} offset:{x * 2048 + hf * 1024}')
            pend = mk
    P('s_waitcnt vmcnt(0) lgkmcnt(0)\ns_barrier')
    pend()
    P('s_waitcnt lgkmcnt(0)')
    if getattr(P, 'plog', False):
        P(f's_lshl_b32 {sT0}, {sH}, 10\ns_add_u32 {sT0}, {sT0}, {WS_STAMP + 0x50000}\nbuffer_store_dword v34, v{A2}, {SWS}, {sT0} offen\ns_waitcnt vmcnt(0)')

def ready(P):
    P.c('go once every head\'s first k_x / v_x segments are complete (their writers also armed the hand-off buffers);')
    P.c('plain stores are enough only if all 32 slots were claimed on die 0, otherwise write through')
    P('s_branch C_rd1')
    P.label('C_rd0')
    P(f's_sleep 2\nbuffer_load_dword v21, v20, {SDBG}, 0 offen sc1\ns_waitcnt vmcnt(0)')
    P.label('C_rd1')
    P(f"""v_and_b32 v22, 0xff, v21
    v_cmp_gt_u32 vcc, 7, v22
    v_readlane_b32 {sT2}, v21, 0
    s_mov_b32 {sMODE}, 1
    s_add_u32 {sSPIN}, {sSPIN}, 1
    s_cmp_ge_u32 {sSPIN}, {SPIN_MAX}
    s_cbranch_scc1 C_rd2
    s_cmp_lg_u32 vcc_hi, 0
    s_cbranch_scc1 C_rd0
    s_mov_b32 {sMODE}, 0
    s_cmp_eq_u32 {sT2}, -1
    s_cbranch_scc1 C_rd2
    s_mov_b32 {sMODE}, 1
    v_readlane_b32 {sT0}, v21, {DB_SUR // 4}""")
    for x in range(8): P(f'v_readlane_b32 {sT1}, v21, {x}\ns_bcnt1_i32_b32 {sT1}, {sT1}\ns_add_u32 {sT0}, {sT0}, {sT1}')
    P(f's_cmp_lt_u32 {sT0}, 256\ns_cbranch_scc1 C_rd0')
    P.label('C_rd2')

def is_valu(s): return s.startswith('v_')

PLACE = (('SwKwdwf', 'se', '', 'awy', 'bwzt', 'cw'), ('SwKwdwsf', '', 'awe', 'bwy', 'cwzt', ''), ('SwKwdwcw', 'sf', 'e', 'awzt', 'bwy', ''), ('SwKwcwdwsf', 'yze', 't', 'ab', '', ''))
VAT = dict(wq=0, bq=0, q0=0, q1=1, ka0=1, kc0=1, kw0=2, ka1=2, kc1=2, kw1=3, fl=3, r0=4, z1=4, z2=5, r1=6, wk=6, bk=7, k0=8, k1=8, r2=9, xa0=9, xa1=9, xe0=10, r3=11,
           xe1=11, xc=12, pw=13, ze0=13, w00=14, ze1=14, w01=15, on=15, ma0=16, ma1=16, wp=17, bp=17, pr=17, w10=18, mm0=18, w11=19, mm1=19, me0=20, me1=21,
           va0=22, va1=22, va2=23, va3=23, mc0=24, vc0=24, vc1=24, mc1=25, zq0=25, tab=26, zq1=26)
TRACE = {}
DS_AT = dict(k0b=(0, 1), k2a=(3, 4), r3=5, k2b=(8, 9), k4a=(10, 11), r5=14, r7=19, k4b=(15, 17), r6=16, k5a=(18, 20), r8=21, k5b=(22, 23))
def step_loop(P, w, tag, opt=(), T=None):
    T = T or {}
    stf = P.stf
    heavy = w >= 2
    DIAG = 's_add_u32 s84, s84, 1' if 'diag' in opt else ''
    Lb = lambda s: f'C{tag}{w}_{s}'
    DPP = lambda p: f'{p} row_mask:0xf bank_mask:0xf'
    QP = lambda p: DPP(f'quad_perm:{p}')
    AGE = T.get('age', 96)
    def mark(name):
        if 'marks' in opt and name in T.get('marks', ()):
            k = T['marks'].index(name)
            P.raw(f'  s_memtime s[{24 + 2 * k}:{25 + 2 * k}]   ; {name}')
    def run(mf, side, pre):
        for i, m in enumerate(mf):
            P(m); t0 = P.tm
            mark(f'{pre}{i}')
            ss = side.get(i, [])
            nv = [s for s in ss if callable(s) or not is_valu(s)]; va = [s for s in ss if not callable(s) and is_valu(s)]
            for s in nv: s() if callable(s) else P(s)
            if i + 1 < len(mf):
                n0 = len(P.lines)
                room = P.t + 4 <= t0 + (P.tmh if va else 16)
                snap = P.snapshot(); P.prewait(mf[i + 1]); need = len(P.lines) > n0
                del P.lines[n0:]; P.restore(snap)
                if need or room: P.prewait(mf[i + 1], mf[i + 2:i + 5], AGE)
            for s in va: P(s)
    def addside(side, i, *ins): side[i] = side.get(i, []) + list(ins)
    def dly(n):
        while n > 0:
            P(f's_nop {min(n, 16) - 1}'); n -= 16
    bufs = {}
    for m, t in (('k', 0), ('k', 1), ('k', 4), ('q', 6), ('k', 5)): bufs[(m, t, 0)] = ACV; bufs[(m, t, 1)] = QOP
    bufs.update({('d', 0, 0): KX, ('d', 0, 1): QOP, ('d', 1, 2): VX, ('d', 1, 3): ACV, ('d', 2, 2): KX, ('d', 2, 3): QOP,
                 ('x', 0): VX, ('x', 1): ACV, ('x', 2): KX, ('x', 3): QOP})
    def bsrc(o, buf=None):
        hm = HOME[o]
        return vr(hm[1], 8, hm[0]) if hm[0] in 'va' else vr(buf or bufs[o], 8)
    F = lambda o: lds_fetch(o, bufs[o], w)
    own_t = (0, 2, 3, 1)[w]
    eo = ((0, 2, 1, 3), (2, 0, 1, 3), (3, 0, 1, 2), (1, 2, 0, 3))[w]
    s1, s2 = [t for t in eo if t < 2]
    AQ = [QA, QB, QC, QD, 4 * eo[0], 4 * eo[1], QE, 4 * eo[2], 4 * eo[3]]
    rdA = lambda t: f'ds_read_b128 {vr(AQ[t], 4)}, v{A2} offset:{L_MEM + 1024 * t}'
    ACC = {'q': ACQ, 'k': ACK, 'v': ACV}
    def sm(s, buf=None):
        m, t, x = s[0], int(s[1]), 'ab'.index(s[2])
        return f'{SM} {vr(ACC[m] + 4 * x, 4)}, {vr(AQ[t], 4)}, {bsrc((m, t, x), buf)}, v{IDX}'
    add = lambda d, a: f'v_add_f32 v{d}, v{d}, v{a}'
    cvt = lambda d, a, b: f'v_cvt_pk_bf16_f32 v{d}, v{a}, v{b}'
    z2 = lambda d: f'v_mov_b64 {vr(d, 2)}, 0'
    dw = lambda r, o: f'ds_write_b32 v{R3}, v{r} offset:{o}'
    flip = f'v_xor_b32 v{A1}, 0x8000, v{A1}'
    quad = lambda r: set(('v', r + j) for j in range(4))
    WW = P.wait_writes
    retry = []
    CK, CK2 = VM, VM + 1
    def maxtree(regs):
        out = [f'v_max3_u32 v{CK}, v{regs[0]}, v{regs[1]}, v{regs[2]}']
        for j in range(3, len(regs) - 1, 2): out.append(f'v_max3_u32 v{CK}, v{CK}, v{regs[j]}, v{regs[j + 1]}')
        return out + [f'v_max_u32 v{CK}, v{CK}, v{regs[-1]}']
    tchunks = (own_t,)
    nlate = {2: 2, 3: 3}.get(w, 0)
    nunit = 2 if w == 3 else 1
    d0, dn = ((6, 1), (7, 1), (8, 1), (4, 2))[w]
    DMA, POLL = ('d', 0), ('d', 1)
    STCH = SWS if 'standalone' in opt else 's[16:19]'
    kvchk = w == 0 and 'standalone' not in opt
    SCR = L_SCR + (256 if w == 0 else 0)
    fill = F(('k', s1, 0)) + F(('k', s1, 1))
    konly = T.get('konly', 0)
    tsh = f'v_lshlrev_b32 v{VM + 1}, {1 if konly else 2}, v{A2}'

    kx = [f'buffer_load_dwordx4 {vr(KX + 4 * c, 4)}, v{A2}, {SWS}, {sKV} offen offset:{1024 * c} sc1' for c in range(2)]
    vx = [f'buffer_load_dwordx4 {vr(VX + 4 * c, 4)}, v{A2}, {SWS}, {sKV2} offen offset:{1024 * c} sc1' for c in range(2)]
    pre = (kx if T.get('npre', 1) == 2 else []) + vx
    ZA = A3
    hld = f'buffer_load_dwordx4 {vr(AQ[own_t], 4)}, v{A2}, {SWS}, {sM8} offen offset:{1024 * own_t} sc1'
    dmas = [f'buffer_load_dwordx4 v{A2}, {SWS}, {sDM} offen offset:{1024 * q} sc1 lds' for q in range(dn)]
    SELR = QA if nunit == 1 else VX
    kmrd = f'ds_read_b64 {vr(QE, 2)}, v{R1} offset:{256 + 128 * (w // 2) + 8 * (w % 2)}'
    def book(parts):
        for ch in parts: book1(ch)
    def book1(parts):
        if parts in 'abcd': P(fill['abcd'.index(parts)], nowait=True)
        if parts == 'S': P(f'ds_read_b128 {vr(SELR, 4)}, v{A2} offset:{L_SEL}')
        if parts == 'K': P(kmrd)
        if parts == 'w': P('s_waitcnt lgkmcnt(0)')
        if parts == 'y':
            for r in range(ACQ, ACK, 2): P(z2(r))
            P(f'v_mov_b32 v{ZA}, {L_ZERO}')
        if parts == 'z':
            for r in range(ACK, ACK + 8, 2): P(z2(r))
        if parts == 't': P(tsh)
        if parts == 'f': P(flip)
        if 's' in parts:
            inc = 0 if 'samekv' in opt else SEG_STRIDE
            P(f's_add_u32 {sSTEP}, {sSTEP}, 1\ns_xor_b32 {sMR}, {sMR}, {MEM_SLOT}\ns_xor_b32 {sM8}, {sM8}, {MEM_SLOT}')
            P(f's_add_u32 {sKV}, {sKV}, {inc}\ns_add_u32 {sKV2}, {sKV2}, {inc}\ns_add_u32 {sPF}, {sPF}, {inc}\ns_add_u32 {sEXP}, {sEXP}, {SEG_STRIDE}')
            P(f's_mov_b32 m0, {L_MEM + 1024 * d0}\ns_add_u32 {sDM}, {sM8}, {1024 * d0}')
            if 'diag' in opt:
                dg = P.newlabel('dg')
                P(f's_cmp_eq_u32 {sSTEP}, 4\ns_cbranch_scc0 {dg}')
                P.raw(f'  s_memtime s[92:93]\n  s_memrealtime s[88:89]\n  s_mov_b32 s84, 0\n  s_mov_b32 s86, 0\n  s_mov_b32 {sSPIN}, 0')
                P.label(dg, keep=True)
        if 'e' in parts and STCH != SWS:
            P.c('nothing is left to prefetch at the end: the last prefetch pulls the final step\'s code into L2 instead (speed only)')
            P(f's_cmp_eq_u32 {sSTEP}, {NSEG - 2}\ns_cselect_b64 s[16:17], s[20:21], s[16:17]\ns_cselect_b32 s18, ({Lb("done")} - {Lb("last")}), s18\ns_cselect_b32 {sPF}, 0, {sPF}')
            P(f's_cmp_eq_u32 {sSTEP}, {NSEG - 1}\ns_cselect_b32 {sKV2}, {WS_SIZE}, {sKV2}\ns_cselect_b32 {sKV}, {WS_SIZE}, {sKV}')
    place = T.get('place', PLACE)[w]
    assert sorted(''.join(place).replace('w', '')) == sorted('yztfseSKabcd')
    P.c(f'---- chain wave {w}')
    for r in range(0, 16, 2): P(z2(ACQ + r))
    P(f's_mov_b32 s78, 0x3f803f80\ns_mov_b32 s79, s78\ns_mov_b32 {sM8}, {WS_MEM}\ns_mov_b32 m0, {SCR}\ns_lshl_b32 {sFLG}, {sH}, 2\ns_add_u32 {sFLG}, {sFLG}, {DB_P1}\ns_movk_i32 {sT2}, 0x1000\n{tsh}\nv_mov_b32 v{VM}, 0')
    if konly: P(f's_add_u32 {sPF}, {sKV}, {SEG_STRIDE}')
    have = tchunks
    if STCH != SWS: P(f's_mov_b64 s[16:17], s[8:9]\ns_mov_b32 s18, {WS_SIZE}\ns_mov_b32 s19, 0x20000\ns_getpc_b64 s[20:21]')
    if STCH != SWS:
        P.label(Lb('pc'), keep=True)
        P(f's_add_u32 s20, s20, ({Lb("last")} - {Lb("pc")})\ns_addc_u32 s21, s21, 0')
    P(f'v_mov_b32 v{ZA}, {L_ZERO}')
    for x in pre + fill + [rdA(t) for t in range(4)]: P(x)
    P('s_waitcnt lgkmcnt(0)')
    P(f's_cmp_eq_u32 {sSTEP}, 1\ns_branch {Lb("top2")}')
    P.raw('.p2align 6')
    P.label(Lb('h2'))
    P.t = 0; P.tm = -999
    own = 2 * nunit
    n2 = T.get('n2', (3, 3, 3, 2))[w]
    def extras():
        if 'steplog' in opt:
            P(f's_memrealtime s[80:81]\ns_memtime s[82:83]\ns_lshl_b32 {sT0}, {sH}, 6\ns_add_u32 {sT0}, {sT0}, {sSTEP}\ns_lshl_b32 {sT0}, {sT0}, 3\ns_add_u32 {sT0}, {sT0}, {WS_STAMP + 0x40000}\ns_waitcnt lgkmcnt(0)')
            P(f'v_mov_b32 v{QC}, s80\nv_mov_b32 v{QC + 1}, {"s84" if "tmeas" in opt else "s82"}\ns_mov_b64 exec, 1\nbuffer_store_dwordx2 {vr(QC, 2)}, v{A2}, {SWS}, {sT0} offen\ns_mov_b64 exec, -1', nowait=True)
        if kvchk:
            P(f's_cmp_eq_u32 {sSTEP}, {7 * KV_EARLY - 2}\ns_cselect_b32 {sT2}, {sFLG}, 0x1000')
            P.c('the final k_x / v_x count of this head arrived beside the last prefetch; poll only if it is short')
            P(f'ds_read_b32 v{VM}, v{A2} offset:{L_SCR + 256}\ns_cmp_eq_u32 {sSTEP}, {7 * KV_EARLY - 1}\ns_cselect_b32 {sT0}, 0x700, 0')
            P(f'v_readfirstlane_b32 {sT3}, v{VM}\ns_cmp_lt_u32 {sT3}, {sT0}\ns_cbranch_scc1 {Lb("kv3")}')
            P.label(Lb('kvb'), keep=True)
        return 1 if 'steplog' in opt else 0
    if stf:
        others = [q for q in (QA, QB, QC, QD) if q != AQ[own_t]]
        HD = [(AQ[own_t], sM8, 1024 * own_t, own_t)] + [(others[q], sDM, 1024 * q, d0 + q) for q in range(dn)]
        book(''.join(place[2:]).replace('w', ''))
        if w == 0: extras()
        if T.get('sexit'): T['sexit'](P, Lb, f'buffer_store_dwordx4 {vr(QE, 4)}, v{A2}, {SWS}, {sEXP} offen sc1', retry)
        for x in pre: P(x, nowait=True)
        P('s_waitcnt vmcnt(0)\ns_mov_b64 vcc, -1')
        P.label(Lb('h2r'))
        P('s_mov_b64 exec, vcc')
        for r, sb_, o, t in HD: P(f'buffer_load_dwordx4 {vr(r, 4)}, v{A2}, {SWS}, {sb_} offen offset:{o} sc1')
        P(f's_mov_b64 exec, -1\ns_add_u32 {sSPIN}, {sSPIN}, 1\ns_cmp_lt_u32 {sSPIN}, {SPIN_MAX}\ns_cselect_b32 {sT0}, -2, -1')
        for x in maxtree([r + j for r, _, _, _ in HD for j in range(4)]): P(x)
        P(f'v_cmp_lt_u32 vcc, {sT0}, v{CK}\ns_cbranch_vccnz {Lb("h2r")}')
        for r, sb_, o, t in HD: P(f'ds_write_b128 v{A2}, {vr(r, 4)} offset:{L_MEM + 1024 * t}')
    elif 'nocomm' not in opt:
        r_ = AQ[own_t]
        wr = f'ds_write_b128 v{A2}, {vr(r_, 4)} offset:{L_MEM + 1024 * own_t}'
        ck = maxtree([r_ + j for j in range(4)]) + [wr, f'v_cmp_eq_u32 vcc, -1, v{CK}']
        book(place[2])
        if w == 0: own += extras()
        for j in range(n2 - (w == 3)):
            P(hld, nowait=True)
            if j == 0 and w < 3: mark('h2i')
            book(place[3 + j])
        tail = len(pre)
        for x in pre: P(x, nowait=True)
        P(f's_waitcnt vmcnt({n2 - 1 + tail + (own if w == 3 else 0)})')
        for x in ck: P(x, nowait=True)
        P(f's_cbranch_vccnz {Lb("h2r")}')
        def r2():
            P.label(Lb('h2r'))
            for j in range(n2 + 2):
                if j == n2 - 1: P.label(Lb('h2s'))
                P('s_mov_b64 exec, vcc'); P(hld, nowait=True)
                P(f's_mov_b64 exec, -1\ns_add_u32 {sSPIN}, {sSPIN}, 1\ns_waitcnt vmcnt({n2 - 1 + (tail if j < n2 - 1 else 0)})')
                for x in ck: P(x, nowait=True)
                P(f's_cbranch_vccz {Lb("h2w")}')
            P(f's_cmp_lt_u32 {sSPIN}, {SPIN_MAX}\ns_cbranch_scc1 {Lb("h2s")}\ns_branch {Lb("h2w")}')
        retry.append(r2)
    else:
        for x in fill + pre + [rdA(own_t)]: P(x, nowait=True)
        dly(60)
    P.label(Lb('h2w'), lg=[set()], vm=[set().union({POLL}, *[Ins(x).ws for x in pre])])
    mark('h2w')
    if w == 3 and 'nocomm' not in opt and not stf:
        for x in dmas: P(x); P.vm[-1] = {POLL}
    P(f's_cmp_eq_u32 {sSTEP}, {NSEG - 1 if T.get("marks", [0])[0] != "top" else 99}\ns_waitcnt lgkmcnt(0)\ns_barrier')
    P.t = 0
    mark('top')
    P(rdA(eo[1]))
    if 'nocomm' in opt: P('s_mov_b32 m0, 0x28000')
    if w < 3 and 'nodma' not in opt and not stf: P(dmas[0]); P.vm[-1] = {DMA}
    snap_last = P.snapshot()
    P.label(Lb('top2'), keep=True)
    P.trace = TRACE[w] = []
    four = lambda t: f'q{t}a q{t}b k{t}a k{t}b ' if t > 1 else f'q{t}a k{t}a q{t}b k{t}b '
    c_, d_ = eo[2], eo[3]
    seq = four(eo[0]) + four(eo[1]) + f'q{c_}a q{c_}b q{d_}a k{c_}a q{d_}b k{c_}b k{d_}a k{d_}b '
    seq = (seq + T.get('late', 'q4a k4a q4b q5a k4b q5b q7a q8a q6a q7b q6b q8b k6a k7a k5a k8a k5b k6b k7b k8b')).split()
    mf = [sm(s) for s in seq]
    side = {}
    at = {s: i for i, s in enumerate(seq)}
    b1, b2 = T.get('bl', (10, 16))
    def dma_wait(tok):
        def f():
            k = max([j for j, x in enumerate(P.vm) if tok in x], default=-1)
            if k >= 0: P(f's_waitcnt vmcnt({len(P.vm) - 1 - k})')
        return f
    exp_ = f'buffer_store_dwordx4 {vr(QE, 4)}, v{A2}, {SWS}, {sEXP} offen sc1'
    touch = f'buffer_load_dword v{VM + 1}, {STCH}, {sPF} offen lds'
    if 'nobr' not in opt: addside(side, 0, f's_cbranch_scc1 {Lb("last")}')
    for i, s in zip(T.get('vm_at', lambda w: (1, 2, 6, 7))(w), (kx[0], kx[1], exp_, touch)):
        if 'noexp' in opt and s is exp_ or 'notouch' in opt and s is touch or s in pre or 'nok' in opt and s in kx: continue
        addside(side, i, s)
    addside(side, T.get('m0at', 1), f's_mov_b32 m0, {SCR}')
    if kvchk: addside(side, 22, f'buffer_load_dword off, {SDBG}, {sT2} sc1 lds')
    if 'tmeas' in opt:
        def tm_():
            P('s_waitcnt lgkmcnt(0)\ns_memtime s[84:85]\ns_waitcnt vmcnt(0) lgkmcnt(0)\ns_memtime s[82:83]\ns_waitcnt lgkmcnt(0)\ns_sub_u32 s84, s82, s84')
        addside(side, 16, tm_)
    addside(side, b1 - 1, dma_wait(POLL)); addside(side, b1, 's_barrier' if 'nob' not in opt else 's_nop 0')
    addside(side, b2 - 1, dma_wait(DMA)); addside(side, b2, 's_barrier' if 'nob' not in opt else 's_nop 0')
    Fp = lambda s: F((s[0], int(s[1]), 'ab'.index(s[2])))
    zv = [f'ds_read_b128 {vr(ACV + 4 * q, 4)}, v{ZA}' for q in range(2)]
    pl = dict(dict(rc=3, rd=4, sa=(5, 6), sb=(7, 8), r4=10, k4a=(11, 12), k4b=(14, 15), r5=13, r7=16, r8=17, r6=18, q6a=(17, 19), q6b=(20, 21), k5a=(24, 25), k5b=(26, 27), zv=(30, 31)), **T.get('plan', {}))
    ops = dict(rc=rdA(c_), rd=rdA(d_), sa=Fp(f'k{s2}a'), sb=Fp(f'k{s2}b'), zv=zv, **{f'r{t}': rdA(t) for t in range(4, 9)}, **{x: Fp(x) for x in ('k4a', 'k4b', 'q6a', 'q6b', 'k5a', 'k5b')})
    plan = [(i, x) for k_, v_ in pl.items() for i, x in (zip(v_, ops[k_]) if isinstance(v_, tuple) else [(v_, ops[k_])])]
    for i, x in plan:
        if 'nostream' in opt and x not in [rdA(t) for t in range(9)] or 'noA' in opt and x in [rdA(t) for t in range(9)] or 'nozv' in opt and x in zv: continue
        addside(side, i, x)
    qv = [add(ACQ, ACQ + 2), add(ACQ + 1, ACQ + 3), add(ACQ + 4, ACQ + 6), cvt(ACQ + 2, ACQ, ACQ + 4), dw(ACQ + 2, 0),
          add(ACQ + 5, ACQ + 7), cvt(ACQ + 3, ACQ + 1, ACQ + 5), dw(ACQ + 3, PITCH)]
    for i, x in zip(T.get('qat', (26, 27, 29, 30, 31, 31, 31, 32, 32)), qv + [f'v_cmp_u_f32 vcc, v{ACQ}, v{ACQ + 1}']): addside(side, i, x)
    addside(side, T.get('on2', 28), f'v_mov_b64 {vr(ONES + 2, 2)}, s[78:79]')
    ka = [add(ACK, ACK + 2), add(ACK + 1, ACK + 3)]
    for i, x in zip(T.get('kat', (33, 34)), ka): addside(side, i, x)
    def nanbr():
        P(f's_cbranch_vccnz {Lb("rec")}')
        P.label(Lb('recok'), keep=True)
    addside(side, 35, nanbr)
    run(mf, side, 'q')
    def recover():
        P.label(Lb('rec'))
        P('s_nop 7\ns_waitcnt vmcnt(0) lgkmcnt(0)')
        for x in maxtree(list(range(QA, QE + 4))): P(x)
        P(f'v_cmp_eq_u32 vcc, -1, v{CK}\ns_cbranch_vccz {Lb("recok")}')
        P('s_barrier')
        if nlate:
            HD = [QA + 4 * q for q in range(nlate)]
            P.label(Lb('recp'))
            for q, r in enumerate(HD): P(f'buffer_load_dwordx4 {vr(r, 4)}, v{A2}, {SWS}, {sMR} offen offset:{1024 * q} sc1')
            P(f's_add_u32 {sSPIN}, {sSPIN}, 1\ns_cmp_lt_u32 {sSPIN}, {SPIN_MAX}\ns_cselect_b32 {sT0}, -2, -1')
            if 'diag' in opt: P('s_add_u32 s86, s86, 1')
            for x in maxtree([r + j for r in HD for j in range(4)]): P(x)
            P(f'v_cmp_lt_u32 vcc, {sT0}, v{CK}\ns_cbranch_vccnz {Lb("recp")}')
            for q, r in enumerate(HD): P(f'ds_write_b128 v{A2}, {vr(r, 4)} offset:{L_MEM + 1024 * (2 * w + q)}')
        for r in range(0, 16, 2): P(z2(ACQ + r))
        P('s_waitcnt lgkmcnt(0)\ns_barrier')
        for t in range(9):
            P(rdA(t))
            for s in (f'q{t}a', f'q{t}b', f'k{t}a', f'k{t}b'):
                o = (s[0], t, 'ab'.index(s[2]))
                if HOME[o][0] == 'lds':
                    for x in lds_fetch(o, QOP, w): P(x)
                P(sm(s, QOP))
        for x in qv + ka: P(x)
        P(f's_waitcnt lgkmcnt(0)\ns_nop 1\ns_branch {Lb("recok")}')
    retry.append(recover)
    W0, W1 = ('d', 0, 0), ('d', 0, 1)
    KOP = ACQ; PX = ACK + 4; PM = ACK; OD = QA; LD = QC
    S0, S1 = KOP + 4, KOP + 5
    sx = [f'{MF} {vr(KX, 4)}, {vr(KX, 4)}, {vr(QOP, 4)}, 0', f'{MF} {vr(KX, 4)}, {vr(KX + 4, 4)}, {vr(QOP + 4, 4)}, {vr(KX, 4)}']
    smm = [f'{MF} {vr(KOP, 4)}, {vr(KOP, 4)}, {vr(QOP, 4)}, 0', f'{MF} {vr(KOP, 4)}, {vr(KOP + 4, 4)}, {vr(QOP + 4, 4)}, {vr(KOP, 4)}']
    pvx = [f'{MF} {vr(LD, 4)}, {vr(PX, 4)}, {vr(ONES, 4)}, 0', f'{MF} {vr(OD, 4)}, {vr(PX, 4)}, {vr(VX, 4)}, 0', f'{MF} {vr(OD + 4, 4)}, {vr(PX, 4)}, {vr(VX + 4, 4)}, 0']
    pvm = [f'{MF16} {vr(LD, 4)}, {vr(PM, 2)}, {vr(ONES, 2)}, {vr(LD, 4)}', f'{MF16} {vr(OD, 4)}, {vr(PM, 2)}, {vr(VM, 2)}, {vr(OD, 4)}',
           f'{MF16} {vr(OD + 4, 4)}, {vr(PM + 2, 2)}, {vr(VM, 2)}, {vr(OD + 4, 4)}']
    inq = lambda q: 4 + AQ[4:].index(q)
    v = [sm(s) for s in (''.join(f'v{inq(q)}a v{inq(q)}b ' for q in (QE, QA, QB, QC, QD)) + 'v0a v0b v1a v2a v3a v1b v2b v3b').split()]
    sxi, smi = T.get('sxm', (6, 13))
    mf = v[:sxi] + sx + v[sxi:smi - 2] + smm + v[smi - 2:] + pvx + pvm
    def vmw(regs, lg):
        def f():
            k = max([j for j, x in enumerate(P.vm) if x & regs], default=-1)
            P('s_waitcnt ' + (f'vmcnt({len(P.vm) - 1 - k}) ' if k >= 0 else '') + f'lgkmcnt({lg})')
        return f
    W = [QE, ACQ, ACQ + 4, ACK + 4, ACK]
    dadd = lambda d, x: f'v_add_f32_dpp v{d}, v{x + 2}, v{x} {QP("[2,3,0,1]")}'
    dexp = lambda d: f'v_exp_f32_dpp v{d}, v{d} {QP("[0,1,0,1]")}'
    def cbar(*writes):
        def f():
            done = [x.text for x in P.trace]
            assert all(x in done for x in writes) and not any(getattr(x, 'text', '') in writes for x in P.lg), 'barrier before its writes'
            P('s_barrier')
        return f
    pwr = f'ds_write_b32 v{R2}, v{VM} offset:{512 + 4 * w}'
    vops = dict(wq=WW, bq=cbar(qv[4], qv[7]), q0=f'ds_read_b128 {vr(QOP, 4)}, v{R1}', q1=f'ds_read_b128 {vr(QOP + 4, 4)}, v{R1} offset:128',
                ka0=add(ACK + 4, ACK + 6), kc0=cvt(ACK + 2, ACK, ACK + 4), kw0=dw(ACK + 2, 256), ka1=add(ACK + 5, ACK + 7), kc1=cvt(ACK + 3, ACK + 1, ACK + 5),
                kw1=dw(ACK + 3, 256 + PITCH), fl=flip, r0=rdA(0), z1=f'v_mov_b32 v{PM + 1}, 0', z2=f'v_mov_b32 v{PM + 2}, 0', r1=rdA(1), wk=WW, bk=cbar(dw(ACK + 2, 256), dw(ACK + 3, 256 + PITCH)),
                k0=f'ds_read_b128 {vr(KOP, 4)}, v{R1} offset:256', k1=f'ds_read_b128 {vr(KOP + 4, 4)}, v{R1} offset:384', r2=rdA(2),
                xa0=dadd(VM, KX), xa1=dadd(VM + 1, KX + 1), xe0=dexp(VM), r3=rdA(3), xe1=dexp(VM + 1), xc=cvt(VM, VM, VM + 1),
                pw=f'ds_write_b32 v{R2}, v{VM} offset:{512 + 4 * w}', ze0=z2(QE), w00=F(W0)[0], ze1=z2(QE + 2), w01=F(W0)[1], on=f'v_mov_b64 {vr(ONES, 2)}, s[78:79]',
                ma0=dadd(S0, KOP), ma1=dadd(S1, KOP + 1), wp=WW, bp=cbar(pwr), pr=f'ds_read_b128 {vr(PX, 4)}, v{R2} offset:512',
                w10=F(W1)[0], mm0=f'v_mul_f32 v{S0}, {sCB}, v{S0}', w11=F(W1)[1], mm1=f'v_mul_f32 v{S1}, {sCB}, v{S1}', me0=dexp(S0), me1=dexp(S1),
                va0=add(ACV, ACV + 2), va1=add(ACV + 1, ACV + 3), va2=add(ACV + 4, ACV + 6), va3=add(ACV + 5, ACV + 7),
                mc0=cvt(PM, S0, S1), vc0=cvt(VM, ACV, ACV + 1), vc1=cvt(VM + 1, ACV + 4, ACV + 5), mc1=cvt(PM + 3, S0, S1), zq0=z2(ACQ),
                tab=f'ds_read_b128 {vr(ONES, 4)}, v{A2} offset:{L_TAB}', zq1=z2(ACQ + 2))
    vat = dict(VAT, **T.get('vat', {}))
    side = {}
    for k_, x in vops.items(): addside(side, vat[k_], x)
    both = lambda m0, m1: (lambda: (P.prewait(m1), P.prewait(m0)))
    addside(side, sxi - 1, both(*sx)); addside(side, smi - 1, both(*smm)); addside(side, 21, both(pvx[0], pvx[2]))
    run(mf, side, 'v')
    def normalise():
        P(f'v_rcp_f32 v{LD + 2}, v{LD}\nv_rcp_f32 v{LD + 3}, v{LD + 1}')
        for r in (0, 1, 4, 5): P(f'v_mul_f32 v{OD + r}, v{LD + 2 + r % 2}, v{OD + r}')
        P(cvt(OD + 2, OD, OD + 4)); P(dw(OD + 2, L_O)); P(cvt(OD + 3, OD + 1, OD + 5)); P(dw(OD + 3, L_O + PITCH))
    normalise()
    mark('owr')
    P.c('exp() ran without a shift: safe only while every row sum and its reciprocal stay below 2^30; otherwise redo with the true row max')
    P(f"""v_max3_f32 v{LD}, v{LD}, v{LD + 1}, v{LD + 2}
    v_max_f32 v{LD}, v{LD}, v{LD + 3}
    v_cmp_le_f32 vcc, {(127 + 30) << 23}, v{LD}""")
    P(z2(ACQ + 4)); P(z2(ACQ + 6))
    P(f's_cbranch_vccnz {Lb("mx")}')
    P.label(Lb('mxok'), keep=True)
    def truemax():
        P.label(Lb('mx'))
        SXD, SMD, PL, MXR = QC, QD, ACV, QE
        P(f's_waitcnt lgkmcnt(0)\ns_barrier')
        for c in range(2):
            P(f'buffer_load_dwordx4 {vr(QA + 4 * c, 4)}, v{A2}, {SWS}, {sKV} offen offset:{1024 * c} sc1')
            P(f'ds_read_b128 {vr(ACQ + 4 * c, 4)}, v{R1} offset:{128 * c}\nds_read_b128 {vr(ACK + 4 * c, 4)}, v{R1} offset:{256 + 128 * c}')
        for d_, a_ in ((SXD, QA), (SMD, ACK)):
            P(f'{MF} {vr(d_, 4)}, {vr(a_, 4)}, {vr(ACQ, 4)}, 0\n{MF} {vr(d_, 4)}, {vr(a_ + 4, 4)}, {vr(ACQ + 4, 4)}, {vr(d_, 4)}')
        for d_ in (SXD, SMD):
            for r in range(2): P(f'v_add_f32_dpp v{d_ + r}, v{d_ + 2 + r}, v{d_ + r} {QP("[2,3,0,1]")}')
            for r in range(2): P(f'v_mov_b32_dpp v{d_ + r}, v{d_ + r} {QP("[0,1,0,1]")}')
        for r in range(2):
            P(f'v_mul_f32 v{SMD + r}, {sCB}, v{SMD + r}\nds_write_b32 v{R2}, v{SXD + r} offset:{L_O + 64 * r + 4 * w}')
        P('s_waitcnt lgkmcnt(0)\ns_barrier')
        for r in range(2): P(f'ds_read_b128 {vr(PL + 4 * r, 4)}, v{R2} offset:{L_O + 64 * r}')
        P('s_waitcnt lgkmcnt(0)\ns_barrier')
        sc = list(range(PL, PL + 8)) + [SMD, SMD + 1]
        P(f'v_max_f32 v{MXR}, v{sc[0]}, v{sc[1]}')
        for j in range(2, 10, 2): P(f'v_max3_f32 v{MXR}, v{MXR}, v{sc[j]}, v{sc[j + 1]}')
        for sw in ('v_permlane16_swap_b32', 'v_permlane32_swap_b32'):
            P(f'v_mov_b32 v{MXR + 1}, v{MXR}\n{sw} v{MXR}, v{MXR + 1}\nv_max_f32 v{MXR}, v{MXR}, v{MXR + 1}')
        for r in sc: P(f'v_sub_f32 v{r}, v{r}, v{MXR}')
        for r in sc: P(f'v_exp_f32 v{r}, v{r}')
        for r in range(4): P(cvt(PX + r, PL + r, PL + 4 + r))
        P(cvt(PM, SMD, SMD + 1)); P(cvt(PM + 3, SMD, SMD + 1))
        P(f'v_mov_b32 v{PM + 1}, 0\nv_mov_b32 v{PM + 2}, 0')
        for r in range(4): P(f'v_mov_b32 v{ONES + r}, 0x3f803f80')
        for x in pvx + pvm: P(x)
        P(f'ds_read_b128 {vr(ONES, 4)}, v{A2} offset:{L_TAB}')
        normalise()
        for r in range(QE, ACQ + 8, 2): P(z2(r))
        P(f's_branch {Lb("mxok")}')
    retry.append(truemax)
    P('s_waitcnt lgkmcnt(0)\ns_barrier')
    mark('obar1')
    ODUP = QA
    for c in range(4): P(f'ds_read_b128 {vr(ODUP + 4 * c, 4)}, v{R2} offset:{L_O + 64 * c}')
    if T.get('marks', [0])[0] == 'top': P(f's_cmp_eq_u32 {sSTEP}, {NSEG - 1}\ns_cbranch_scc1 {Lb("done")}')
    order = [0, 1, 2, 3, 4] if heavy else [0, 1, 2, 3]
    mf = [f'{SM} {vr(W[d], 4)}, {vr(ODUP + 4 * c, 4)}, {bsrc(("d", d, c) if d < 4 else ("x", c))}, v{IDX}' for d in order for c in range(4)]
    side = {}
    fl = F(('d', 1, 2)) + F(('d', 1, 3)) + F(('d', 2, 2)) + F(('d', 2, 3)) + (F(('x', 0)) + F(('x', 1)) + F(('x', 2)) + F(('x', 3)) if heavy else [])
    for i, x in zip(T.get('w_at', [0, 1, 2, 3, 3, 4, 4, 5, 7, 8, 9, 11, 12, 12, 13, 15]), fl): addside(side, i, x)
    if CYC[0] == 1:
        K = lambda d: ((2 * d + (w >> 1)) & 7) if d < 4 else 0
        for j in range(len(order) - 1): addside(side, 4 * j + 6, f'v_xor_b32 v{A3}, {(K(order[j]) ^ K(order[j + 1])) << 8}, v{A3}')
        if K(0): P(f'v_xor_b32 v{A3}, {K(0) << 8}, v{A3}')
    tagi = lambda d: f'v_bfi_b32 v{W[d]}, 1, {sTAG}, v{W[d]}'
    pst = lambda d: f'buffer_store_dwordx2 {vr(W[d], 2)}, v{A3}, {SWS}, {sPW[d]} offen {stf}'
    for j, d in enumerate(order[:-1]):
        for i, x in zip(T.get('c_at', (5, 5, 5, 6)), (cvt(W[d], W[d], W[d] + 1), cvt(W[d] + 1, W[d] + 2, W[d] + 3), tagi(d), pst(d))): addside(side, 4 * j + i, x)
    for i, r in zip(T.get('z_at', (7, 8, 11, 14)), (W[3], W[3] + 2) + ((W[4], W[4] + 2) if heavy else ())): addside(side, i, z2(r))
    n1 = 1
    if nunit == 1: SELR, RDS, sets = QA, [QB], [[VX], [ACV], [KX], [QOP]][:n1]
    else: SELR, RDS, sets = VX, [VX + 4, ACV], [[QA, QC], [KX, QOP]][:n1]
    srcs = [sPR, sPRX]
    h1ld = [[f'buffer_load_dwordx4 {vr(dat + 4 * q, 4)}, v{A2}, {SWS}, {srcs[u]} offen offset:{1024 * q} sc1' for u, dat in enumerate(st_) for q in range(2)] for st_ in sets]
    run(mf, side, 'w')
    d = order[-1]
    P(f'v_mov_b64 {vr(QE + 2, 2)}, {vr(VM, 2)}')
    P(cvt(W[d], W[d], W[d] + 1)); P(cvt(W[d] + 1, W[d] + 2, W[d] + 3)); P(tagi(d))
    P(pst(d))
    mark('wend')
    P.trace = None
    for j, nm in enumerate(('ack4', 'ack3', 'ack2', 'ack1', 'ack0')[5 - len(order):]):
        if 'marks' in opt and 'ack0' in T.get('marks', ()): P(f's_waitcnt vmcnt({len(order) - 1 - j})'); mark(f'ack{order[j]}')
    if 'nocomm' in opt:
        book('SKyzsetf'); dly(60)
        P(f's_branch {Lb("h2")}')
    book(place[0])
    if stf: P(f's_waitcnt vmcnt({T.get("sack", (0, 0, 0, 0))[w]})')
    for x in h1ld[0]: P(x)
    mark('h1i')
    book(place[1])
    P('s_waitcnt lgkmcnt(0)')
    if kvchk:
        def kv1():
            P.label(Lb('kv3'))
            P(f's_waitcnt lgkmcnt(0)\ns_cmp_ge_u32 {sT3}, 0x700\ns_cbranch_scc1 {Lb("kvb")}')
            P(f's_load_dword {sT3}, s[12:13], {sFLG} glc\ns_add_u32 {sSPIN}, {sSPIN}, 1\ns_cmp_lt_u32 {sSPIN}, {SPIN_MAX}\ns_cbranch_scc1 {Lb("kv3")}\ns_waitcnt lgkmcnt(0)\ns_branch {Lb("kvb")}', nowait=True)
        retry.append(kv1)
    pub = [(A5, sMW), (A5X, sMWX)]
    def reduce_check(st_, mk=False):
        for u, dat in enumerate(st_):
            rd = RDS[u]
            P(f'{MF} {vr(rd, 4)}, {vr(SELR, 4)}, {vr(dat, 4)}, 0')
            if mk and u == 0: mark('h1d')
            P(f'v_bitop3_b32 v{CK if u == 0 else CK2}, v{dat}, v{dat + 2}, {sTAG} bitop3:0x7e')
            if u: P(f'v_or_b32 v{CK}, v{CK}, v{CK2}')
            P(f'{MF} {vr(rd, 4)}, {vr(SELR, 4)}, {vr(dat + 4, 4)}, {vr(rd, 4)}')
            P(f'v_bitop3_b32 v{CK2}, v{dat + 4}, v{dat + 6}, {sTAG} bitop3:0x7e')
            if u + 1 < len(st_): P(f'v_or_b32 v{CK}, v{CK}, v{CK2}')
        P(f'v_bitop3_b32 v{CK}, v{CK}, v{CK2}, 1 bitop3:0xa8')
        P(f'v_cmp_ne_u32 vcc, 0, v{CK}')
    spec = T.get('spec', 1) and w != 3 and not stf
    def publish(spec):
        if w == 3 and not stf: P(hld, nowait=True); mark('h2i')
        sp = T.get('sp', 1)
        if spec and sp == 0: P(f's_cmp_eq_u64 vcc, 0\ns_cselect_b32 {sT0}, {pub[0][1]}, {WS_SIZE}')
        for rot in (4, 8):
            for rd in RDS:
                for r in range(2): P(f'v_add_f32_dpp v{rd + r}, v{rd + r}, v{rd + r} {DPP(f"row_ror:{rot}")}')
            if spec and sp == 1: P('s_cmp_eq_u64 vcc, 0' if rot == 4 else f's_cselect_b32 {sT0}, {pub[0][1]}, {WS_SIZE}')
        for u, rd in enumerate(RDS):
            P(cvt(rd, rd, rd + 1))
            P(f'buffer_store_dword v{rd}, v{pub[u][0]}, {SWS}, {(sT0, sT1)[u] if spec else pub[u][1]} offen {stf}')
    def finish():
        mark('pub')
        for u in range(nunit): P(f's_xor_b32 {pub[u][1]}, {pub[u][1]}, {MEM_SLOT}\nbuffer_store_dword v{TT}, v{pub[u][0]}, {SWS}, {pub[u][1]} offen {stf}')
        P(f's_xor_b32 {sTAG}, {sTAG}, 1\ns_branch {Lb("h2")}')
    reduce_check(sets[0], True)
    if spec: publish(True)
    P(f's_cbranch_vccnz {Lb("h1r")}')
    vm_h1r = list(P.vm)
    if not spec: publish(False)
    finish()
    regsets = [[Ins(x).ws for x in l] for l in h1ld]
    def rounds():
        for j in range(n1):
            P('s_mov_b64 exec, vcc')
            for x in h1ld[j]: P(x)
            P(f's_mov_b64 exec, -1\n{DIAG}\ns_add_u32 {sSPIN}, {sSPIN}, 1')
            reduce_check(sets[(j + 1) % n1])
            P(f's_cbranch_vccz {Lb("h1p")}')
    P.label(Lb('h1r'), vm=vm_h1r)
    rounds()
    P.label(Lb('h1s'), vm=[x for l in regsets[1:] for x in l])
    rounds()
    P(f's_cmp_lt_u32 {sSPIN}, {SPIN_MAX}\ns_cbranch_scc1 {Lb("h1s")}')
    P.label(Lb('h1p'))
    P('s_nop 2')
    publish(False)
    finish()
    for r in retry: r()
    P.label(Lb('last'), keep=True); P.restore(snap_last)
    P.c('last segment: only its k_m and v_m are needed (v accumulates where q would)')
    ACC['v'] = ACQ
    for t in eo[2:]: P(rdA(t))
    bufs.update({('k', s2, 0): KX, ('k', s2, 1): ACV, ('k', 4, 0): QOP, ('k', 4, 1): KX, ('k', 5, 0): ACV, ('k', 5, 1): QOP})
    for x in F(('k', s2, 0)): P(x)
    P('s_nop 5')
    for r in range(ACQ, ACQ + 8, 2): P(z2(r))
    seq = f'k{s1}a k{s1}b v0a v0b v1a v1b k{s2}a v2a v2b k{s2}b k2a k2b v3a v3b k3a k3b'.split()
    side = {0: F(('k', s2, 1)), 2: F(('k', 4, 0)), 4: [exp_], 7: F(('k', 4, 1)), 10: F(('k', 5, 0))}
    run([sm(x) for x in seq], side, 'l')
    dma_wait(POLL)(); dma_wait(DMA)()
    P('s_barrier')
    P.label(Lb('lastr'), vm=[], lg=[quad(r + 4 * j) for r in (QOP, KX, ACV) for j in range(2)])
    for t in range(4, 9): P(rdA(t))
    for x in maxtree(list(range(QA, QE + 4))): P(x)
    P(f'v_cmp_eq_u32 vcc, -1, v{CK}\ns_cbranch_vccnz {Lb("lastp")}')
    P.label(Lb('lastg'), keep=True)
    seq = 'k4a k4b k5a k6a k7a k8a k6b k7b k8b k5b v4a v5a v6a v7a v8a v4b v5b v6b v7b v8b'.split()
    side = {0: F(('k', 5, 1)), 11: [add(ACK, ACK + 2), add(ACK + 4, ACK + 6), cvt(ACK + 2, ACK, ACK + 4)],
            12: [dw(ACK + 2, 256), add(ACK + 1, ACK + 3), add(ACK + 5, ACK + 7), cvt(ACK + 3, ACK + 1, ACK + 5)],
            13: [dw(ACK + 3, 256 + PITCH)], 17: [WW, 's_barrier', kmrd.replace(vr(QE, 2), vr(VX, 2)), add(ACQ, ACQ + 2)], 18: [add(ACQ + 1, ACQ + 3)], 19: [cvt(VX + 2, ACQ, ACQ + 1)]}
    run([sm(x) for x in seq], side, 'm')
    P(f's_add_u32 {sEXP}, {sEXP}, {SEG_STRIDE}')
    P(add(ACQ + 4, ACQ + 6)); P(add(ACQ + 5, ACQ + 7)); P(cvt(VX + 3, ACQ + 4, ACQ + 5))
    P(exp_.replace(vr(QE, 4), vr(VX, 4)))
    P(f's_branch {Lb("done")}')
    P.label(Lb('lastp'))
    P.c('a late chunk was fetched too early (every wave sees that): fetch again')
    P(f's_add_u32 {sTAG}, {sTAG}, 2\ns_cmp_ge_u32 {sTAG}, {SPIN_MAX}\ns_cbranch_scc1 {Lb("lastg")}\ns_barrier')
    for x in dmas: P(x)
    P(f's_waitcnt vmcnt(0)\ns_barrier\ns_branch {Lb("lastr")}')
    P.label(Lb('done'))
```

```python
S, D, H, DH, M, SEG, NSEG = 2048, 576, 32, 128, 8, 32, 64
MB = 1 << 20
WS_PART = 0
PART_DEST = 2048 + 128
PART_CHUNK = 32 * PART_DEST
CYC = [0]
WS_RS = 0x55000
WS_FLAG = 0x56000
WS_FO = 0x57000
WS_MEM = 0x58000
MEM_SLOT = 1 << 14
WS_M0 = 0x60000
SEG_STRIDE = 0xA0000
WS_KVX = 0x100000
WS_KVM = WS_KVX + 0x80000
WS_O   = 44 * MB
WS_OA  = 60 * MB
WS_G   = 63 * MB
WS_STAMP = 102 * MB
WS_SIZE = 256 * MB
SX, SWS, SDBG, SWQ, SWK, SWV, SWO, SMEM0, SWQKV, SWOA, SGATE, SOUT = [f's[{4+4*i}:{7+4*i}]' for i in range(12)]
SRD_LIST = [
    (4, 0, S*D*2), (8, 104, WS_SIZE), (12, 96, 256), (16, 40, D*H*DH*2), (20, 48, D*H*DH*2), (24, 56, D*H*DH*2),
    (28, 64, D*H*DH*2), (32, 32, M*D*2), (36, 8, D*3*D*2), (40, 16, D*D*2), (44, 80, D*2), (48, 88, S*D*2)]
import math
CB = math.log2(math.e) / math.sqrt(128.0)
import struct
def f32bits(x): return struct.unpack('<I', struct.pack('<f', x))[0]

DB_MASK, DB_ARMED, DB_ADONE, DB_SUR, DB_P1 = 0, 32, 36, 40, 128
L_BC = 163832
sG, sVER, sXCC = 's0', 's1', 's2'
CA = math.log2(math.e) / math.sqrt(18.0)
SPIN_MAX = 0x20000
KV_EARLY = 2

def claim(P, v='v35'):
    P(f's_lshl_b32 s55, {sXCC}, 2\ns_or_b32 s56, s52, {sVER}\ns_cmp_eq_u32 s56, 0\ns_cselect_b32 s55, s55, 0x1000\ns_lshl_b32 s56, 1, {sG}\nv_mov_b32 {v}, s56')
    P(f's_mov_b64 exec, 1\nbuffer_atomic_or {v}, off, {SDBG}, s55 sc0\ns_mov_b64 exec, -1')
def verify(P, name, nvm, L_BC=L_BC, va='v33', vb='v32', vr_='v35'):
    P(f's_cmp_eq_u32 {sVER}, 1\ns_cbranch_scc1 {name}_ok\nv_mov_b32 {va}, {L_BC}\ns_cmp_eq_u32 s52, 0\ns_cbranch_scc0 {name}_b')
    P(f's_waitcnt vmcnt({nvm})\ns_mov_b64 exec, 1\nds_write_b32 {va}, {vr_}\ns_mov_b64 exec, -1\ns_waitcnt lgkmcnt(0)', nowait=True)
    P.label(name + '_b', keep=True)
    P(f's_barrier\nds_read_b32 {vb}, {va}\nv_readfirstlane_b32 s54, {vb}\ns_bitcmp1_b32 s54, {sG}\ns_cbranch_scc1 L_conf')
    P.label(name + '_ok', keep=True)

def part_inbox(P, h, w, dst, dstx, t0, t1):
    P(f's_and_b32 {t0}, {h}, 7\ns_lshl_b32 {t0}, {t0}, 12\ns_bfe_u32 {t1}, {h}, 0x10003\ns_lshl_b32 {t1}, {t1}, 11\ns_add_u32 {t0}, {t0}, {t1}')
    P(f's_add_u32 {dstx}, {t0}, {WS_PART + 8 * 32768}')
    P(f's_lshr_b32 {t1}, {h}, 4\ns_lshl_b32 {t1}, {t1}, 15\ns_add_u32 {t0}, {t0}, {t1}\ns_lshl_b32 {t1}, {w}, 16\ns_add_u32 {t0}, {t0}, {t1}\ns_add_u32 {dst}, {t0}, {WS_PART}')
```

```python
from asmgen import *
from layout import *

sW, sJ, sT0, sT1, sT2, sT3 = 's52', 's53', 's54', 's55', 's56', 's57'
sH, sSEG, sXS, sM, sB0, sB1, sO, sSPIN, sN, sXM, sU0, sU1, sU2, sU3 = ['s%d' % i for i in range(58, 72)]
MF32 = 'v_mfma_f32_32x32x16_bf16'
MF = 'v_mfma_f32_16x16x32_bf16'
XBUF = 36864
NTEAM = 2
NSET = 3
RING = 36864
L, A2, XD, XR, WD0, WD1, RP, RN, T0, T1, T2, T3, RA = 200, 201, 202, 203, 207, 208, 209, 210, 211, 212, 213, 214, 215
XO = 32
cvt = lambda d, a, b: f'v_cvt_pk_bf16_f32 v{d}, v{a}, v{b}'
def wreg(i):
    return ('a', 4 * i) if i < 64 else ('v', 224 + 4 * (i - 64))
def wq(i):
    k, r = wreg(i); return vr(r, 4, k)

def common(P):
    P.c('---- worker per-lane constants')
    P(f'''v_and_b32 v{L}, 63, v0
    v_lshlrev_b32 v{A2}, 4, v{L}
    v_lshrrev_b32 v{T0}, 3, v{L}
    s_lshl_b32 {sT0}, {sW}, 3
    v_add_u32 v{T0}, {sT0}, v{T0}
    v_bfe_u32 v{T1}, v{T0}, 1, 3
    v_and_b32 v{T2}, 7, v{L}
    v_xor_b32 v{T1}, v{T1}, v{T2}
    v_mul_u32_u24 v{T0}, 1152, v{T0}
    v_lshl_add_u32 v{XD}, v{T1}, 4, v{T0}
    s_mul_i32 {sXM}, {sW}, 9216
    v_and_b32 v{T0}, 31, v{L}
    v_lshrrev_b32 v{T1}, 3, v{T0}
    v_mul_u32_u24 v{T1}, 9216, v{T1}
    v_and_b32 v{T2}, 7, v{T0}
    v_lshl_add_u32 v{T1}, v{T2}, 7, v{T1}
    v_bfe_u32 v{T2}, v{T0}, 1, 3
    v_lshrrev_b32 v{T3}, 5, v{L}
    v_xor_b32 v{T2}, v{T2}, v{T3}
    v_lshl_add_u32 v{XR}, v{T2}, 4, v{T1}
    v_xor_b32 v{XR + 1}, 32, v{XR}
    v_xor_b32 v{XR + 2}, 64, v{XR}
    v_xor_b32 v{XR + 3}, 0x60, v{XR}
    v_bfe_u32 v{T0}, v{L}, 2, 2
    v_lshl_add_u32 v{T1}, v{T3}, 3, v{T0}
    v_lshlrev_b32 v{T1}, 8, v{T1}
    v_xor_b32 v{T0}, {sW}, v{T0}
    v_lshl_add_u32 v{T1}, v{T0}, 6, v{T1}
    v_bfe_u32 v{T2}, v{L}, 4, 1
    v_and_b32 v{T0}, 3, v{L}
    v_lshl_add_u32 v{RN}, v{T2}, 5, v{T1}
    v_lshl_add_u32 v{RN}, v{T0}, 3, v{RN}
    v_lshl_add_u32 v{RP}, v{T2}, 4, v{T1}
    v_and_b32 v{T2}, 1, v{T0}
    v_lshl_add_u32 v{RP}, v{T2}, 3, v{RP}
    v_lshrrev_b32 v{T2}, 1, v{T0}
    v_lshl_add_u32 v{RP}, v{T2}, 5, v{RP}
    s_mov_b32 {sSPIN}, 0''')

def xdma_ins(buf):
    return [f's_add_u32 m0, {sXM}, {buf * XBUF + 896 * c}\ns_nop 0\nbuffer_load_dwordx4 v{XD}, {SX}, {sXS} offen offset:{128 * c} lds' for c in range(9)]
def xdma(P, buf):
    for x in xdma_ins(buf): P(x)

def wload(P, mats, stride, after_issue=None, extra={}):
    blocks = [(m, t) for t in range(9) for m in mats]
    n = len(blocks); NS = 7
    P(f's_lshl_b32 {sM}, {sW}, 10\ns_add_u32 {sM}, {sM}, {RING}')
    cnt = [0]; marks = {}
    def dma(j):
        (srd, va, base, _, _), t = blocks[j]
        for y in range(4):
            P(f's_add_u32 m0, {sM}, {(j % NS) * 16384 + y * 4096}\ns_add_u32 {sT0}, {base}, {(64 * t + 16 * y) * stride}')
            P(f'buffer_load_dwordx4 v{va}, {srd}, {sT0} offen lds')
        cnt[0] += 4; marks[j] = cnt[0]
    for j in range(NS - 1): dma(j)
    if after_issue: after_issue()
    for j, ((srd, va, base, ra, q0), t) in enumerate(blocks):
        P(f's_waitcnt vmcnt({cnt[0] - marks[j]}) lgkmcnt(0)\ns_barrier')
        if j + NS - 1 < n: dma(j + NS - 1)
        if j in extra: extra[j](); cnt[0] += 1
        P(f'v_add_u32 v{RA}, {RING + (j % NS) * 16384}, v{ra}')
        for kk in range(4):
            k, r = wreg(q0 + 4 * t + kk)
            for u in range(2): P(f'ds_read_b64_tr_b16 {vr(r + 2 * u, 2, k)}, v{RA} offset:{(16 * kk + 4 * u) * 256}')
    P('s_waitcnt lgkmcnt(0)\ns_barrier')

def gemm(P, buf, tiles, side=()):
    rd = lambda k: f'ds_read_b128 {vr(XO + 4 * (k % 4), 4)}, v{XR + k % 4} offset:{buf * XBUF + (k // 4) * 1024}'
    for k in range(3): P(rd(k))
    side = list(side)
    for k in range(36):
        x = vr(XO + 4 * (k % 4), 4)
        for j, (acc, q0, wa) in enumerate(tiles):
            c = '0' if k == 0 else vr(acc, 16)
            P(f'{MF32} {vr(acc, 16)}, {wq(q0 + k)}, {x}, {c}' if wa else f'{MF32} {vr(acc, 16)}, {x}, {wq(q0 + k)}, {c}')
            if j == 0 and k + 3 < 36: P(rd(k + 3))
            if side: P(side.pop(0))
    assert not side

def poll(P, name, srd, va, soff, cmp_, exec_, sleep=2):
    P(f's_cmp_eq_u32 {sW}, 0\ns_cbranch_scc0 {name}_d\ns_mov_b32 exec_hi, 0\ns_mov_b32 exec_lo, {exec_}')
    P.label(name)
    P(f'buffer_load_dword v{T0}, v{va}, {srd}, {soff} offen sc1\ns_add_u32 {sSPIN}, {sSPIN}, 1\ns_waitcnt vmcnt(0)')
    P(cmp_)
    P(f's_cbranch_vccz {name}_x\ns_sleep {sleep}\ns_cmp_lt_u32 {sSPIN}, {SPIN_MAX}\ns_cbranch_scc1 {name}')
    P.label(name + '_x')
    P('s_mov_b64 exec, -1')
    P.label(name + '_d')
    P('s_barrier')

def signal_add(P, name, off, val=1):
    P(f's_waitcnt vmcnt(0)\ns_barrier\ns_cmp_eq_u32 {sW}, 0\ns_cbranch_scc0 {name}')
    P(f'v_mov_b32 v{T0}, {val}\nv_mov_b32 v{T1}, 0\ns_mov_b64 exec, 1\nbuffer_atomic_add v{T0}, v{T1}, {SDBG}, {off} offen\ns_mov_b64 exec, -1')
    P.label(name)

def kv_addr(P, KA, VA):
    P(f'''; K unit address: (tok>>3)*2048 + (4*(j>>1) + 2*hf + (j&1))*16, j = tok&7
    v_bfe_u32 v{T0}, v{L}, 3, 2
    v_lshlrev_b32 v{KA}, 11, v{T0}
    v_bfe_u32 v{T0}, v{L}, 1, 2
    v_lshl_add_u32 v{KA}, v{T0}, 6, v{KA}
    v_lshrrev_b32 v{T1}, 5, v{L}
    v_lshl_add_u32 v{KA}, v{T1}, 5, v{KA}
    v_and_b32 v{T0}, 1, v{L}
    v_lshl_add_u32 v{KA}, v{T0}, 4, v{KA}
    v_bfe_u32 v{T0}, v{L}, 4, 1
    v_lshlrev_b32 v{VA}, 10, v{T0}
    v_lshl_add_u32 v{VA}, v{T1}, 9, v{VA}
    v_and_b32 v{T0}, 15, v{L}
    v_lshl_add_u32 v{VA}, v{T0}, 4, v{VA}
    s_lshl_b32 {sT0}, {sW}, 11
    s_add_u32 {sT0}, {sT0}, 8192
    v_add_u32 v{VA}, {sT0}, v{VA}''')

KA, VA = 216, 217
def head_src(P):
    P(f'''v_lshrrev_b32 v{T0}, 4, v{L}
    v_lshlrev_b32 v{T1}, 2, v{T0}
    v_and_b32 v{T2}, 15, v{L}
    v_xor_b32 v{T1}, v{T1}, v{T2}
    v_lshlrev_b32 v{T1}, 4, v{T1}
    v_lshl_add_u32 v{WD0}, v{T0}, 13, v{T1}
    s_lshl_b32 {sB0}, {sH}, 8
    s_lshl_b32 {sT0}, {sW}, 15
    s_add_u32 {sB0}, {sB0}, {sT0}''')

def phase_kv(P):
    P.c('==== phase 1: k_x (scaled) and v_x of head j/7 for segments j%7, +7, ...')
    P(f'''s_mul_i32 {sH}, {sJ}, 9363
    s_lshr_b32 {sH}, {sH}, 16
    s_mul_i32 {sT0}, {sH}, 7
    s_sub_u32 {sSEG}, {sJ}, {sT0}
    s_mul_i32 {sXS}, {sSEG}, {XBUF}''')
    xdma(P, 0)
    head_src(P)
    def after_issue():
        kv_addr(P, KA, VA)
    def pf(srd):
        def f0():
            P(f's_lshl_b32 {sT0}, {sJ}, 13\ns_lshr_b32 {sT1}, {sJ}, 6\ns_or_b32 {sT1}, {sT1}, {sW}\ns_cmp_eq_u32 {sT1}, 0\ns_cselect_b32 {sT0}, {sT0}, 0x10000000')
            P(f'v_lshlrev_b32 v{T0}, 3, v{A2}\ns_add_u32 {sT0}, {sT0}, {384 * 8192}\nbuffer_load_dword v196, v{T0}, {SWQ}, {sT0} offen')
        if srd is None: return f0
        def f():
            P.c('pull weights the recurrence needs later towards the memory-side cache with linear reads (speed only)')
            P(f'''s_mul_i32 {sT0}, {sJ}, 21120
            s_lshl_b32 {sT1}, {sW}, 13
            s_add_u32 {sT0}, {sT0}, {sT1}
            s_cmp_eq_u32 {sW}, 3
            s_cselect_b32 {sT0}, 0x10000000, {sT0}
            v_lshlrev_b32 v{T0}, 3, v{A2}
            buffer_load_dword v196, v{T0}, {srd}, {sT0} offen''')
        return f
    wload(P, [(SWK, WD0, sB0, RP, 0), (SWV, WD0, sB0, RN, 36)], 8192, after_issue, {P.wclj: lambda: claim(P, 'v197'), **{j: pf({'q': SWQ, 'o': SWO, 'q0': None}[m]) for j, m in P.pf.items()}})
    P(f's_mov_b32 {sU0}, {f32bits(CB)}\ns_lshl_b32 {sU1}, {sW}, 9\ns_lshl_b32 {sU2}, {sH}, 2\ns_add_u32 {sU2}, {sU2}, {DB_P1}')
    P.c('each finished segment also marks its k_m / v_m slot as not yet written')
    P(f's_mul_i32 {sN}, {sH}, {4096 - 16384}\ns_lshl_b32 {sT0}, {sW}, 10\ns_add_u32 {sN}, {sN}, {sT0}\ns_add_u32 {sN}, {sN}, {WS_KVM - WS_KVX}')
    for r in range(64, 68): P(f'v_mov_b32 v{r}, -1')
    P.stamp(1)
    ACCS = (0, 68)
    def epi(par):
        A_ = ACCS[par]; out = []
        for a in range(2):
            for h_ in range(2): out.append('\n'.join(f'v_mul_f32 v{A_ + 8 * a + 4 * h_ + r}, {sU0}, v{A_ + 8 * a + 4 * h_ + r}' for r in range(4)))
            out.append('\n'.join(cvt(48 + 4 * a + r, A_ + 8 * a + r, A_ + 8 * a + 4 + r) for r in range(4)))
            out += [f'buffer_store_dwordx4 {vr(48 + 4 * a, 4)}, v{KA}, {SWS}, s72 offen offset:{256 * a} sc1', '', '']
        for a in range(2):
            out.append('\n'.join(cvt(56 + 4 * a + r, A_ + 16 + 4 * r + 2 * a, A_ + 17 + 4 * r + 2 * a) for r in range(4)))
            out += [f'buffer_store_dwordx4 {vr(56 + 4 * a, 4)}, v{VA}, {SWS}, {sO} offen offset:{256 * a} sc1', '', '']
        return out + [f'buffer_store_dwordx4 v[64:67], v{A2}, {SWS}, s73 offen sc1']
    def tile(buf, prev):
        P(f's_add_u32 {sXS}, {sXS}, {7 * XBUF}')
        side = [x for d_ in xdma_ins(1 - buf) for x in (d_, '')] + (epi(1 - buf) if prev else [])
        gemm(P, buf, [(ACCS[buf], 0, True), (ACCS[buf] + 16, 36, False)], side)
        P(f"""s_mul_i32 {sO}, {sSEG}, {SEG_STRIDE}
        s_lshl_b32 {sT1}, {sH}, 14
        s_add_u32 {sO}, {sO}, {sT1}
        s_add_u32 {sO}, {sO}, {WS_KVX}
        s_add_u32 s72, {sO}, {sU1}
        s_add_u32 s73, {sO}, {sN}
        s_add_u32 {sSEG}, {sSEG}, 7""")
    tile(0, False)
    P('s_waitcnt vmcnt(0)\ns_barrier')
    verify(P, 'W_ver', 0, vr_='v197')
    P.c('the token-attention workgroups clear their own progress word before anyone can look at it')
    P(f'''s_lshr_b32 {sT1}, {sJ}, 1
    s_and_b32 {sT2}, {sJ}, 1
    s_lshl_b32 {sT2}, {sT2}, 7
    s_lshl_b32 {sT1}, {sT1}, 2
    s_add_u32 {sT1}, {sT1}, {sT2}
    s_add_u32 {sT1}, {sT1}, {WS_FO}
    s_cmp_lt_u32 {sJ}, 64
    s_cselect_b32 {sU3}, {sT1}, {WS_SIZE}
    v_mov_b32 v{T0}, 0
    s_mov_b64 exec, 1
    buffer_store_dword v{T0}, v{T0}, {SWS}, {sU3} offen sc1
    s_mov_b64 exec, -1''')
    P.c('the first team also arms the recurrence\'s hand-off buffers: the inbox of member h, and (heads 0, 1) the mem ring')
    P(f'''s_cmp_eq_u32 {sSEG}, 7
    s_cbranch_scc0 KV_na
    s_mul_i32 {sT0}, {sH}, {PART_DEST}
    s_mul_i32 {sT1}, {sW}, {PART_CHUNK}
    s_add_u32 {sT1}, {sT1}, {sT0}
    s_add_u32 {sT1}, {sT1}, {WS_PART}
    s_add_u32 {sT0}, {sT0}, {WS_PART + 4 * PART_CHUNK}
''')
    if CYC[0]: part_inbox(P, sH, sW, sT1, sT0, sT2, sT3)
    P(f'''s_lshl_b32 {sT2}, {sH}, 14
    s_mul_i32 {sT3}, {sW}, 3072
    s_add_u32 {sT2}, {sT2}, {sT3}
    s_add_u32 {sT2}, {sT2}, {WS_MEM}
    s_cmp_lt_u32 {sH}, 2
    s_cselect_b32 {sT2}, {sT2}, {WS_SIZE}
    s_cmp_eq_u32 {sW}, 0
    s_cselect_b32 {sT0}, {sT0}, {WS_SIZE}''')
    for sb_, o in ((sT1, 0), (sT1, 1024), (sT0, 0), (sT0, 1024), (sT2, 0), (sT2, 1024), (sT2, 2048)):
        P(f'buffer_store_dwordx4 v[64:67], v{A2}, {SWS}, {sb_} offen offset:{o} sc1')
    P.label('KV_na')
    P.label('KV_loop')
    for buf in (1, 0):
        tile(buf, True)
        P(f's_cmp_ge_u32 {sSEG}, {NSEG}\ns_cbranch_scc1 KV_done{buf}')
        if buf == KV_EARLY % 2:
            P(f's_sub_u32 {sT0}, {sSEG}, {7 * (KV_EARLY + 1)}\ns_cmp_lt_u32 {sT0}, 7\ns_cbranch_scc1 KV_early')
        P('s_waitcnt vmcnt(5)\ns_barrier')
        if buf == KV_EARLY % 2: P.label('KV_cont')
    P('s_branch KV_loop')
    P.label('KV_early')
    signal_add(P, 'KV_sig0', sU2)
    P('s_branch KV_cont')
    for buf in (1, 0):
        P.label(f'KV_done{buf}')
        P('s_nop 11')
        for x in epi(buf): P(x)
        if buf: P('s_branch KV_fin')
    P.label('KV_fin')
    signal_add(P, 'KV_sig', sU2, 0x100)

def phase_attn(P):
    P.c('==== token attention: head j/2, segments j%2, +2, ...')
    QL = 2 * XBUF
    MASK, SX_, SM_, QO, KO, VO, VMO, OA, KM, VMA = 48, 64, 80, 96, 128, 160, 168, 0, 218, 219
    P(f'''s_lshr_b32 {sH}, {sJ}, 1
    s_and_b32 {sSEG}, {sJ}, 1
    s_mul_i32 {sXS}, {sSEG}, {XBUF}''')
    xdma(P, 0)
    head_src(P)
    wload(P, [(SWQ, WD0, sB0, RP, 0)], 8192)
    P(f'''; causal mask as accumulator start: key = 8*(r>>2) + 4*hf + (r&3) > query -> -1e30
    v_and_b32 v{T0}, 31, v{L}
    v_lshrrev_b32 v{T1}, 5, v{L}
    v_lshlrev_b32 v{T2}, 2, v{T1}
    v_sub_u32 v{T0}, v{T0}, v{T2}
    v_mov_b32 v{T3}, 0xf149f2ca''')
    for r in range(16):
        P(f'v_cmp_gt_i32 vcc, {8 * (r // 4) + r % 4}, v{T0}\nv_cndmask_b32 v{MASK + r}, 0, v{T3}, vcc')
    KL, VL = QL + 8192, QL + 8192 + 2048
    KW, VW, PC, NEG = 220, 221, 172, 176
    P(f'''v_and_b32 v{KM}, 0xff, v{KA}
    v_add_u32 v{KM}, {KL}, v{KM}
    v_and_b32 v{T0}, 15, v{L}
    v_lshl_add_u32 v{T0}, v{T1}, 5, v{T0}
    v_lshlrev_b32 v{VMA}, 3, v{T0}
    v_bfe_u32 v{T0}, v{L}, 4, 1
    v_lshl_add_u32 v{VMA}, v{T0}, 2, v{VMA}
    s_lshl_b32 {sT0}, {sW}, 9
    s_add_u32 {sT0}, {sT0}, {VL}
    v_add_u32 v{VMA}, {sT0}, v{VMA}
    v_lshl_add_u32 v{VW}, v{L}, 3, {sT0}
    s_lshr_b32 {sT0}, {sW}, 1
    s_lshl_b32 {sT0}, {sT0}, 10
    s_and_b32 {sT1}, {sW}, 1
    s_lshl_b32 {sT1}, {sT1}, 3
    s_add_u32 {sT0}, {sT0}, {sT1}
    s_add_u32 {sT0}, {sT0}, {KL}
    v_add_u32 v{KW}, {sT0}, v{A2}
    s_lshl_b32 {sT0}, {sW}, 11
    s_add_u32 {sT0}, {sT0}, {QL}
    v_add_u32 v{RA}, {sT0}, v{A2}
    v_add_u32 v{WD1}, {QL}, v{A2}
    s_mov_b32 {sU0}, {f32bits(CB)}
    s_cmp_eq_u32 {sW}, 0
    s_cselect_b32 {sU3}, {sU3}, {WS_SIZE}
    s_lshl_b32 {sT2}, {sH}, 2
    s_add_u32 {sT2}, {sT2}, {DB_P1}''')
    for r in range(4): P(f'v_mov_b32 v{NEG + r}, -1')
    poll(P, 'AT_p1', SDBG, A2, sT2, f'v_cmp_gt_u32 vcc, 0x700, v{T0}', 1, 8)
    P.stamp(3)
    def xhalf(op, r):
        P(f'v_mov_b32 v{r + 1}, v{r}\nv_permlane32_swap_b32 v{r}, v{r + 1}\n{op} v{r}, v{r}, v{r + 1}')
    SETS = [dict(QO=('v', 96), OA=0, MX=180, LX=182, sO='s72', sP='s73', sS='s74'), dict(QO=('a', 144), OA=224, MX=184, LX=186, sO='s75', sP='s76', sS='s77')]
    PO, GA_ = 20, 240
    hld = f'buffer_load_dword v{PC}, off, {SWS}, {sU2} sc1'
    pld = lambda buf: f'buffer_load_dwordx4 {vr(PC, 4)}, v{A2}, {SWS}, {SETS[buf]["sP"]} offen sc1'
    def early(buf, look=True):
        R = SETS[buf]; qk, q0 = R['QO']; OA, MX, LX, sO_, sP = R['OA'], R['MX'], R['LX'], R['sO'], R['sP']
        P(f'''s_mov_b32 {R['sS']}, {sSEG}
        s_mul_i32 {sN}, {sSEG}, {SEG_STRIDE}
        s_lshl_b32 {sT1}, {sH}, 14
        s_add_u32 {sT1}, {sT1}, {sN}
        s_add_u32 {sT1}, {sT1}, {WS_KVX}
        s_lshl_b32 {sP}, {sH}, 2
        s_add_u32 {sP}, {sP}, {sW}
        s_lshl_b32 {sO_}, {sSEG}, 7
        s_add_u32 {sO_}, {sO_}, {sP}
        s_lshl_b32 {sO_}, {sO_}, 11
        s_add_u32 {sO_}, {sO_}, {WS_O}
        s_lshl_b32 {sP}, {sP}, 10
        s_add_u32 {sP}, {sP}, {sN}
        s_add_u32 {sP}, {sP}, {WS_KVM}
        s_add_u32 {sSEG}, {sSEG}, {NTEAM}''')
        for i in range(8): P(f'buffer_load_dwordx4 {vr(KO + 4 * i, 4)}, v{KA}, {SWS}, {sT1} offen offset:{256 * i} sc1')
        for a in range(2): P(f'buffer_load_dwordx4 {vr(VO + 4 * a, 4)}, v{VA}, {SWS}, {sT1} offen offset:{256 * a} sc1')
        if look: P(f's_or_b32 {sU2}, {SETS[1 - buf]["sP"]}, 0xc00'); P(hld)
        P(f's_add_u32 {sXS}, {sXS}, {NTEAM * XBUF}')
        P.c('(the two stores mark this segment\'s output slot as not yet written)')
        gemm(P, buf, [(GA_, 0, True)], [x for d_ in xdma_ins(1 - buf) + [f'buffer_store_dwordx4 {vr(NEG, 4)}, v{A2}, {SWS}, {sO_} offen offset:{1024 * a} sc1' for a in range(2)] for x in (d_, '')])
        for a in range(2):
            for r in range(4): P(cvt(16 + 4 * a + r, GA_ + 8 * a + r, GA_ + 8 * a + 4 + r))
            P(f'ds_write_b128 v{RA}, {vr(16 + 4 * a, 4)} offset:{1024 * a}')
        P('s_waitcnt lgkmcnt(0)\ns_barrier')
        for i in range(8): P(f'ds_read_b128 {vr(q0 + 4 * i, 4, qk)}, v{WD1} offset:{1024 * i}')
        if look:
            P.c('the awaited export is already there: fetch it now')
            P(f'v_cmp_eq_u32 vcc, -1, v{PC}\ns_mov_b32 {sU1}, 0\ns_cbranch_vccnz AT_e{buf}\ns_mov_b32 {sU1}, 1')
            snap = P.snapshot()
            P(pld(1 - buf))
            P.label(f'AT_e{buf}', keep=True); P.restore(snap)
        for i in range(8): P(f'{MF32} {vr(SX_, 16)}, {vr(KO + 4 * i, 4)}, {vr(q0 + 4 * i, 4, qk)}, {vr(MASK if i == 0 else SX_, 16)}')
        P.c('token keys first (running max), memory keys when they arrive')
        P(f'v_max3_f32 v{MX}, v{SX_}, v{SX_ + 1}, v{SX_ + 2}')
        for r in range(3, 15, 2): P(f'v_max3_f32 v{MX}, v{MX}, v{SX_ + r}, v{SX_ + r + 1}')
        P(f'v_max_f32 v{MX}, v{MX}, v{SX_ + 15}')
        xhalf('v_max_f32', MX)
        for r in range(16): P(f'v_sub_f32 v{SX_ + r}, v{SX_ + r}, v{MX}')
        for r in range(16): P(f'v_exp_f32 v{SX_ + r}, v{SX_ + r}')
        for a in range(2):
            for r in range(4): P(cvt(PO + 4 * a + r, SX_ + 4 * r + 2 * a, SX_ + 4 * r + 2 * a + 1))
        P(f'{MF32} {vr(OA, 16)}, {vr(VO, 4)}, {vr(PO, 4)}, 0')
        P(f'v_add_f32 v{LX}, v{SX_}, v{SX_ + 1}')
        for r in range(2, 8): P(f'v_add_f32 v{LX}, v{LX}, v{SX_ + r}')
        P(f'{MF32} {vr(OA, 16)}, {vr(VO + 4, 4)}, {vr(PO + 4, 4)}, {vr(OA, 16)}')
        for r in range(8, 16): P(f'v_add_f32 v{LX}, v{LX}, v{SX_ + r}')
    def late(buf):
        R = SETS[buf]; qk, q0 = R['QO']; OA, MX, LX, sO_, sP, sS = R['OA'], R['MX'], R['LX'], R['sO'], R['sP'], R['sS']
        P.c('watch one word of the export; only the final segments are polled whole')
        P(f's_cmp_eq_u32 {sU1}, 1\ns_cbranch_scc1 AT_v{buf}\ns_cmp_ge_u32 {sS}, {NSEG - 2}\ns_cbranch_scc1 AT_k{buf}\ns_branch AT_c{buf}')
        P.label(f'AT_h{buf}')
        P(f's_sleep {P.T.get("slp", 2)}')
        P.label(f'AT_c{buf}')
        P(hld)
        P(f's_add_u32 {sSPIN}, {sSPIN}, 1\ns_cmp_lt_u32 {sSPIN}, {SPIN_MAX}\ns_cselect_b32 {sT0}, -2, -1\ns_waitcnt vmcnt(0)\nv_cmp_lt_u32 vcc, {sT0}, v{PC}\ns_cbranch_vccnz AT_h{buf}')
        P.label(f'AT_k{buf}')
        P(pld(buf))
        P.label(f'AT_v{buf}')
        P(f'''s_mov_b32 {sU1}, 0
        s_add_u32 {sSPIN}, {sSPIN}, 1
        s_cmp_lt_u32 {sSPIN}, {SPIN_MAX}
        s_cselect_b32 {sT0}, -2, -1
        s_waitcnt vmcnt(0)
        ds_write_b64 v{KW}, {vr(PC, 2)} offset:{4096 * buf}
        ds_write_b64 v{VW}, {vr(PC + 2, 2)} offset:{4096 * buf}
        v_max3_u32 v{T2}, v{PC}, v{PC + 1}, v{PC + 2}
        v_max_u32 v{T2}, v{T2}, v{PC + 3}
        v_cmp_lt_u32 vcc, {sT0}, v{T2}
        s_cbranch_vccnz AT_k{buf}
        s_waitcnt lgkmcnt(0)
        s_barrier''')
        for i in range(8): P(f'ds_read_b128 {vr(KO + 4 * i, 4)}, v{KM} offset:{4096 * buf + 256 * i}')
        for b_ in range(2): P(f'ds_read_b32 v{VMO + b_}, v{VMA} offset:{4096 * buf + 128 * b_}')
        for i in range(8): P(f'{MF32} {vr(SM_, 16)}, {vr(KO + 4 * i, 4)}, {vr(q0 + 4 * i, 4, qk)}, {"0" if i == 0 else vr(SM_, 16)}')
        P(f's_add_u32 {sS}, {sS}, {NTEAM}\nv_mov_b32 v{T1}, {sS}')
        M2, AL = SM_ + 4, SM_ + 6
        for r in range(4): P(f'v_mul_f32 v{SM_ + r}, {sU0}, v{SM_ + r}')
        P(f'v_max3_f32 v{M2}, v{MX}, v{SM_}, v{SM_ + 1}\nv_max3_f32 v{M2}, v{M2}, v{SM_ + 2}, v{SM_ + 3}')
        xhalf('v_max_f32', M2)
        P(f'v_sub_f32 v{AL}, v{MX}, v{M2}')
        for r in range(4): P(f'v_sub_f32 v{SM_ + r}, v{SM_ + r}, v{M2}')
        P(f'v_exp_f32 v{AL}, v{AL}')
        for r in range(4): P(f'v_exp_f32 v{SM_ + r}, v{SM_ + r}')
        P(f'''v_fma_f32 v{LX}, v{LX}, v{AL}, v{SM_}
        v_add_f32 v{M2}, v{SM_ + 1}, v{SM_ + 2}
        v_add_f32 v{LX}, v{LX}, v{SM_ + 3}
        v_add_f32 v{LX}, v{LX}, v{M2}''')
        xhalf('v_add_f32', LX)
        P(f'v_rcp_f32 v{LX}, v{LX}\nv_mul_f32 v{AL}, v{AL}, v{LX}')
        for r in range(4): P(f'v_mul_f32 v{SM_ + r}, v{LX}, v{SM_ + r}')
        P(cvt(PO + 8, SM_, SM_ + 1)); P(cvt(PO + 9, SM_ + 2, SM_ + 3))
        for r in range(16): P(f'v_mul_f32 v{OA + r}, v{AL}, v{OA + r}')
        P(f'v_mfma_f32_32x32x8_bf16 {vr(OA, 16)}, {vr(VMO, 2)}, {vr(PO + 8, 2)}, {vr(OA, 16)}')
        for a in range(2):
            for r in range(4): P(cvt(PO + 4 * a + r, OA + 8 * a + 2 * r, OA + 8 * a + 2 * r + 1))
            P(f'buffer_store_dwordx4 {vr(PO + 4 * a, 4)}, v{A2}, {SWS}, {sO_} offen offset:{1024 * a} sc1')
        P.c('the progress word only says when to look: readers check the data itself')
        if P.T.get('hbar'): P('s_barrier')
        if P.T.get('hack'): P('s_waitcnt vmcnt(0)\ns_barrier')
        P(f'''s_mov_b64 exec, 1
        buffer_store_dword v{T1}, v{A2}, {SWS}, {sU3} offen sc1
        s_mov_b64 exec, -1
        s_cmp_ge_u32 {sS}, {NSEG}
        s_cbranch_scc1 L_exit''')
    early(0, False)
    P('s_waitcnt vmcnt(0)\ns_barrier')
    P.label('AT_loop')
    for buf in range(2):
        P(f's_cmp_ge_u32 {sSEG}, {NSEG}\ns_cbranch_scc1 AT_l{buf}')
        early(1 - buf)
        P.label(f'AT_l{buf}')
        late(buf)
    P('s_branch AT_loop')

def phase_a(P):
    P.c('==== branch A: 4 heads x 128 tokens (qkv projection, dilated local attention), and the gate of 16 tokens')
    RL, PA = 2 * XBUF, 516
    sG, sRUN = sU0, sU1
    P(f'''s_sub_u32 {sT0}, {sJ}, 64
    s_lshr_b32 {sG}, {sT0}, 4
    s_and_b32 {sRUN}, {sT0}, 15
    s_lshl_b32 {sXS}, {sRUN}, 2
    s_sub_u32 {sXS}, {sXS}, 1
    s_max_i32 {sXS}, {sXS}, 0
    s_mul_i32 {sXS}, {sXS}, {XBUF}''')
    xdma(P, 0)
    P.c('gate: 4 tokens per wave, 16 lanes per token, 72 B per lane')
    GX, GW = 48, 68
    P(f'''v_and_b32 v{T0}, 15, v{L}
    v_mul_u32_u24 v{T0}, 72, v{T0}
    v_lshrrev_b32 v{T1}, 4, v{L}
    v_mul_u32_u24 v{T2}, 1152, v{T1}
    v_add_u32 v{T2}, v{T2}, v{T0}
    s_lshl_b32 {sT0}, {sT0}, 2
    s_add_u32 {sU2}, {sT0}, {sW}
    s_mul_i32 {sT1}, {sU2}, {4 * 1152}''')
    for base, va, srd, so in ((GX, T2, SX, sT1), (GW, T0, SGATE, '0')):
        for i in range(4): P(f'buffer_load_dwordx4 {vr(base + 4 * i, 4)}, v{va}, {srd}, {so} offen offset:{16 * i}')
        P(f'buffer_load_dwordx2 {vr(base + 16, 2)}, v{va}, {srd}, {so} offen offset:64')
    P(f'v_mov_b32 v0, 0\nv_mov_b32 v1, 0x3f803f80')
    for i in range(18):
        P(f'''v_lshlrev_b32 v2, 16, v{GX + i}
        v_lshlrev_b32 v3, 16, v{GW + i}
        v_and_b32 v4, 0xffff0000, v{GX + i}
        v_and_b32 v5, 0xffff0000, v{GW + i}
        v_mul_f32 v2, v2, v3
        v_mul_f32 v4, v4, v5
        v_cvt_pk_bf16_f32 v2, v2, v4
        v_lshlrev_b32 v3, 16, v2
        v_and_b32 v4, 0xffff0000, v2
        v_add_f32 v0, v0, v3
        v_add_f32 v0, v0, v4''')
    for rot in (1, 2, 4, 8): P(f'v_add_f32_dpp v0, v0, v0 row_ror:{rot} row_mask:0xf bank_mask:0xf')
    P(f'''v_cvt_pk_bf16_f32 v0, v0, v0
    v_lshlrev_b32 v0, 16, v0
    v_mul_f32 v0, {f32bits(-math.log2(math.e))}, v0
    v_exp_f32 v0, v0
    v_add_f32 v0, 1.0, v0
    v_rcp_f32 v0, v0
    v_cvt_pk_bf16_f32 v0, v0, v0
    v_lshlrev_b32 v0, 16, v0
    v_lshlrev_b32 v{T1}, 2, v{T1}
    s_lshl_b32 {sT1}, {sU2}, 4
    s_add_u32 {sT1}, {sT1}, {WS_G}
    s_mov_b64 exec, 0x0001000100010001
    buffer_store_dword v0, v{T1}, {SWS}, {sT1} offen sc1
    s_mov_b64 exec, -1'''.replace('s_mov_b64 exec, 0x0001000100010001', 's_mov_b32 exec_lo, 0x00010001\ns_mov_b32 exec_hi, 0x00010001'))
    P.c('weight sources: virtual chunk cv = 16m + (p ^ 4r): 1152*(cv/9) + 16*(cv%9), cv >= 27 is padding')
    P(f'''v_lshrrev_b32 v{T0}, 4, v{L}
    v_lshlrev_b32 v{T1}, 2, v{T0}
    v_and_b32 v{T2}, 15, v{L}
    v_xor_b32 v{T1}, v{T1}, v{T2}
    v_mul_u32_u24 v{T0}, 3456, v{T0}
    v_mov_b32 v2, 0x40000000''')
    for m, wd in enumerate((WD0, WD1)):
        P(f'''v_add_u32 v{T2}, {16 * m}, v{T1}
        v_mul_u32_u24 v{T3}, 57, v{T2}
        v_lshrrev_b32 v{T3}, 9, v{T3}
        v_mul_u32_u24 v{T3}, 1008, v{T3}
        v_lshl_add_u32 v{T3}, v{T2}, 4, v{T3}
        v_add_u32 v{T3}, v{T3}, v{T0}
        v_cmp_lt_u32 vcc, 26, v{T2}
        v_cndmask_b32 v{wd}, v{T3}, v2, vcc''')
    P(f's_mul_i32 {sB0}, {sG}, 144\ns_mul_i32 {sT0}, {sW}, {4 * 3456}\ns_add_u32 {sB0}, {sB0}, {sT0}')
    P('s_waitcnt vmcnt(0)')
    wload(P, [(SWQKV, WD0, sB0, RN, 0), (SWQKV, WD1, sB0, RN, 36)], 3456)
    P.stamp(3)
    WA, RB_, OAD = 218, 219, 220
    P(f'''; qkv row write address: (l&31)*PA + 64w + 8*hf
    v_and_b32 v{T0}, 31, v{L}
    v_mul_u32_u24 v{WA}, {PA}, v{T0}
    v_lshrrev_b32 v{T1}, 5, v{L}
    v_lshl_add_u32 v{WA}, v{T1}, 3, v{WA}
    s_lshl_b32 {sT0}, {sW}, 6
    s_add_u32 {sT0}, {sT0}, {RL}
    v_add_u32 v{WA}, {sT0}, v{WA}
    s_lshl_b32 {sXS}, {sRUN}, 2
    s_mul_i32 {sXS}, {sXS}, {XBUF}''')
    for tile in range(5):
        buf = tile % 2
        gemm(P, buf, [(0, 0, True), (16, 36, True)], [x for d_ in xdma_ins(1 - buf) for x in (d_, '')] if tile < 4 else [])
        P(f's_add_u32 {sXS}, {sXS}, {XBUF}')
        for m in range(2):
            for qd in range(4):
                P(cvt(48, 16 * m + 4 * qd, 16 * m + 4 * qd + 1)); P(cvt(49, 16 * m + 4 * qd + 2, 16 * m + 4 * qd + 3))
                o = (256 * m + 16 * qd) // 4
                P(f'ds_write2_b32 v{WA}, v48, v49 offset0:{o} offset1:{o + 1}')
        P(f'v_add_u32 v{WA}, {32 * PA}, v{WA}')
        P('s_waitcnt vmcnt(0) lgkmcnt(0)\ns_barrier')
    if 'astamp' in P.opt: P.stamp(1)
    P.c('attention: wave = head, lane = token, two rounds of 64 tokens')
    Q, KV, SC, O = 0, 16, 100, 112
    P(f'''v_mul_u32_u24 v{RB_}, {PA}, v{L}
    s_mul_i32 {sT0}, {sW}, 36
    s_add_u32 {sT1}, {sT0}, {RL + (32 - 14) * PA}
    v_add_u32 v{RB_}, {sT1}, v{RB_}
    v_mul_u32_u24 v{OAD}, 1152, v{L}
    s_mul_i32 {sT1}, {sG}, 144
    s_add_u32 {sT0}, {sT0}, {sT1}
    s_mul_i32 {sT1}, {sRUN}, {128 * 1152}
    s_add_u32 {sO}, {sT0}, {sT1}
    s_add_u32 {sO}, {sO}, {WS_OA}
    s_lshl_b32 {sN}, {sRUN}, 7
    s_mov_b32 {sT3}, {f32bits(CA)}''')
    def rd9(dst, off):
        for i in range(9): P(f'ds_read_b32 v{dst + i}, v{RB_} offset:{off + 4 * i}')
    for rnd in range(2):
        rd9(Q, 14 * PA)
        for j in range(8): rd9(KV + 9 * j, (14 - 2 * j) * PA + 144)
        for j in range(8): P(f'v_mov_b32 v{SC + j}, 0')
        for i in range(9):
            for j in range(8): P(f'v_dot2c_f32_bf16 v{SC + j}, v{Q + i}, v{KV + 9 * j + i}')
        for j in range(8): rd9(KV + 9 * j, (14 - 2 * j) * PA + 288)
        P(f'v_add_u32 v{T0}, {sN}, v{L}\nv_mov_b32 v{T1}, 0xf149f2ca')
        for j in range(8): P(f'v_mul_f32 v{SC + j}, {sT3}, v{SC + j}')
        for j in range(1, 8): P(f'v_cmp_gt_u32 vcc, {2 * j}, v{T0}\nv_cndmask_b32 v{SC + j}, v{SC + j}, v{T1}, vcc')
        P(f'''v_max3_f32 v{T2}, v{SC}, v{SC + 1}, v{SC + 2}
        v_max3_f32 v{T2}, v{T2}, v{SC + 3}, v{SC + 4}
        v_max3_f32 v{T2}, v{T2}, v{SC + 5}, v{SC + 6}
        v_max_f32 v{T2}, v{T2}, v{SC + 7}''')
        for j in range(8): P(f'v_sub_f32 v{SC + j}, v{SC + j}, v{T2}')
        for j in range(8): P(f'v_exp_f32 v{SC + j}, v{SC + j}')
        P(f'v_add_f32 v{T2}, v{SC}, v{SC + 1}')
        for j in range(2, 8): P(f'v_add_f32 v{T2}, v{T2}, v{SC + j}')
        P(f'v_rcp_f32 v{T2}, v{T2}\nv_mov_b32 v{T3}, 0')
        for j in range(8): P(f'v_mul_f32 v{SC + j}, v{T2}, v{SC + j}')
        for i in range(18): P(f'v_mov_b32 v{O + i}, 0')
        for j in range(8):
            P(cvt(Q + 2 * (j % 2), SC + j, T3)); P(cvt(Q + 1 + 2 * (j % 2), T3, SC + j))
            for i in range(9):
                P(f'v_dot2c_f32_bf16 v{O + 2 * i}, v{KV + 9 * j + i}, v{Q + 2 * (j % 2)}')
                P(f'v_dot2c_f32_bf16 v{O + 2 * i + 1}, v{KV + 9 * j + i}, v{Q + 1 + 2 * (j % 2)}')
        for i in range(9): P(cvt(132 + i, O + 2 * i, O + 2 * i + 1))
        P(f'''buffer_store_dwordx4 v[132:135], v{OAD}, {SWS}, {sO} offen sc1
        buffer_store_dwordx4 v[136:139], v{OAD}, {SWS}, {sO} offen offset:16 sc1
        buffer_store_dword v140, v{OAD}, {SWS}, {sO} offen offset:32 sc1''')
        if rnd == 0:
            P(f'v_add_u32 v{RB_}, {64 * PA}, v{RB_}\ns_add_u32 {sN}, {sN}, 64\ns_add_u32 {sO}, {sO}, {64 * 1152}')
    P(f's_mov_b32 {sT2}, {DB_ADONE}')
    signal_add(P, 'A_sig', sT2)

def phase_out(P):
    P.c('==== output projection + gated mix: 16 tokens x 32 columns per step, K split over the waves')
    def oreg(i):
        return ('a', 4 * i) if i < 64 else ('v', 216 + 4 * (i - 64))
    sSET, sHALF, sSL = sU0, sU1, sU2
    DAT, ACB, ACA, OB, OAA, GA, OUT, RO = 0, 148, 156, 164, 165, 166, 167, 168
    P.c('each set is spread over four dies: die pair = token half, die parity = column half')
    P(f'''s_and_b32 {sT0}, {sJ}, 31
    s_mul_i32 {sSET}, {sT0}, 57
    s_lshr_b32 {sSET}, {sSET}, 9
    s_mul_i32 {sT2}, {sSET}, 9
    s_sub_u32 {sSL}, {sT0}, {sT2}
    s_bfe_u32 {sT1}, {sJ}, 0x10005
    s_mul_i32 {sT1}, {sT1}, 9
    s_add_u32 {sSL}, {sSL}, {sT1}
    s_bfe_u32 {sHALF}, {sJ}, 0x10006
    v_lshrrev_b32 v{T0}, 2, v{L}
    v_mul_u32_u24 v{T0}, 1152, v{T0}
    v_and_b32 v{T1}, 3, v{L}
    v_lshl_add_u32 v{WD0}, v{T1}, 4, v{T0}
    s_lshl_b32 {sT0}, {sSL}, 6
    s_mul_i32 {sT1}, {sW}, {1024 * 1152}
    s_add_u32 {sB0}, {sT0}, {sT1}
    s_mul_i32 {sT1}, {sW}, {160 * 1152}
    s_add_u32 {sB1}, {sT0}, {sT1}
    s_mul_i32 {sM}, {sW}, 40960
    v_bfe_u32 v{T0}, v{L}, 2, 2
    v_lshlrev_b32 v{T1}, 4, v{T1}
    v_add_u32 v{T1}, {sM}, v{T1}
    v_lshl_add_u32 v{T1}, v{T0}, 6, v{T1}
    v_lshrrev_b32 v{T2}, 4, v{L}
    v_lshl_add_u32 v{RN}, v{T2}, 9, v{T1}
    v_lshrrev_b32 v{T3}, 5, v{L}
    v_lshl_add_u32 v{RP}, v{T3}, 10, v{T1}
    v_and_b32 v{T3}, 1, v{T2}
    v_lshl_add_u32 v{RP}, v{T3}, 8, v{RP}''')
    NS = 20
    def dma(k):
        for y in range(2):
            srd, base, row = (SWO, sB0, 32 * k) if k < 32 else (SWOA, sB1, 32 * (k - 32))
            P(f's_add_u32 m0, {sM}, {(k % NS) * 2048 + 1024 * y}\ns_add_u32 {sT0}, {base}, {(row + 16 * y) * 1152}')
            P(f'buffer_load_dwordx4 v{WD0}, {srd}, {sT0} offen lds')
    for k in range(NS - 1): dma(k)
    for k in range(37):
        P(f's_waitcnt vmcnt({2 * (min(37, k + NS - 1) - k - 1)}) lgkmcnt(0)')
        if k + NS - 1 < 37: dma(k + NS - 1)
        for t in range(2):
            kind, r = oreg(2 * k + t)
            for u in range(2):
                P(f'ds_read_b64_tr_b16 {vr(r + 2 * u, 2, kind)}, v{RP if k < 32 else RN} offset:{(k % NS) * 2048 + 8 * t + (512 if k < 32 else 256) * u}')
    P(f'''; operand addresses: O_B unit (g>>1)*1024 + ((g&1)*32 + 16*half + n)*16 ; O_A row (16*half + n)*1152 + 16g
    v_and_b32 v{T0}, 15, v{L}
    s_lshl_b32 {sT0}, {sHALF}, 4
    v_add_u32 v{T0}, {sT0}, v{T0}
    v_lshl_add_u32 v{T1}, v{T3}, 5, v{T0}
    v_lshlrev_b32 v{OB}, 4, v{T1}
    v_lshrrev_b32 v{T1}, 5, v{L}
    v_lshl_add_u32 v{OB}, v{T1}, 10, v{OB}
    v_mul_u32_u24 v{OUT}, 1152, v{T0}
    v_lshl_add_u32 v{OUT}, v{T2}, 4, v{OUT}
    v_lshlrev_b32 v{GA}, 2, v{T0}
    v_lshlrev_b32 v{WD1}, 2, v{L}
    s_lshl_b32 {sT0}, {sW}, 11
    v_add_u32 v{RO}, {sT0}, v{A2}
    s_mov_b32 {sSEG}, {sSET}
    s_mov_b32 {sT2}, {DB_P1}
    s_mov_b32 {sT3}, {DB_ADONE}
    s_waitcnt lgkmcnt(0)''')
    P.stamp(5)
    poll(P, 'O_p1', SDBG, WD1, sT2, f'v_cmp_gt_u32 vcc, 0x700, v{T0}', -1, 16)
    poll(P, 'O_a', SDBG, WD1, sT3, f'v_cmp_gt_u32 vcc, 0x80, v{T0}', 1, 16)
    P.stamp(6)
    FL, CKR, GN, PFA, PFD = 169, 170, 171, 172, 173
    P.c('the workgroups of a die that share these rows each pull a different eighth into its L2 first (speed only)')
    P(f'''s_cmp_ge_u32 {sSL}, 9
    s_cselect_b32 {sT0}, 9, 0
    s_sub_u32 {sT0}, {sSL}, {sT0}
    s_and_b32 {sT0}, {sT0}, 7
    s_lshl_b32 {sT0}, {sT0}, 13
    s_lshl_b32 {sT1}, {sHALF}, 8
    s_add_u32 {sT0}, {sT0}, {sT1}
    v_lshrrev_b32 v{T0}, 2, v{L}
    v_lshl_add_u32 v{PFA}, v{T0}, 9, {sT0}
    v_and_b32 v{T0}, 3, v{L}
    v_lshl_add_u32 v{PFA}, v{T0}, 6, v{PFA}''')
    def a_loads(seg):
        P(f'''s_mul_i32 {sT1}, {seg}, {XBUF}
        s_mul_i32 {sT0}, {sW}, 320
        s_add_u32 {sT1}, {sT1}, {sT0}
        s_add_u32 {sT1}, {sT1}, {WS_OA}
        s_cmp_eq_u32 {sW}, 3
        s_cselect_b32 {sT2}, {WS_SIZE}, {sT1}''')
        for k in range(5): P(f'buffer_load_dwordx4 {vr(DAT + 128 + 4 * k, 4)}, v{OUT}, {SWS}, {sT1 if k < 3 else sT2} offen offset:{64 * k} sc1')
        P(f's_lshl_b32 {sT1}, {seg}, 7\ns_add_u32 {sT1}, {sT1}, {WS_G}\nbuffer_load_dword v{GN}, v{GA}, {SWS}, {sT1} offen sc1')
    def mm(acc, k, first):
        for t in range(2):
            kind, r = oreg(2 * k + t)
            P(f'{MF} {vr(acc + 4 * t, 4)}, {vr(r, 4, kind)}, {vr(DAT + 4 * k, 4)}, {"0" if first else vr(acc + 4 * t, 4)}')
    a_loads(sSEG)
    P(f'v_mov_b32 v{FL}, 0\ns_mov_b32 {sN}, {WS_FO}\ns_waitcnt vmcnt(0)')
    P.label('O_loop')
    for k in range(32, 37): mm(ACA, k, k == 32)
    P(f'''s_mul_i32 {sO}, {sSEG}, {XBUF}
    s_lshl_b32 {sT0}, {sSL}, 6
    s_add_u32 {sO}, {sO}, {sT0}
    s_add_u32 {sU3}, {sSEG}, {NTEAM}
    s_lshl_b32 {sT1}, {sSEG}, 18
    s_lshl_b32 {sT0}, {sW}, 16
    s_add_u32 {sT1}, {sT1}, {sT0}
    s_add_u32 {sB1}, {sT1}, {WS_O}
    s_and_b32 {sT0}, {sSEG}, 1
    s_lshl_b32 {sT0}, {sT0}, 2
    s_add_u32 {sT0}, {sT0}, {sW}
    s_lshl_b32 {sT0}, {sT0}, 3
    s_lshl_b64 s[72:73], 0xff, {sT0}
    v_sub_f32 v{OAA}, 1.0, v{GN}
    v_cvt_pk_bf16_f32 v{OAA}, v{OAA}, v{OAA}
    v_lshlrev_b32 v{OAA}, 16, v{OAA}''')
    for r in range(8): P(f'v_mul_f32 v{ACA + r}, v{GN}, v{ACA + r}')
    P('s_branch O_pc')
    P.label('O_pl')
    P(f's_sleep {P.T.get("slp", 1)}\nbuffer_load_dword v{FL}, v{WD1}, {SWS}, {sN} offen sc1\ns_add_u32 {sSPIN}, {sSPIN}, 1\ns_cmp_ge_u32 {sSPIN}, {SPIN_MAX}\ns_cbranch_scc1 O_ld\ns_waitcnt vmcnt(0)')
    P.label('O_pc')
    P(f'v_cmp_gt_u32 vcc, {sU3}, v{FL}\ns_and_b64 vcc, vcc, s[72:73]\ns_cbranch_scc1 O_pl')
    if 'ostamp' in P.opt: P.stamp(3); P('s_mov_b32 s100, 0')
    P.label('O_ld')
    if 'ostamp' in P.opt: P('s_add_u32 s100, s100, 1')
    P(f's_mov_b32 {sB0}, {sB1}')
    if P.T.get('opf', 1): P(f'buffer_load_dword v{PFD}, v{PFA}, {SWS}, {sB1} offen sc1')
    for k in range(32):
        P(f'buffer_load_dwordx4 {vr(DAT + 4 * k, 4)}, v{OB}, {SWS}, {sB0} offen offset:{2048 * (k % 2)} sc1')
        if k % 2: P(f's_add_u32 {sB0}, {sB0}, 4096')
    P(f's_add_u32 {sT3}, {sSEG}, {NSET}')
    P(f's_min_u32 s74, {sT3}, {NSEG - 1}')
    a_loads('s74')
    P(f's_add_u32 {sSPIN}, {sSPIN}, 1\ns_cmp_lt_u32 {sSPIN}, {SPIN_MAX}\ns_cselect_b32 {sT0}, -2, -1')
    for k in range(32):
        mm(ACB, k, k == 0)
        r = DAT + 4 * k
        P(f'v_max3_u32 v{CKR}, v{r}, v{r + 1}, v{CKR if k else r}\nv_max3_u32 v{CKR}, v{r + 2}, v{r + 3}, v{CKR}')
    P(f'v_cmp_lt_u32 vcc, {sT0}, v{CKR}\ns_cbranch_vccnz O_ld')
    if 'ostamp' in P.opt: P.stamp(4)
    for r in range(8): P(f'v_fmac_f32 v{ACA + r}, v{OAA}, v{ACB + r}')
    P(f'''ds_write_b128 v{RO}, {vr(ACA, 4)}
    ds_write_b128 v{RO}, {vr(ACA + 4, 4)} offset:1024
    v_xor_b32 v{RO}, 0x2000, v{RO}
    s_mov_b32 {sSEG}, {sT3}
    s_waitcnt lgkmcnt(0)
    s_barrier
    s_cmp_eq_u32 {sW}, 0
    s_cbranch_scc0 O_next
    v_xor_b32 v{T0}, 0x2000, v{RO}''')
    for i in range(6): P(f'ds_read_b128 {vr(DAT + 4 * i, 4)}, v{T0} offset:{2048 + 1024 * i}')
    for i in range(6):
        for r in range(4): P(f'v_add_f32 v{ACA + 4 * (i % 2) + r}, v{ACA + 4 * (i % 2) + r}, v{DAT + 4 * i + r}')
    for r in range(4): P(cvt(ACB + r, ACA + 2 * r, ACA + 2 * r + 1))
    P(f'buffer_store_dwordx4 {vr(ACB, 4)}, v{OUT}, {SOUT}, {sO} offen {P.T.get("ofl", "")}\ns_waitcnt vmcnt(1)\ns_branch O_nx2')
    P.label('O_next')
    P('s_waitcnt vmcnt(0)')
    P.label('O_nx2')
    P(f's_cmp_lt_u32 {sSEG}, {NSEG}\ns_cbranch_scc1 O_loop')

def worker(P):
    P.nextra = P.entry_extra()
    common(P)
    phase_kv(P)
    P.stamp(2)
    if P.plog or 'onlykv' in P.opt: P('s_branch L_exit')
    P(f's_cmp_ge_u32 {sJ}, 192\ns_cbranch_scc1 L_exit')
    P(f's_cmp_lt_u32 {sJ}, 64\ns_cbranch_scc1 W_h')
    phase_a(P)
    P.stamp(4)
    if 'noO' in P.opt: P('s_branch L_exit')
    P(f's_and_b32 {sT0}, {sJ}, 31\ns_cmp_lt_u32 {sT0}, {9 * NSET}\ns_cbranch_scc0 L_exit')
    phase_out(P)
    P('s_branch L_exit')
    P.label('W_h')
    phase_attn(P)
```

```python
from asmgen import *
from layout import *

QA, QB, QC, QD, QE = 0, 4, 8, 12, 16
ACQ, ACK, ACV, KX, VX, QOP, ONES, VM = 20, 28, 36, 44, 52, 60, 68, 72
IDX, A1, A2, R1, R2, R3 = 74, 75, 76, 77, 78, 79
A3, A5, A5X, TT = ONES, ONES + 1, ONES + 2, ONES + 3
sW, sH, sT0, sT1, sT2, sT3 = 's52', 's53', 's54', 's55', 's56', 's57'
sKV, sKV2, sPR, sPRX, sMW, sMWX, sMR, sM8, sSTEP, sSPIN, sEXP, sCB, sPF, sFLG, sTAG = ['s%d' % i for i in range(58, 73)]
sPW = ['s73', 's74', 's75', 's76', 's77']
sMODE, sDM = 's3', 's85'
L_ROW, PITCH = 0, 576
L_MEM = 8 * PITCH
L_O = L_MEM + 4096
L_TAB = L_MEM + 9216
L_SEL = L_TAB + 1024
L_SCR = L_SEL + 1024
L_ZERO = L_SEL + 32
L_W = 16384
SM = 'v_smfmac_f32_16x16x64_bf16'
MF = 'v_mfma_f32_16x16x32_bf16'
MF16 = 'v_mfma_f32_16x16x16_bf16'

blocks_lds = [('k', 0), ('k', 1), ('k', 4), ('q', 6), ('k', 5), ('x',), ('d', 0, 0), ('d', 1, 1), ('d', 3, 0)]
blocks_reg = [b for b in [(m, t) for m in 'qkv' for t in range(9)] + [('d', d, b) for d in range(4) for b in (0, 1)] if b not in blocks_lds]
def block_ops(b):
    if b[0] in 'qkv': return [(b[0], b[1], 0), (b[0], b[1], 1)]
    if b[0] == 'x': return [('x', c) for c in range(4)]
    return [('d', b[1], 2 * b[2]), ('d', b[1], 2 * b[2] + 1)]
HOME = {}
_free = [('v', 80 + 8 * i) for i in range(22)] + [('a', 8 * i) for i in range(32)]
for b in blocks_reg:
    for o in block_ops(b): HOME[o] = _free.pop(0)
assert not _free
for j, b in enumerate(blocks_lds):
    for x, o in enumerate(block_ops(b)): HOME[o] = ('lds', j, x)

def lds_fetch(o, dst, w):
    _, j, x = HOME[o]
    off = L_W + j * 16384 + (w * 4096 if o[0] != 'x' else (w - 2) * 8192) + x * 2048
    if off < 0x10000: base = A2
    elif off < 0x18000: base = A1; off -= 0x10000
    else: base = A1; off -= 0x18000
    return [f'ds_read_b128 {vr(dst, 4)}, v{base} offset:{off}', f'ds_read_b128 {vr(dst + 4, 4)}, v{base} offset:{off + 1024}']

def prologue(P):
    P.c('---- chain prologue: per-lane constants')
    L, N, G, T0, T1, T2, T3 = 0, 1, 2, 3, 4, 5, 6
    DQ, DX, DD, RQ0, RQ1, RX0, RD, RA, RB = 8, 9, 10, 11, 12, 13, 14, 15, 16
    P(f'''v_and_b32 v{L}, 63, v0
    v_and_b32 v{N}, 15, v{L}
    v_lshrrev_b32 v{G}, 4, v{L}''')
    P(f'''v_and_b32 v{T0}, 1, v{G}
    s_lshl_b32 {sT0}, {sW}, 1
    v_add_u32 v{T0}, {sT0}, v{T0}
    v_lshlrev_b32 v{T0}, 1, v{T0}
    v_xor_b32 v{T0}, v{T0}, v{N}
    v_lshlrev_b32 v{T0}, 4, v{T0}
    v_lshl_add_u32 v{DQ}, v{G}, 13, v{T0}''')
    blocks = (getattr(P, 'border', None) or (lambda b: b))(blocks_reg) + blocks_lds
    sHQ, sHO, sM = 's78', 's79', sT3
    P(f'''s_lshl_b32 {sHQ}, {sH}, 8
    s_lshl_b32 {sT0}, {sW}, 15
    s_add_u32 {sHQ}, {sHQ}, {sT0}
    s_mul_i32 {sHO}, {sH}, 147456
    s_lshl_b32 {sM}, {sW}, 10
    s_add_u32 {sM}, {sM}, {L_W}''')
    def dma(j):
        b = blocks[j]; slot = j % 9
        for y in range(4):
            if b[0] in 'qkv':
                srd, va, base, off = {'q': SWQ, 'k': SWK, 'v': SWV}[b[0]], DQ, sHQ, (64 * b[1] + 16 * y) * 8192
            elif b[0] == 'x':
                srd, va, base, off = SWO, DX, sHO, 32 * y * 1152 + 1024
            else:
                srd, va, base, off = SWO, DD, sHO, (64 * b[2] + 8 * (y & 1) + 32 * (y >> 1)) * 1152 + 256 * b[1]
            P(f'''s_add_u32 m0, {sM}, {slot * 16384 + y * 4096}
            s_add_u32 {sT0}, {base}, {off}
            buffer_load_dwordx4 v{va}, {srd}, {sT0} offen {P.wfl} lds''')
    marks = {}
    cnt = [0]
    def note(n): cnt[0] += n
    if getattr(P, 'plog', False): P(f's_memrealtime s[86:87]\ns_waitcnt lgkmcnt(0)\nv_writelane_b32 v34, s86, 0')
    if P.entry_extra and P.cpf0 == 0: note(P.entry_extra())
    WIN = P.win
    for j in range(WIN):
        dma(j); note(4); marks[j] = cnt[0]
        if P.entry_extra and j + 1 == P.cpf0: note(P.entry_extra())
        if j == 0 and P.tlb:
            P.c('each member looks up a different page once, so the die\'s shared TLB fills in parallel (speed only)')
            P(f's_and_b32 {sT1}, {sH}, 7\ns_lshl_b32 {sT1}, {sT1}, 20\ns_lshr_b32 {sT2}, {sH}, 3\ns_cmp_eq_u32 {sW}, 3\ns_cselect_b32 {sT2}, {sT2}, 9\nv_mov_b32 v7, 0\ns_mov_b64 exec, 1')
            for m, srd in enumerate((SWQ, SWK, SWV, SWO)):
                P(f's_cmp_eq_u32 {sT2}, {m}\ns_cselect_b32 {sT0}, {sT1}, {WS_SIZE}\nbuffer_load_dword v36, v7, {srd}, {sT0} offen', nowait=True)
            P(f's_lshl_b32 {sT2}, {sT2}, 21\ns_cmp_eq_u32 {sT1}, {7 << 20}\ns_cselect_b32 {sT0}, {sT2}, {WS_SIZE}\ns_cmp_eq_u32 {sW}, 3\ns_cselect_b32 {sT0}, {sT0}, {WS_SIZE}')
            P(f'buffer_load_dword v36, v7, {SWS}, {sT0} offen offset:{PART_DEST - 128} sc1\ns_mov_b64 exec, -1', nowait=True)
    P(f'''v_lshlrev_b32 v{A2}, 4, v{L}
    v_add_u32 v{A1}, 0x10000, v{A2}
    ; i(n) = 2*(n>>2) + (n&1), half = (n>>1)&1
    v_lshrrev_b32 v{T0}, 2, v{N}
    v_and_b32 v{T1}, 1, v{N}
    v_lshl_add_u32 v{T0}, v{T0}, 1, v{T1}
    v_bfe_u32 v{T1}, v{N}, 1, 1
    v_mul_u32_u24 v{IDX}, 0xaaaa, v{T1}
    v_add_u32 v{IDX}, 0x4444, v{IDX}
    v_mul_u32_u24 v{T2}, {PITCH}, v{T0}
    v_add_u32 v{T2}, {L_ROW}, v{T2}
    v_lshl_add_u32 v{R2}, v{G}, 4, v{T2}
    v_lshl_add_u32 v{R1}, v{G}, 5, v{T2}
    v_lshl_add_u32 v{R1}, v{T1}, 4, v{R1}
    v_mul_u32_u24 v{RA}, 1152, v{T0}
    v_lshl_add_u32 v{RA}, v{G}, 5, v{RA}
    v_lshl_add_u32 v{RA}, v{T1}, 4, v{RA}
    s_lshl_b32 {sT0}, {sW}, 8
    buffer_load_dwordx4 v[20:23], v{RA}, {SMEM0}, {sT0} offen
    buffer_load_dwordx4 v[24:27], v{RA}, {SMEM0}, {sT0} offen offset:128
    buffer_load_dwordx4 v[28:31], v{RA}, {SMEM0}, 0 offen offset:1024''')
    P(f'''; R3
    v_mul_u32_u24 v{R3}, {2 * PITCH}, v{G}
    v_lshl_add_u32 v{R3}, v{N}, 2, v{R3}
    s_lshl_b32 {sT0}, {sW}, 6
    s_add_u32 {sT0}, {sT0}, {L_ROW}
    v_add_u32 v{R3}, {sT0}, v{R3}
    v_lshrrev_b32 v{T2}, 3, v{L}
    v_mul_u32_u24 v{A3}, {PART_DEST}, v{T2}
    v_and_b32 v{T2}, 7, v{L}
    v_lshl_add_u32 v{A3}, v{T2}, 3, v{A3}
''')
    if CYC[0]:
        P(f'''; A3 = j*4096 + (((j + (h>>2)) & 7) ^ j)*256 + (h&3)*64 + (l&7)*8, j = l>>3
        v_lshrrev_b32 v{T3}, 3, v{L}
        s_lshr_b32 {sT0}, {sH}, 2
        v_add_u32 v{A3}, {sT0}, v{T3}
        v_and_b32 v{A3}, 7, v{A3}
        v_xor_b32 v{A3}, v{A3}, v{T3}
        v_lshlrev_b32 v{A3}, 8, v{A3}
        v_lshl_add_u32 v{A3}, v{T3}, 12, v{A3}
        v_lshl_add_u32 v{A3}, v{T2}, 3, v{A3}
        s_and_b32 {sT0}, {sH}, 3
        s_lshl_b32 {sT0}, {sT0}, 6
        v_add_u32 v{A3}, {sT0}, v{A3}''')
    P(f'''v_and_b32 v{T2}, 1, v{G}
    v_lshlrev_b32 v{T2}, 4, v{T2}
    v_lshl_add_u32 v{T2}, v{N}, 2, v{T2}
    v_mov_b32 v{T3}, 0x40000000
    v_cmp_lt_u32 vcc, 3, v{N}
    v_cndmask_b32 v{T2}, v{T2}, v{T3}, vcc
    v_lshrrev_b32 v{T3}, 1, v{G}
    v_lshl_add_u32 v{A5}, v{T3}, 10, v{T2}
    v_lshl_add_u32 v{A5X}, v{T3}, 8, v{T2}
    v_mov_b32 v{TT}, -1
    ds_write_b128 v{A2}, {vr(ONES, 4)} offset:{L_TAB}
    v_and_b32 v{T2}, 3, v{N}
    v_lshrrev_b32 v{T3}, 2, v{N}
    v_lshl_add_u32 v{T2}, v{T2}, 2, v{T3}
    v_and_b32 v{T3}, 1, v{T2}
    v_lshlrev_b32 v{T3}, 4, v{T3}
    v_mov_b32 v7, 0x3f80
    v_lshlrev_b32 v{T3}, v{T3}, v7
    v_lshrrev_b32 v{T2}, 1, v{T2}''')
    for q in range(4):
        P(f'v_cmp_eq_u32 vcc, {q}, v{T2}\nv_cndmask_b32 v{40 + q}, 0, v{T3}, vcc')
    P(f'ds_write_b128 v{A2}, v[40:43] offset:{L_SEL}')
    P.c('DMA source offsets')
    P(f'''s_and_b32 {sT0}, {sW}, 1
    s_lshr_b32 {sT1}, {sW}, 1
    v_lshrrev_b32 v{T0}, 3, v{L}
    v_and_b32 v{T1}, 1, v{T0}
    v_lshlrev_b32 v{T1}, 4, v{T1}
    v_and_b32 v{T2}, 6, v{T0}
    v_add_u32 v{T1}, v{T1}, v{T2}
    s_lshl_b32 {sT2}, {sT1}, 3
    s_add_u32 {sT2}, {sT2}, {sT0}
    v_add_u32 v{T1}, {sT2}, v{T1}
    v_mul_u32_u24 v{T1}, 1152, v{T1}
    v_and_b32 v{T2}, 2, v{T0}
    v_lshlrev_b32 v{T2}, 1, v{T2}
    v_and_b32 v{T3}, 7, v{L}
    v_xor_b32 v{T3}, v{T3}, v{T2}
    v_lshl_add_u32 v{DX}, v{T3}, 4, v{T1}
    v_and_b32 v{T1}, 1, v{G}
    v_lshlrev_b32 v{T1}, 4, v{T1}
    v_and_b32 v{T2}, 2, v{G}
    v_add_u32 v{T1}, v{T1}, v{T2}
    s_lshl_b32 {sT2}, {sT1}, 2
    s_add_u32 {sT2}, {sT2}, {sT0}
    v_add_u32 v{T1}, {sT2}, v{T1}
    v_mul_u32_u24 v{T1}, 1152, v{T1}
    v_lshlrev_b32 v{T3}, 1, v{G}
    v_xor_b32 v{T3}, v{T3}, v{N}
    v_lshl_add_u32 v{DD}, v{T3}, 4, v{T1}''')
    P.c('transposing-read addresses; r = n>>2, c = n&3')
    B0, B1, G0, G1, C = 17, 18, 19, 72, 73
    P(f'''v_bfe_u32 v{B0}, v{N}, 2, 1
    v_bfe_u32 v{B1}, v{N}, 3, 1
    v_and_b32 v{G0}, 1, v{G}
    v_lshrrev_b32 v{G1}, 1, v{G}
    v_and_b32 v{C}, 3, v{N}
    v_lshl_add_u32 v{T0}, v{G0}, 1, v{B0}
    v_lshl_add_u32 v{T3}, v{B1}, 2, v{T0}
    ; qkv: row = 16*g1 + 4*g0 + b0 + 8*b1 ; byte = (64w + 8c) ^ (32*rho3)
    v_lshl_add_u32 v{T1}, v{G1}, 4, v{B0}
    v_lshl_add_u32 v{T1}, v{G0}, 2, v{T1}
    v_lshl_add_u32 v{T1}, v{B1}, 3, v{T1}
    v_lshlrev_b32 v{T1}, 8, v{T1}
    s_lshl_b32 {sT0}, {sW}, 6
    v_lshl_add_u32 v{T2}, v{C}, 3, {sT0}
    v_lshlrev_b32 v7, 5, v{T3}
    v_xor_b32 v{T2}, v{T2}, v7
    v_add_u32 v{RQ0}, v{T1}, v{T2}
    v_xor_b32 v{RQ1}, 32, v{RQ0}
    ; x: (rho2 + 4*g1)*128 + ((2*(w&1) + b1) ^ (2*g0))*32 + 8c
    v_lshl_add_u32 v{T1}, v{G1}, 2, v{T0}
    v_lshlrev_b32 v{T1}, 7, v{T1}
    v_lshl_add_u32 v{T1}, v{C}, 3, v{T1}
    s_and_b32 {sT0}, {sW}, 1
    v_xor_b32 v7, {sT0}, v{G0}
    v_lshl_add_u32 v7, v7, 1, v{B1}
    v_lshl_add_u32 v{RX0}, v7, 5, v{T1}
    v_lshlrev_b32 v{T1}, 11, v{G1}
    v_lshl_add_u32 v{T1}, v{C}, 3, v{T1}
    v_lshl_add_u32 v{T2}, v{T0}, 8, v{T1}
    v_lshl_add_u32 v7, v{B1}, 2, {sW}
    v_xor_b32 v7, v7, v{T0}
    v_lshl_add_u32 v{RD}, v7, 5, v{T2}''')
    P.c('scalar bases')
    P(f'''s_lshl_b32 {sT0}, {sH}, 14
    s_lshl_b32 {sT1}, {sW}, 11
    s_add_u32 {sT0}, {sT0}, {WS_KVX}
    s_add_u32 {sKV}, {sT0}, {sT1}
    s_add_u32 {sKV2}, {sKV}, 8192
    s_lshl_b32 {sT1}, {sW}, 12
    s_add_u32 {sPF}, {sT0}, {sT1}
    s_add_u32 {sPF}, {sPF}, {SEG_STRIDE}
    s_lshl_b32 {sT0}, {sH}, 12
    s_lshl_b32 {sT1}, {sW}, 10
    s_add_u32 {sT0}, {sT0}, {sT1}
    s_add_u32 {sEXP}, {sT0}, {WS_KVM - SEG_STRIDE}
    s_lshl_b32 {sT0}, {sH}, 6
    s_mul_i32 {sT1}, {sW}, {8 * PART_DEST}
    s_add_u32 {sT1}, {sT0}, {sT1}
    s_add_u32 {sPW[0]}, {sT1}, {WS_PART}
    s_add_u32 {sPW[1]}, {sT1}, {WS_PART + PART_CHUNK}
    s_add_u32 {sPW[2]}, {sT1}, {WS_PART + 2 * PART_CHUNK}
    s_add_u32 {sPW[3]}, {sT1}, {WS_PART + 3 * PART_CHUNK}
    s_and_b32 {sT2}, {sW}, 1
    s_mul_i32 {sT1}, {sT2}, {8 * PART_DEST}
    s_add_u32 {sT1}, {sT0}, {sT1}
    s_add_u32 {sPW[4]}, {sT1}, {WS_PART + 4 * PART_CHUNK}
    s_mul_i32 {sT0}, {sW}, {PART_CHUNK}
    s_mul_i32 {sT1}, {sH}, {PART_DEST}
    s_add_u32 {sT0}, {sT0}, {sT1}
    s_add_u32 {sPR}, {sT0}, {WS_PART}
    s_and_b32 {sT2}, {sH}, 15
    s_mul_i32 {sT1}, {sT2}, {PART_DEST}
    s_add_u32 {sPRX}, {sT1}, {WS_PART + 4 * PART_CHUNK}
''')
    if CYC[0]:
        P(f's_lshr_b32 {sT0}, {sW}, 1\ns_lshl_b32 {sT0}, {sT0}, 15\ns_and_b32 {sT1}, {sW}, 1\ns_lshl_b32 {sT1}, {sT1}, 11\ns_add_u32 {sT0}, {sT0}, {sT1}')
        for c in range(4): P(f's_add_u32 {sPW[c]}, {sT0}, {WS_PART + c * 65536}')
        P(f's_add_u32 {sPW[4]}, {sT1}, {WS_PART + 8 * 32768}')
        part_inbox(P, sH, sW, sPR, sPRX, sT0, sT1)
    P(f'''; mem ring: publishes start on slot 1
    s_lshl_b32 {sT0}, {sW}, 11
    s_add_u32 {sMR}, {sT0}, {WS_MEM}
    s_mov_b32 {sM8}, {WS_MEM + 8192}
    s_lshl_b32 {sT1}, {sH}, 5
    s_add_u32 {sT0}, {sT0}, {sT1}
    s_add_u32 {sMW}, {sT0}, {WS_MEM + MEM_SLOT}
    s_lshr_b32 {sT0}, {sT2}, 3
    s_lshl_b32 {sT0}, {sT0}, 9
    s_and_b32 {sT1}, {sT2}, 7
    s_lshl_b32 {sT1}, {sT1}, 5
    s_add_u32 {sT0}, {sT0}, {sT1}
    s_add_u32 {sMWX}, {sT0}, {WS_MEM + MEM_SLOT + 8192}
    s_mov_b32 {sSTEP}, 0
    s_mov_b32 {sSPIN}, 0
    s_mov_b32 {sTAG}, 0
    s_mov_b32 {sCB}, {f32bits(CB)}''')
    TMP = [36, 52]
    pend = None
    for j, b in enumerate(blocks):
        P(f's_waitcnt vmcnt({cnt[0] - marks[j]}) lgkmcnt(0)')
        P('s_barrier')
        if getattr(P, 'plog', False):
            P(f's_memrealtime s[86:87]\ns_waitcnt lgkmcnt(0)\nv_writelane_b32 v34, s86, {j + 1}')
        if pend: pend(); pend = None
        while len(marks) < min(36, j + 1 + (WIN if j < P.wsw[0] or j >= P.wsw[2] else P.wsw[1])):
            jn = len(marks); dma(jn); note(4); marks[jn] = cnt[0]
        if P.cpf and j in (8, 14, 20):
            P.c('keep the code ahead in L2 while the weights stream through it')
            P(f's_getpc_b64 s[80:81]\ns_lshl_b32 {sT0}, {sW}, 10\nv_add_u32 v7, {sT0}, v{A2}\nglobal_load_dword v19, v7, s[80:81] offset:1024', nowait=True); note(1)
        if not P.standalone and j == P.clj: claim(P); note(1); clm = cnt[0]
        if j == P.verj and not P.standalone: verify(P, 'C_ver', cnt[0] - clm, 16320)
        if j == P.armj and P.standalone:
            P.c('arm this wave\'s partial-sum inbox, the ring slots (heads 0 and 1 do that); all written through')
            P(f"""v_mov_b32 v4, -1
            v_mov_b32 v5, -1
            v_mov_b64 v[6:7], v[4:5]
            s_lshl_b32 {sT2}, {sH}, 14
            s_xor_b32 {sT0}, {sMR}, {sT2}
            s_xor_b32 {sT1}, {sM8}, {sT2}
            s_cmp_lt_u32 {sH}, 2
            s_cselect_b32 {sT0}, {sT0}, {WS_SIZE}
            s_cselect_b32 {sT1}, {sT1}, {WS_SIZE}
            s_lshr_b32 {sT2}, {sH}, 4
            s_or_b32 {sT2}, {sT2}, {sW}
            s_cmp_eq_u32 {sT2}, 0
            s_cselect_b32 {sT2}, {sPRX}, {WS_SIZE}""")
            for sb_, o in ((sPR, 0), (sPR, 1024), (sT2, 0), (sT2, 1024), (sT0, 0), (sT0, 1024), (sT1, 0)):
                P(f'buffer_store_dwordx4 v[4:7], v{A2}, {SWS}, {sb_} offen offset:{o} sc1')
        if j == P.armj:
            P.c('mem0 goes straight into the staging space')
            for r in range(20, 32): P(f'v_min_u32 v{r}, -2, v{r}')
            P(f's_lshl_b32 {sT0}, {sW}, 11\nv_add_u32 v3, {sT0}, v{A2}')
            P(f'ds_write_b128 v3, v[20:23] offset:{L_MEM}\nds_write_b128 v3, v[24:27] offset:{L_MEM + 1024}\nds_write_b128 v{A2}, v[28:31] offset:{L_MEM + 8192}')
        if j == P.armj + 9 and P.standalone:
            P.c('every wave has waited for those stores (before this iteration\'s barrier)')
            P(f's_cmp_eq_u32 {sW}, 0\ns_cselect_b32 {sT0}, {DB_ARMED}, 0x1000\nv_mov_b32 v32, 1\nv_mov_b32 v7, 0')
            P(f's_mov_b64 exec, 1\nbuffer_atomic_add v32, v7, {SDBG}, {sT0} offen\ns_mov_b64 exec, -1'); note(1)
        if j == P.tchj:
            P.c('bring the ring slots, and the loop code, into L2 (speed only)')
            P.c('(1 KB per wave; slots 4 apart sit on the same shader engine, so each engine covers everything)')
            P(f's_and_b32 {sT2}, {sH}, 28\ns_add_u32 {sT2}, {sT2}, {sW}\ns_cmp_ge_u32 {sT2}, 9\ns_cselect_b32 {sT0}, 7, 0\ns_add_u32 {sT0}, {sT0}, {sT2}\ns_lshl_b32 {sT0}, {sT0}, 10')
            P(f's_add_u32 {sT0}, {sT0}, {WS_MEM}\ns_cmp_lt_u32 {sT2}, 18\ns_cselect_b32 {sT0}, {sT0}, {WS_SIZE}\nbuffer_load_dword v35, v{A2}, {SWS}, {sT0} offen sc1', nowait=True)
            for s in P.tch:
                P(f'v_lshlrev_b32 v7, 1, v{A2}\nbuffer_load_dword v35, v7, {SWS}, {dict(p=sPR, x=sPRX, k=sKV, v=sKV2)[s]} offen sc1', nowait=True); note(1)
            if P.cpf:
                P(f's_getpc_b64 s[80:81]')
                P.label('C_pc', keep=True)
                P(f's_lshl_b32 {sT1}, {sT2}, 10\ns_min_u32 {sT1}, {sT1}, (L_w4 - L_w0)\ns_add_u32 {sT1}, {sT1}, (L_w0 - C_pc)')
                P(f'v_add_u32 v7, {sT1}, v{A2}\nglobal_load_dword v35, v7, s[80:81]', nowait=True); note(1)
        if j == P.statj and not P.standalone:
            P(f'v_lshrrev_b32 v20, 2, v{A2}')
            P(f'buffer_load_dword v21, v20, {SDBG}, 0 offen sc1'); note(1)
        sb = L_W + (j % 9) * 16384
        if b[0] in 'qkv':
            P(f'v_add_u32 v{RA}, {sb}, v{RQ0}\nv_add_u32 v{RB}, {sb}, v{RQ1}')
        else:
            P(f'v_add_u32 v{RA}, {sb}, v{RX0 if b[0] == "x" else RD}')
        if b[0] == 'x': P('s_waitcnt lgkmcnt(0)')
        acts = []
        for x, o in enumerate(block_ops(b)):
            hm = HOME[o]
            k, r = hm if hm[0] in 'va' else ('v', (TMP[j % 2] if b[0] != 'x' else 36) + 8 * x)
            for q in (0, 2, 4, 6):
                if b[0] in 'qkv': ad, off = (RA, RB)[x], (32 * (q // 4) + 2 * ((q % 4) // 2)) * 256
                elif b[0] == 'x': ad, off = RA, ((q % 4) // 2 + 2 * (q // 4) + 4 * x) * 1024
                else: ad, off = RA, ((q % 4) // 2 + 4 * (q // 4) + 8 * x) * 1024
                P(f'ds_read_b64_tr_b16 {vr(r + q, 2, k)}, v{ad} offset:{off}')
            if hm[0] == 'lds': acts.append((x, r))
        if acts:
            def mk(acts=acts, sb=sb, b=b):
                if b[0] == 'x': P(f's_and_b32 {sT0}, {sW}, 1\ns_lshl_b32 {sT0}, {sT0}, 13')
                else: P(f's_lshl_b32 {sT0}, {sW}, 12')
                P(f's_add_u32 {sT0}, {sT0}, {sb}\nv_add_u32 v7, {sT0}, v{A2}')
                for x, r in acts:
                    for hf in range(2): P(f'ds_write_b128 v7, {vr(r + 4 * hf, 4)} offset:{x * 2048 + hf * 1024}')
            pend = mk
    P('s_waitcnt vmcnt(0) lgkmcnt(0)\ns_barrier')
    pend()
    P('s_waitcnt lgkmcnt(0)')
    if getattr(P, 'plog', False):
        P(f's_lshl_b32 {sT0}, {sH}, 10\ns_add_u32 {sT0}, {sT0}, {WS_STAMP + 0x50000}\nbuffer_store_dword v34, v{A2}, {SWS}, {sT0} offen\ns_waitcnt vmcnt(0)')

def ready(P):
    P.c('go once every head\'s first k_x / v_x segments are complete (their writers also armed the hand-off buffers);')
    P.c('plain stores are enough only if all 32 slots were claimed on die 0, otherwise write through')
    P('s_branch C_rd1')
    P.label('C_rd0')
    P(f's_sleep 2\nbuffer_load_dword v21, v20, {SDBG}, 0 offen sc1\ns_waitcnt vmcnt(0)')
    P.label('C_rd1')
    P(f"""v_and_b32 v22, 0xff, v21
    v_cmp_gt_u32 vcc, 7, v22
    v_readlane_b32 {sT2}, v21, 0
    s_mov_b32 {sMODE}, 1
    s_add_u32 {sSPIN}, {sSPIN}, 1
    s_cmp_ge_u32 {sSPIN}, {SPIN_MAX}
    s_cbranch_scc1 C_rd2
    s_cmp_lg_u32 vcc_hi, 0
    s_cbranch_scc1 C_rd0
    s_mov_b32 {sMODE}, 0
    s_cmp_eq_u32 {sT2}, -1
    s_cbranch_scc1 C_rd2
    s_mov_b32 {sMODE}, 1
    v_readlane_b32 {sT0}, v21, {DB_SUR // 4}""")
    for x in range(8): P(f'v_readlane_b32 {sT1}, v21, {x}\ns_bcnt1_i32_b32 {sT1}, {sT1}\ns_add_u32 {sT0}, {sT0}, {sT1}')
    P(f's_cmp_lt_u32 {sT0}, 256\ns_cbranch_scc1 C_rd0')
    P.label('C_rd2')

def is_valu(s): return s.startswith('v_')

PLACE = (('SwKwdwfz', 's', '', 'awy', 'bwe', 'cwt'), ('SwKwdwsfzy', '', 'aw', 'bwt', 'cwe', ''), ('SwKwdwcwfz', 's', '', 'awe', 'bwyt', ''), ('SwKwcwdwsfz', 'ye', 't', 'ab', '', ''))
VAT = dict(wq=0, bq=0, q0=0, q1=1, ka0=1, kc0=1, kw0=2, ka1=2, kc1=2, kw1=3, fl=3, r0=4, z1=4, z2=5, r1=6, wk=6, bk=7, k0=8, k1=8, r2=9, xa0=9, xa1=9, xe0=10, r3=11,
           xe1=11, xc=12, pw=13, ze0=13, w00=14, ze1=14, w01=15, on=15, ma0=16, ma1=16, wp=17, bp=17, pr=17, w10=18, mm0=18, w11=19, mm1=19, me0=20, me1=21,
           va0=22, va1=22, va2=23, va3=23, mc0=24, vc0=24, vc1=24, mc1=25, zq0=25, tab=26, zq1=26)
TRACE = {}
DS_AT = dict(k0b=(0, 1), k2a=(3, 4), r3=5, k2b=(8, 9), k4a=(10, 11), r5=14, r7=19, k4b=(15, 17), r6=16, k5a=(18, 20), r8=21, k5b=(22, 23))
def step_loop(P, w, tag, opt=(), T=None):
    T = T or {}
    stf = P.stf
    heavy = w >= 2
    DIAG = 's_add_u32 s84, s84, 1' if 'diag' in opt else (f's_bitset1_b64 s[96:97], {sSTEP}' if 'cnt' in opt else '')
    Lb = lambda s: f'C{tag}{w}_{s}'
    DPP = lambda p: f'{p} row_mask:0xf bank_mask:0xf'
    QP = lambda p: DPP(f'quad_perm:{p}')
    AGE = T.get('age', 96)
    def mark(name):
        if 'marks' in opt and name in T.get('marks', ()):
            k = T['marks'].index(name)
            P.raw(f'  s_memtime s[{24 + 2 * k}:{25 + 2 * k}]   ; {name}')
    def run(mf, side, pre):
        for i, m in enumerate(mf):
            P(m); t0 = P.tm
            mark(f'{pre}{i}')
            ss = side.get(i, [])
            nv = [s for s in ss if callable(s) or not is_valu(s)]; va = [s for s in ss if not callable(s) and is_valu(s)]
            for s in nv: s() if callable(s) else P(s)
            if i + 1 < len(mf):
                n0 = len(P.lines)
                room = P.t + 4 <= t0 + (P.tmh if va else 16)
                snap = P.snapshot(); P.prewait(mf[i + 1]); need = len(P.lines) > n0
                del P.lines[n0:]; P.restore(snap)
                if need or room: P.prewait(mf[i + 1], mf[i + 2:i + 5], AGE)
            for s in va: P(s)
    def addside(side, i, *ins): side[i] = side.get(i, []) + list(ins)
    def dly(n):
        while n > 0:
            P(f's_nop {min(n, 16) - 1}'); n -= 16
    bufs = {}
    for m, t in (('k', 0), ('k', 1), ('k', 4), ('q', 6), ('k', 5)): bufs[(m, t, 0)] = ACV; bufs[(m, t, 1)] = QOP
    oth = ((1, 2, 3), (0, 2, 3), (3, 0, 1), (2, 0, 1))[w]
    wseq = [('d', d, w) for d in range(3)] + [('d', 0, c) for c in oth] + [('d', d, c) for d in (1, 2) for c in sorted(oth)] + [('d', 3, c) for c in range(4)]
    if heavy: wseq += [('x', c) for c in range(4)]
    wstream = [o for o in wseq if HOME[o][0] == 'lds']
    for j, o in enumerate(wstream): bufs[o] = (KX, QOP, VX, ACV)[j % 4] if j < 8 else (KX, QOP)[j - 8]
    if heavy: bufs.update({('d', 3, 0): KX, ('d', 3, 1): QOP, ('x', 0): VX, ('x', 1): ACV})
    def bsrc(o, buf=None):
        hm = HOME[o]
        return vr(hm[1], 8, hm[0]) if hm[0] in 'va' else vr(buf or bufs[o], 8)
    F = lambda o: lds_fetch(o, bufs[o], w)
    own_t = (0, 2, 3, 1)[w]
    eo = ((0, 2, 1, 3), (2, 0, 1, 3), (3, 0, 1, 2), (1, 2, 0, 3))[w]
    s1, s2 = [t for t in eo if t < 2]
    AQ = [QA, QB, QC, QD, 4 * eo[0], 4 * eo[1], QE, 4 * eo[2], 4 * eo[3]]
    rdA = lambda t: f'ds_read_b128 {vr(AQ[t], 4)}, v{A2} offset:{L_MEM + 1024 * t}'
    ACC = {'q': ACQ, 'k': ACK, 'v': ACV}
    def sm(s, buf=None):
        m, t, x = s[0], int(s[1]), 'ab'.index(s[2])
        return f'{SM} {vr(ACC[m] + 4 * x, 4)}, {vr(AQ[t], 4)}, {bsrc((m, t, x), buf)}, v{IDX}'
    add = lambda d, a: f'v_add_f32 v{d}, v{d}, v{a}'
    cvt = lambda d, a, b: f'v_cvt_pk_bf16_f32 v{d}, v{a}, v{b}'
    z2 = lambda d: f'v_mov_b64 {vr(d, 2)}, 0'
    dw = lambda r, o: f'ds_write_b32 v{R3}, v{r} offset:{o}'
    flip = f'v_xor_b32 v{A1}, 0x8000, v{A1}'
    quad = lambda r: set(('v', r + j) for j in range(4))
    WW = P.wait_writes
    retry = []
    CK, CK2 = VM, VM + 1
    def maxtree(regs):
        out = [f'v_max3_u32 v{CK}, v{regs[0]}, v{regs[1]}, v{regs[2]}']
        for j in range(3, len(regs) - 1, 2): out.append(f'v_max3_u32 v{CK}, v{CK}, v{regs[j]}, v{regs[j + 1]}')
        return out + [f'v_max_u32 v{CK}, v{CK}, v{regs[-1]}']
    tchunks = (own_t,)
    nlate = {2: 2, 3: 3}.get(w, 0)
    nunit = 2 if w == 3 else 1
    d0, dn = ((6, 1), (7, 1), (8, 1), (4, 2))[w]
    DMA, POLL = ('d', 0), ('d', 1)
    STCH = SWS if 'standalone' in opt else 's[16:19]'
    kvchk = w == 0 and 'standalone' not in opt
    SCR = L_SCR + (256 if w == 0 else 0)
    fill = F(('k', s1, 0)) + F(('k', s1, 1))
    konly = T.get('konly', 0)
    tsh = f'v_lshlrev_b32 v{VM + 1}, {1 if konly else 2}, v{A2}'

    kx = [f'buffer_load_dwordx4 {vr(KX + 4 * c, 4)}, v{A2}, {SWS}, {sKV} offen offset:{1024 * c} sc1' for c in range(2)]
    vx = [f'buffer_load_dwordx4 {vr(VX + 4 * c, 4)}, v{A2}, {SWS}, {sKV2} offen offset:{1024 * c} sc1' for c in range(2)]
    pre = (kx if T.get('npre', 1) == 2 else []) + vx
    ZA = A3
    hld = f'buffer_load_dwordx4 {vr(AQ[own_t], 4)}, v{A2}, {SWS}, {sM8} offen offset:{1024 * own_t} sc1'
    dmas = [f'buffer_load_dwordx4 v{A2}, {SWS}, {sDM} offen offset:{1024 * q} sc1 lds' for q in range(dn)]
    SELR = QA if nunit == 1 else VX
    kmrd = f'ds_read_b64 {vr(QE, 2)}, v{R1} offset:{256 + 128 * (w // 2) + 8 * (w % 2)}'
    def book(parts):
        for ch in parts: book1(ch)
    def book1(parts):
        if parts in 'abcd': P(fill['abcd'.index(parts)], nowait=True)
        if parts == 'S': P(f'ds_read_b128 {vr(SELR, 4)}, v{A2} offset:{L_SEL}')
        if parts == 'K': P(kmrd)
        if parts == 'w': P('s_waitcnt lgkmcnt(0)')
        if parts == 'y':
            for r in range(ACQ, ACK, 2): P(z2(r))
            P(f'v_mov_b32 v{ZA}, {L_ZERO}')
        if parts == 'z':
            for r in range(ACK, ACK + 8, 2): P(z2(r))
        if parts == 't': P(tsh)
        if parts == 'f': P(flip)
        if 's' in parts:
            inc = 0 if 'samekv' in opt else SEG_STRIDE
            P(f's_add_u32 {sSTEP}, {sSTEP}, 1\ns_xor_b32 {sMR}, {sMR}, {MEM_SLOT}\ns_xor_b32 {sM8}, {sM8}, {MEM_SLOT}')
            P(f's_add_u32 {sKV}, {sKV}, {inc}\ns_add_u32 {sKV2}, {sKV2}, {inc}\ns_add_u32 {sPF}, {sPF}, {inc}\ns_add_u32 {sEXP}, {sEXP}, {SEG_STRIDE}')
            P(f's_mov_b32 m0, {L_MEM + 1024 * d0}\ns_add_u32 {sDM}, {sM8}, {1024 * d0}')
            if 'diag' in opt:
                dg = P.newlabel('dg')
                P(f's_cmp_eq_u32 {sSTEP}, 4\ns_cbranch_scc0 {dg}')
                P.raw(f'  s_memtime s[92:93]\n  s_memrealtime s[88:89]\n  s_mov_b32 s84, 0\n  s_mov_b32 s86, 0\n  s_mov_b32 {sSPIN}, 0')
                P.label(dg, keep=True)
        if 'e' in parts and STCH != SWS:
            P.c('nothing is left to prefetch at the end: the last prefetch pulls the final step\'s code into L2 instead (speed only)')
            P(f's_cmp_eq_u32 {sSTEP}, {NSEG - 2}\ns_cselect_b64 s[16:17], s[20:21], s[16:17]\ns_cselect_b32 s18, ({Lb("done")} - {Lb("last")}), s18\ns_cselect_b32 {sPF}, 0, {sPF}')
            P(f's_cmp_eq_u32 {sSTEP}, {NSEG - 1}\ns_cselect_b32 {sKV2}, {WS_SIZE}, {sKV2}\ns_cselect_b32 {sKV}, {WS_SIZE}, {sKV}')
    place = T.get('place', PLACE)[w]
    assert sorted(''.join(place).replace('w', '')) == sorted('yztfseSKabcd')
    P.c(f'---- chain wave {w}')
    for r in range(0, 16, 2): P(z2(ACQ + r))
    P(f's_mov_b32 s78, 0x3f803f80\ns_mov_b32 s79, s78\ns_mov_b32 {sM8}, {WS_MEM}\ns_mov_b32 m0, {SCR}\ns_lshl_b32 {sFLG}, {sH}, 2\ns_add_u32 {sFLG}, {sFLG}, {DB_P1}\ns_movk_i32 {sT2}, 0x1000\n{tsh}\nv_mov_b32 v{VM}, 0')
    if konly: P(f's_add_u32 {sPF}, {sKV}, {SEG_STRIDE}')
    have = tchunks
    if 'cnt' in opt: P('s_mov_b64 s[96:97], 0\ns_mov_b64 s[100:101], 0')
    if STCH != SWS: P(f's_mov_b64 s[16:17], s[8:9]\ns_mov_b32 s18, {WS_SIZE}\ns_mov_b32 s19, 0x20000\ns_getpc_b64 s[20:21]')
    if STCH != SWS:
        P.label(Lb('pc'), keep=True)
        P(f's_add_u32 s20, s20, ({Lb("last")} - {Lb("pc")})\ns_addc_u32 s21, s21, 0')
    P(f'v_mov_b32 v{ZA}, {L_ZERO}')
    for x in pre + fill + [rdA(t) for t in range(4)]: P(x)
    P('s_waitcnt lgkmcnt(0)')
    P(f's_cmp_eq_u32 {sSTEP}, 1\ns_branch {Lb("top2")}')
    P.raw('.p2align 6')
    P.label(Lb('h2'))
    P.t = 0; P.tm = -999
    own = 2 * nunit
    n2 = T.get('n2', (3, 3, 3, 2))[w]
    def extras(log=False):
        if 'steplog' in opt and log:
            P(f's_memrealtime s[80:81]\ns_memtime s[82:83]\ns_lshl_b32 {sT0}, {sH}, 6\ns_add_u32 {sT0}, {sT0}, {sSTEP}\ns_lshl_b32 {sT0}, {sT0}, 3\ns_add_u32 {sT0}, {sT0}, {WS_STAMP + 0x40000}\ns_waitcnt lgkmcnt(0)')
            P(f'v_mov_b32 v{KX}, s80\nv_mov_b32 v{KX + 1}, {"s84" if "tmeas" in opt else "s82"}\ns_mov_b64 exec, 1\nbuffer_store_dwordx2 {vr(KX, 2)}, v{A2}, {SWS}, {sT0} offen\ns_mov_b64 exec, -1', nowait=True)
        if kvchk:
            P(f's_cmp_eq_u32 {sSTEP}, {7 * KV_EARLY - 2}\ns_cselect_b32 {sT2}, {sFLG}, 0x1000')
            P.c('the final k_x / v_x count of this head arrived beside the last prefetch; poll only if it is short')
            P(f'ds_read_b32 v{VM}, v{A2} offset:{L_SCR + 256}\ns_cmp_eq_u32 {sSTEP}, {7 * KV_EARLY - 1}\ns_cselect_b32 {sT0}, 0x700, 0')
            P(f'v_readfirstlane_b32 {sT3}, v{VM}\ns_cmp_lt_u32 {sT3}, {sT0}\ns_cbranch_scc1 {Lb("kv3")}')
            P.label(Lb('kvb'), keep=True)
        return 0
    if stf:
        others = [q for q in (QA, QB, QC, QD) if q != AQ[own_t]]
        HD = [(AQ[own_t], sM8, 1024 * own_t, own_t)] + [(others[q], sDM, 1024 * q, d0 + q) for q in range(dn)]
        book(''.join(place[2:]).replace('w', ''))
        if w == 0: extras()
        if T.get('sexit'): T['sexit'](P, Lb, f'buffer_store_dwordx4 {vr(QE, 4)}, v{A2}, {SWS}, {sEXP} offen sc1', retry)
        for x in pre: P(x, nowait=True)
        P('s_waitcnt vmcnt(0)\ns_mov_b64 vcc, -1')
        P.label(Lb('h2r'))
        P('s_mov_b64 exec, vcc')
        for r, sb_, o, t in HD: P(f'buffer_load_dwordx4 {vr(r, 4)}, v{A2}, {SWS}, {sb_} offen offset:{o} sc1')
        P(f's_mov_b64 exec, -1\ns_add_u32 {sSPIN}, {sSPIN}, 1\ns_cmp_lt_u32 {sSPIN}, {SPIN_MAX}\ns_cselect_b32 {sT0}, -2, -1')
        for x in maxtree([r + j for r, _, _, _ in HD for j in range(4)]): P(x)
        P(f'v_cmp_lt_u32 vcc, {sT0}, v{CK}\ns_cbranch_vccnz {Lb("h2r")}')
        for r, sb_, o, t in HD: P(f'ds_write_b128 v{A2}, {vr(r, 4)} offset:{L_MEM + 1024 * t}')
    elif 'nocomm' not in opt:
        r_ = AQ[own_t]
        wr = f'ds_write_b128 v{A2}, {vr(r_, 4)} offset:{L_MEM + 1024 * own_t}'
        ck = maxtree([r_ + j for j in range(4)]) + [wr, f'v_cmp_eq_u32 vcc, -1, v{CK}']
        book(place[2])
        if w == 0: own += extras()
        for j in range(n2 - (w == 3)):
            P(hld, nowait=True)
            if j == 0 and w < 3: mark('h2i')
            book(place[3 + j])
        tail = len(pre)
        for x in pre: P(x, nowait=True)
        P(f's_waitcnt vmcnt({n2 - 1 + tail + (own if w == 3 else 0)})')
        for x in ck: P(x, nowait=True)
        P(f's_cbranch_vccnz {Lb("h2r")}')
        def r2():
            P.label(Lb('h2r'))
            for j in range(n2 + 2):
                if j == n2 - 1: P.label(Lb('h2s'))
                P('s_mov_b64 exec, vcc'); P(hld, nowait=True)
                P(f's_mov_b64 exec, -1\ns_add_u32 {sSPIN}, {sSPIN}, 1\ns_waitcnt vmcnt({n2 - 1 + (tail if j < n2 - 1 else 0)})')
                for x in ck: P(x, nowait=True)
                P(f's_cbranch_vccz {Lb("h2w")}')
            P(f's_cmp_lt_u32 {sSPIN}, {SPIN_MAX}\ns_cbranch_scc1 {Lb("h2s")}\ns_branch {Lb("h2w")}')
        retry.append(r2)
    else:
        for x in fill + pre + [rdA(own_t)]: P(x, nowait=True)
        dly(60)
    P.label(Lb('h2w'), lg=[set()], vm=[set().union({POLL}, *[Ins(x).ws for x in pre])])
    mark('h2w')
    if w == 3 and 'nocomm' not in opt and not stf:
        for x in dmas: P(x); P.vm[-1] = {POLL}
    P(f's_cmp_eq_u32 {sSTEP}, {NSEG - 1 if T.get("marks", [0])[0] != "top" else 99}\ns_waitcnt lgkmcnt(0)\ns_barrier')
    P.t = 0
    mark('top')
    P(rdA(eo[1]))
    if 'nocomm' in opt: P('s_mov_b32 m0, 0x28000')
    if w < 3 and 'nodma' not in opt and not stf: P(dmas[0]); P.vm[-1] = {DMA}
    snap_last = P.snapshot()
    P.label(Lb('top2'), keep=True)
    P.trace = TRACE[w] = []
    four = lambda t: f'q{t}a q{t}b k{t}a k{t}b ' if t > 1 else f'q{t}a k{t}a q{t}b k{t}b '
    c_, d_ = eo[2], eo[3]
    seq = four(eo[0]) + four(eo[1]) + f'q{c_}a q{c_}b q{d_}a k{c_}a q{d_}b k{c_}b k{d_}a k{d_}b '
    seq = (seq + T.get('late', 'q4a k4a q4b q5a k4b q5b q7a q8a q6a q7b q6b q8b k6a k7a k5a k8a k5b k6b k7b k8b')).split()
    mf = [sm(s) for s in seq]
    side = {}
    at = {s: i for i, s in enumerate(seq)}
    b1, b2 = T.get('bl', (10, 16))
    def dma_wait(tok):
        def f():
            k = max([j for j, x in enumerate(P.vm) if tok in x], default=-1)
            if k >= 0: P(f's_waitcnt vmcnt({len(P.vm) - 1 - k})')
        return f
    exp_ = f'buffer_store_dwordx4 {vr(QE, 4)}, v{A2}, {SWS}, {sEXP} offen sc1'
    touch = f'buffer_load_dword v{VM + 1}, {STCH}, {sPF} offen lds'
    if 'nobr' not in opt: addside(side, 0, f's_cbranch_scc1 {Lb("last")}')
    for i, s in zip(T.get('vm_at', lambda w: (1, 2, 6, 7))(w), (kx[0], kx[1], exp_, touch)):
        if 'noexp' in opt and s is exp_ or 'notouch' in opt and s is touch or s in pre or 'nok' in opt and s in kx: continue
        addside(side, i, s)
    addside(side, T.get('m0at', 1), f's_mov_b32 m0, {SCR}')
    if kvchk: addside(side, 22, f'buffer_load_dword off, {SDBG}, {sT2} sc1 lds')
    if 'tmeas' in opt:
        def tm_():
            P('s_waitcnt lgkmcnt(0)\ns_memtime s[84:85]\ns_waitcnt vmcnt(0) lgkmcnt(0)\ns_memtime s[82:83]\ns_waitcnt lgkmcnt(0)\ns_sub_u32 s84, s82, s84')
        addside(side, 16, tm_)
    addside(side, b1 - 1, dma_wait(POLL)); addside(side, b1, 's_barrier' if 'nob' not in opt else 's_nop 0')
    addside(side, b2 - 1, dma_wait(DMA)); addside(side, b2, 's_barrier' if 'nob' not in opt else 's_nop 0')
    Fp = lambda s: F((s[0], int(s[1]), 'ab'.index(s[2])))
    zv = [f'ds_read_b128 {vr(ACV + 4 * q, 4)}, v{ZA}' for q in range(2)]
    pl = dict(dict(rc=3, rd=4, sa=(5, 6), sb=(7, 8), r4=10, k4a=(11, 12), k4b=(14, 15), r5=13, r7=16, r8=17, r6=18, q6a=(17, 19), q6b=(20, 21), k5a=(24, 25), k5b=(26, 27), zv=(30, 31)), **T.get('plan', {}))
    ops = dict(rc=rdA(c_), rd=rdA(d_), sa=Fp(f'k{s2}a'), sb=Fp(f'k{s2}b'), zv=zv, **{f'r{t}': rdA(t) for t in range(4, 9)}, **{x: Fp(x) for x in ('k4a', 'k4b', 'q6a', 'q6b', 'k5a', 'k5b')})
    plan = [(i, x) for k_, v_ in pl.items() for i, x in (zip(v_, ops[k_]) if isinstance(v_, tuple) else [(v_, ops[k_])])]
    for i, x in plan:
        if 'nostream' in opt and x not in [rdA(t) for t in range(9)] or 'noAr' in opt and x in [rdA(t) for t in range(9)] or 'nozv' in opt and x in zv: continue
        addside(side, i, x)
    qv = [add(ACQ, ACQ + 2), add(ACQ + 1, ACQ + 3), add(ACQ + 4, ACQ + 6), cvt(ACQ + 2, ACQ, ACQ + 4), dw(ACQ + 2, 0),
          add(ACQ + 5, ACQ + 7), cvt(ACQ + 3, ACQ + 1, ACQ + 5), dw(ACQ + 3, PITCH)]
    for i, x in zip(T.get('qat', (26, 27, 29, 30, 31, 31, 31, 32, 32)), qv + [f'v_cmp_u_f32 vcc, v{ACQ}, v{ACQ + 1}']): addside(side, i, x)
    addside(side, T.get('on2', 28), f'v_mov_b64 {vr(ONES + 2, 2)}, s[78:79]')
    ka = [add(ACK, ACK + 2), add(ACK + 1, ACK + 3)]
    for i, x in zip(T.get('kat', (33, 34)), ka): addside(side, i, x)
    def nanbr():
        P(f's_cbranch_vccnz {Lb("rec")}')
        P.label(Lb('recok'), keep=True)
    addside(side, 35, nanbr)
    run(mf, side, 'q')
    def recover():
        P.label(Lb('rec'))
        P('s_nop 7\ns_waitcnt vmcnt(0) lgkmcnt(0)')
        for x in maxtree(list(range(QA, QE + 4))): P(x)
        P(f'v_cmp_eq_u32 vcc, -1, v{CK}\ns_cbranch_vccz {Lb("recok")}')
        if 'cnt' in opt: P(f's_bitset1_b64 s[100:101], {sSTEP}')
        P('s_barrier')
        if nlate:
            HD = [QA + 4 * q for q in range(nlate)]
            P.label(Lb('recp'))
            for q, r in enumerate(HD): P(f'buffer_load_dwordx4 {vr(r, 4)}, v{A2}, {SWS}, {sMR} offen offset:{1024 * q} sc1')
            P(f's_add_u32 {sSPIN}, {sSPIN}, 1\ns_cmp_lt_u32 {sSPIN}, {SPIN_MAX}\ns_cselect_b32 {sT0}, -2, -1')
            if 'diag' in opt: P('s_add_u32 s86, s86, 1')
            for x in maxtree([r + j for r in HD for j in range(4)]): P(x)
            P(f'v_cmp_lt_u32 vcc, {sT0}, v{CK}\ns_cbranch_vccnz {Lb("recp")}')
            for q, r in enumerate(HD): P(f'ds_write_b128 v{A2}, {vr(r, 4)} offset:{L_MEM + 1024 * (2 * w + q)}')
        for r in range(0, 16, 2): P(z2(ACQ + r))
        P('s_waitcnt lgkmcnt(0)\ns_barrier')
        for t in range(9):
            P(rdA(t))
            for s in (f'q{t}a', f'q{t}b', f'k{t}a', f'k{t}b'):
                o = (s[0], t, 'ab'.index(s[2]))
                if HOME[o][0] == 'lds':
                    for x in lds_fetch(o, QOP, w): P(x)
                P(sm(s, QOP))
        for x in qv + ka: P(x)
        P(f's_waitcnt lgkmcnt(0)\ns_nop 1\ns_branch {Lb("recok")}')
    retry.append(recover)
    W0, W1 = wstream[:2]
    KOP = ACQ; PX = ACK + 4; PM = ACK; OD = QA; LD = QC
    S0, S1 = KOP + 4, KOP + 5
    sx = [f'{MF} {vr(KX, 4)}, {vr(KX, 4)}, {vr(QOP, 4)}, 0', f'{MF} {vr(KX, 4)}, {vr(KX + 4, 4)}, {vr(QOP + 4, 4)}, {vr(KX, 4)}']
    smm = [f'{MF} {vr(KOP, 4)}, {vr(KOP, 4)}, {vr(QOP, 4)}, 0', f'{MF} {vr(KOP, 4)}, {vr(KOP + 4, 4)}, {vr(QOP + 4, 4)}, {vr(KOP, 4)}']
    pvx = [f'{MF} {vr(LD, 4)}, {vr(PX, 4)}, {vr(ONES, 4)}, 0', f'{MF} {vr(OD, 4)}, {vr(PX, 4)}, {vr(VX, 4)}, 0', f'{MF} {vr(OD + 4, 4)}, {vr(PX, 4)}, {vr(VX + 4, 4)}, 0']
    pvm = [f'{MF16} {vr(LD, 4)}, {vr(PM, 2)}, {vr(ONES, 2)}, {vr(LD, 4)}', f'{MF16} {vr(OD, 4)}, {vr(PM, 2)}, {vr(VM, 2)}, {vr(OD, 4)}',
           f'{MF16} {vr(OD + 4, 4)}, {vr(PM + 2, 2)}, {vr(VM, 2)}, {vr(OD + 4, 4)}']
    inq = lambda q: 4 + AQ[4:].index(q)
    v = [sm(s) for s in (''.join(f'v{inq(q)}a v{inq(q)}b ' for q in (QE, QA, QB, QC, QD)) + 'v0a v0b v1a v2a v3a v1b v2b v3b').split()]
    sxi, smi = T.get('sxm', (6, 13))
    mf = v[:sxi] + sx + v[sxi:smi - 2] + smm + v[smi - 2:] + pvx + pvm
    def vmw(regs, lg):
        def f():
            k = max([j for j, x in enumerate(P.vm) if x & regs], default=-1)
            P('s_waitcnt ' + (f'vmcnt({len(P.vm) - 1 - k}) ' if k >= 0 else '') + f'lgkmcnt({lg})')
        return f
    W = [QE, ACQ, ACQ + 4, ACK + 4, ACK]
    dadd = lambda d, x: f'v_add_f32_dpp v{d}, v{x + 2}, v{x} {QP("[2,3,0,1]")}'
    dexp = lambda d: f'v_exp_f32_dpp v{d}, v{d} {QP("[0,1,0,1]")}'
    def cbar(*writes):
        def f():
            done = [x.text for x in P.trace]
            assert all(x in done for x in writes) and not any(getattr(x, 'text', '') in writes for x in P.lg), 'barrier before its writes'
            P('s_barrier')
        return f
    pwr = f'ds_write_b32 v{R2}, v{VM} offset:{512 + 4 * w}'
    vops = dict(wq=WW, bq=cbar(qv[4], qv[7]), q0=f'ds_read_b128 {vr(QOP, 4)}, v{R1}', q1=f'ds_read_b128 {vr(QOP + 4, 4)}, v{R1} offset:128',
                ka0=add(ACK + 4, ACK + 6), kc0=cvt(ACK + 2, ACK, ACK + 4), kw0=dw(ACK + 2, 256), ka1=add(ACK + 5, ACK + 7), kc1=cvt(ACK + 3, ACK + 1, ACK + 5),
                kw1=dw(ACK + 3, 256 + PITCH), fl=flip, r0=rdA(0), z1=f'v_mov_b32 v{PM + 1}, 0', z2=f'v_mov_b32 v{PM + 2}, 0', r1=rdA(1), wk=WW, bk=cbar(dw(ACK + 2, 256), dw(ACK + 3, 256 + PITCH)),
                k0=f'ds_read_b128 {vr(KOP, 4)}, v{R1} offset:256', k1=f'ds_read_b128 {vr(KOP + 4, 4)}, v{R1} offset:384', r2=rdA(2),
                xa0=dadd(VM, KX), xa1=dadd(VM + 1, KX + 1), xe0=dexp(VM), r3=rdA(3), xe1=dexp(VM + 1), xc=cvt(VM, VM, VM + 1),
                pw=f'ds_write_b32 v{R2}, v{VM} offset:{512 + 4 * w}', ze0=z2(QE), w00=F(W0)[0], ze1=z2(QE + 2), w01=F(W0)[1], on=f'v_mov_b64 {vr(ONES, 2)}, s[78:79]',
                ma0=dadd(S0, KOP), ma1=dadd(S1, KOP + 1), wp=WW, bp=cbar(pwr), pr=f'ds_read_b128 {vr(PX, 4)}, v{R2} offset:512',
                w10=F(W1)[0], mm0=f'v_mul_f32 v{S0}, {sCB}, v{S0}', w11=F(W1)[1], mm1=f'v_mul_f32 v{S1}, {sCB}, v{S1}', me0=dexp(S0), me1=dexp(S1),
                va0=add(ACV, ACV + 2), va1=add(ACV + 1, ACV + 3), va2=add(ACV + 4, ACV + 6), va3=add(ACV + 5, ACV + 7),
                mc0=cvt(PM, S0, S1), vc0=cvt(VM, ACV, ACV + 1), vc1=cvt(VM + 1, ACV + 4, ACV + 5), mc1=cvt(PM + 3, S0, S1), zq0=z2(ACQ),
                tab=F(wstream[2])[0], zq1=z2(ACQ + 2))
    vat = dict(VAT, **T.get('vat', {}))
    side = {}
    for k_, x in vops.items(): addside(side, vat[k_], x)
    both = lambda m0, m1: (lambda: (P.prewait(m1), P.prewait(m0)))
    addside(side, sxi - 1, both(*sx)); addside(side, smi - 1, both(*smm)); addside(side, 21, both(pvx[0], pvx[2]))
    run(mf, side, 'v')
    ODUP = {w: QD, **{c: (QA, QB, QC)[j] for j, c in enumerate(oth)}}
    rdO = lambda c: f'ds_read_b128 {vr(ODUP[c], 4)}, v{R2} offset:{L_O + 64 * c}'
    def normalise():
        P(f'v_rcp_f32 v{LD + 2}, v{LD}\nv_rcp_f32 v{LD + 3}, v{LD + 1}')
        for r in (0, 1, 4, 5):
            P(f'v_mul_f32 v{OD + r}, v{LD + 2 + r % 2}, v{OD + r}')
            if r == 1: P(f'v_max3_f32 v{LD}, v{LD}, v{LD + 1}, v{LD + 2}')
        P(cvt(OD + 2, OD, OD + 4)); P(dw(OD + 2, L_O)); P(cvt(OD + 3, OD + 1, OD + 5)); P(dw(OD + 3, L_O + PITCH))
        P(rdO(w))
    normalise()
    mark('owr')
    P.c('exp() ran without a shift: safe only while every row sum and its reciprocal stay below 2^30; otherwise redo with the true row max')
    P(f'v_max_f32 v{LD}, v{LD}, v{LD + 3}\nv_cmp_le_f32 vcc, {(127 + 30) << 23}, v{LD}')
    P(z2(ACQ + 4)); P(z2(ACQ + 6)); P(F(wstream[2])[1])
    P(f's_cbranch_vccnz {Lb("mx")}')
    P.label(Lb('mxok'), keep=True)
    def truemax():
        P.label(Lb('mx'))
        SXD, SMD, PL, MXR = QC, QD, ACV, QE
        P(f's_waitcnt lgkmcnt(0)\ns_barrier')
        for c in range(2):
            P(vx[c])
            P(f'buffer_load_dwordx4 {vr(QA + 4 * c, 4)}, v{A2}, {SWS}, {sKV} offen offset:{1024 * c} sc1')
            P(f'ds_read_b128 {vr(ACQ + 4 * c, 4)}, v{R1} offset:{128 * c}\nds_read_b128 {vr(ACK + 4 * c, 4)}, v{R1} offset:{256 + 128 * c}')
        for d_, a_ in ((SXD, QA), (SMD, ACK)):
            P(f'{MF} {vr(d_, 4)}, {vr(a_, 4)}, {vr(ACQ, 4)}, 0\n{MF} {vr(d_, 4)}, {vr(a_ + 4, 4)}, {vr(ACQ + 4, 4)}, {vr(d_, 4)}')
        for d_ in (SXD, SMD):
            for r in range(2): P(f'v_add_f32_dpp v{d_ + r}, v{d_ + 2 + r}, v{d_ + r} {QP("[2,3,0,1]")}')
            for r in range(2): P(f'v_mov_b32_dpp v{d_ + r}, v{d_ + r} {QP("[0,1,0,1]")}')
        for r in range(2):
            P(f'v_mul_f32 v{SMD + r}, {sCB}, v{SMD + r}\nds_write_b32 v{R2}, v{SXD + r} offset:{L_O + 64 * r + 4 * w}')
        P('s_waitcnt lgkmcnt(0)\ns_barrier')
        for r in range(2): P(f'ds_read_b128 {vr(PL + 4 * r, 4)}, v{R2} offset:{L_O + 64 * r}')
        P('s_waitcnt lgkmcnt(0)\ns_barrier')
        sc = list(range(PL, PL + 8)) + [SMD, SMD + 1]
        P(f'v_max_f32 v{MXR}, v{sc[0]}, v{sc[1]}')
        for j in range(2, 10, 2): P(f'v_max3_f32 v{MXR}, v{MXR}, v{sc[j]}, v{sc[j + 1]}')
        for sw in ('v_permlane16_swap_b32', 'v_permlane32_swap_b32'):
            P(f'v_mov_b32 v{MXR + 1}, v{MXR}\n{sw} v{MXR}, v{MXR + 1}\nv_max_f32 v{MXR}, v{MXR}, v{MXR + 1}')
        for r in sc: P(f'v_sub_f32 v{r}, v{r}, v{MXR}')
        for r in sc: P(f'v_exp_f32 v{r}, v{r}')
        for r in range(4): P(cvt(PX + r, PL + r, PL + 4 + r))
        P(cvt(PM, SMD, SMD + 1)); P(cvt(PM + 3, SMD, SMD + 1))
        P(f'v_mov_b32 v{PM + 1}, 0\nv_mov_b32 v{PM + 2}, 0')
        for x in pvx + pvm: P(x)
        P(F(wstream[2])[0])
        normalise()
        P(F(wstream[2])[1])
        for r in range(QE, ACQ + 8, 2): P(z2(r))
        P(f's_branch {Lb("mxok")}')
    retry.append(truemax)
    WW(); P('s_barrier')
    mark('obar1')
    P(rdO(oth[0]))
    if T.get('marks', [0])[0] == 'top': P(f's_cmp_eq_u32 {sSTEP}, {NSEG - 1}\ns_cbranch_scc1 {Lb("done")}')
    order = [0, 1, 2, 3, 4] if heavy else [0, 1, 2, 3]
    mf = [f'{SM} {vr(W[o[1] if o[0] == "d" else 4], 4)}, {vr(ODUP[o[-1]], 4)}, {bsrc(o)}, v{IDX}' for o in wseq]
    side = {}
    fl = [rdO(oth[1]), rdO(oth[2])] + F(wstream[3]) + [f'ds_read_b128 {vr(ONES, 4)}, v{A2} offset:{L_TAB}'] + [x for o in wstream[4:] for x in F(o)]
    w_at = T.get('w_at', (0, 1, 2, 3, 4, 5, 6, 7, 9, 10, 11, 12, 12, 13, 14, 15, 15))
    for i, x in zip(w_at, fl): addside(side, i, x)
    fin = (5, 8, 11, 15)
    tagi = lambda d: f'v_bfi_b32 v{W[d]}, 1, {sTAG}, v{W[d]}'
    pst = lambda d: f'buffer_store_dwordx2 {vr(W[d], 2)}, v{A3}, {SWS}, {sPW[d]} offen {stf}'
    for j, d in enumerate(order[:-1]):
        for i, x in zip(T.get('c_at', (2, 2, 2, 3)), (cvt(W[d], W[d], W[d] + 1), cvt(W[d] + 1, W[d] + 2, W[d] + 3), tagi(d), pst(d))): addside(side, fin[j] + i, x)
    for i, r in zip(T.get('z_at', (8, 9, 11, 14)), (W[3], W[3] + 2) + ((W[4], W[4] + 2) if heavy else ())): addside(side, i, z2(r))
    n1 = 1
    if nunit == 1: SELR, RDS, sets = QA, [QB], [[VX], [ACV], [KX], [QOP]][:n1]
    else: SELR, RDS, sets = VX, [VX + 4, ACV], [[QA, QC], [KX, QOP]][:n1]
    srcs = [sPR, sPRX]
    h1ld = [[f'buffer_load_dwordx4 {vr(dat + 4 * q, 4)}, v{A2}, {SWS}, {srcs[u]} offen offset:{1024 * q} sc1' for u, dat in enumerate(st_) for q in range(2)] for st_ in sets]
    run(mf, side, 'w')
    d = order[-1]
    P(f'v_mov_b64 {vr(QE + 2, 2)}, {vr(VM, 2)}')
    P(cvt(W[d], W[d], W[d] + 1)); P(cvt(W[d] + 1, W[d] + 2, W[d] + 3)); P(tagi(d))
    P(pst(d))
    mark('wend')
    P.trace = None
    for j, nm in enumerate(('ack4', 'ack3', 'ack2', 'ack1', 'ack0')[5 - len(order):]):
        if 'marks' in opt and 'ack0' in T.get('marks', ()): P(f's_waitcnt vmcnt({len(order) - 1 - j})'); mark(f'ack{order[j]}')
    if 'nocomm' in opt:
        book('SKyzsetf'); dly(60)
        P(f's_branch {Lb("h2")}')
    book(place[0])
    if stf: P(f's_waitcnt vmcnt({T.get("sack", (0, 0, 0, 0))[w]})')
    for x in h1ld[0]: P(x)
    mark('h1i')
    book(place[1])
    if w == 1: extras(True)
    P('s_waitcnt lgkmcnt(0)')
    if kvchk:
        def kv1():
            P.label(Lb('kv3'))
            P(f's_waitcnt lgkmcnt(0)\ns_cmp_ge_u32 {sT3}, 0x700\ns_cbranch_scc1 {Lb("kvb")}')
            P(f's_load_dword {sT3}, s[12:13], {sFLG} glc\ns_add_u32 {sSPIN}, {sSPIN}, 1\ns_cmp_lt_u32 {sSPIN}, {SPIN_MAX}\ns_cbranch_scc1 {Lb("kv3")}\ns_waitcnt lgkmcnt(0)\ns_branch {Lb("kvb")}', nowait=True)
        retry.append(kv1)
    pub = [(A5, sMW), (A5X, sMWX)]
    def reduce_check(st_, mk=False):
        for u, dat in enumerate(st_):
            rd = RDS[u]
            P(f'{MF} {vr(rd, 4)}, {vr(SELR, 4)}, {vr(dat, 4)}, 0')
            if mk and u == 0: mark('h1d')
            P(f'v_bitop3_b32 v{CK if u == 0 else CK2}, v{dat}, v{dat + 2}, {sTAG} bitop3:0x7e')
            if u: P(f'v_or_b32 v{CK}, v{CK}, v{CK2}')
            P(f'{MF} {vr(rd, 4)}, {vr(SELR, 4)}, {vr(dat + 4, 4)}, {vr(rd, 4)}')
            P(f'v_bitop3_b32 v{CK2}, v{dat + 4}, v{dat + 6}, {sTAG} bitop3:0x7e')
            if u + 1 < len(st_): P(f'v_or_b32 v{CK}, v{CK}, v{CK2}')
        P(f'v_bitop3_b32 v{CK}, v{CK}, v{CK2}, 1 bitop3:0xa8')
        P(f'v_cmp_ne_u32 vcc, 0, v{CK}')
    spec = T.get('spec', 1) and w != 3 and not stf
    def publish(spec):
        if w == 3 and not stf: P(hld, nowait=True); mark('h2i')
        sp = T.get('sp', 1)
        if spec and sp == 0: P(f's_cmp_eq_u64 vcc, 0\ns_cselect_b32 {sT0}, {pub[0][1]}, {WS_SIZE}')
        for rot in (4, 8):
            for rd in RDS:
                for r in range(2): P(f'v_add_f32_dpp v{rd + r}, v{rd + r}, v{rd + r} {DPP(f"row_ror:{rot}")}')
            if spec and sp == 1: P('s_cmp_eq_u64 vcc, 0' if rot == 4 else f's_cselect_b32 {sT0}, {pub[0][1]}, {WS_SIZE}')
        for u, rd in enumerate(RDS):
            P(cvt(rd, rd, rd + 1))
            P(f'buffer_store_dword v{rd}, v{pub[u][0]}, {SWS}, {(sT0, sT1)[u] if spec else pub[u][1]} offen {stf}')
    def finish():
        mark('pub')
        for u in range(nunit): P(f's_xor_b32 {pub[u][1]}, {pub[u][1]}, {MEM_SLOT}\nbuffer_store_dword v{TT}, v{pub[u][0]}, {SWS}, {pub[u][1]} offen {stf}')
        P(f's_xor_b32 {sTAG}, {sTAG}, 1\ns_branch {Lb("h2")}')
    reduce_check(sets[0], True)
    if spec: publish(True)
    P(f's_cbranch_vccnz {Lb("h1r")}')
    vm_h1r = list(P.vm)
    if not spec: publish(False)
    finish()
    regsets = [[Ins(x).ws for x in l] for l in h1ld]
    def rounds():
        for j in range(n1):
            P('s_mov_b64 exec, vcc')
            for x in h1ld[j]: P(x)
            P(f's_mov_b64 exec, -1\n{DIAG}\ns_add_u32 {sSPIN}, {sSPIN}, 1')
            reduce_check(sets[(j + 1) % n1])
            P(f's_cbranch_vccz {Lb("h1p")}')
    P.label(Lb('h1r'), vm=vm_h1r)
    rounds()
    P.label(Lb('h1s'), vm=[x for l in regsets[1:] for x in l])
    rounds()
    P(f's_cmp_lt_u32 {sSPIN}, {SPIN_MAX}\ns_cbranch_scc1 {Lb("h1s")}')
    P.label(Lb('h1p'))
    P('s_nop 2')
    publish(False)
    finish()
    for r in retry: r()
    P.label(Lb('last'), keep=True); P.restore(snap_last)
    P.c('last segment: only its k_m and v_m are needed (v accumulates where q would)')
    ACC['v'] = ACQ
    for t in eo[2:]: P(rdA(t))
    bufs.update({('k', s2, 0): KX, ('k', s2, 1): ACV, ('k', 4, 0): QOP, ('k', 4, 1): KX, ('k', 5, 0): ACV, ('k', 5, 1): QOP})
    for x in F(('k', s2, 0)): P(x)
    P('s_nop 5')
    for r in range(ACQ, ACQ + 8, 2): P(z2(r))
    seq = f'k{s1}a k{s1}b v0a v0b v1a v1b k{s2}a v2a v2b k{s2}b k2a k2b v3a v3b k3a k3b'.split()
    side = {0: F(('k', s2, 1)), 2: F(('k', 4, 0)), 4: [exp_], 7: F(('k', 4, 1)), 10: F(('k', 5, 0))}
    run([sm(x) for x in seq], side, 'l')
    dma_wait(POLL)(); dma_wait(DMA)()
    P('s_barrier')
    P.label(Lb('lastr'), vm=[], lg=[quad(r + 4 * j) for r in (QOP, KX, ACV) for j in range(2)])
    for t in range(4, 9): P(rdA(t))
    for x in maxtree(list(range(QA, QE + 4))): P(x)
    P(f'v_cmp_eq_u32 vcc, -1, v{CK}\ns_cbranch_vccnz {Lb("lastp")}')
    P.label(Lb('lastg'), keep=True)
    seq = 'k4a k4b k5a k6a k7a k8a k6b k7b k8b k5b v4a v5a v6a v7a v8a v4b v5b v6b v7b v8b'.split()
    side = {0: F(('k', 5, 1)), 11: [add(ACK, ACK + 2), add(ACK + 4, ACK + 6), cvt(ACK + 2, ACK, ACK + 4)],
            12: [dw(ACK + 2, 256), add(ACK + 1, ACK + 3), add(ACK + 5, ACK + 7), cvt(ACK + 3, ACK + 1, ACK + 5)],
            13: [dw(ACK + 3, 256 + PITCH)], 17: [WW, 's_barrier', kmrd.replace(vr(QE, 2), vr(VX, 2)), add(ACQ, ACQ + 2)], 18: [add(ACQ + 1, ACQ + 3)], 19: [cvt(VX + 2, ACQ, ACQ + 1)]}
    run([sm(x) for x in seq], side, 'm')
    P(f's_add_u32 {sEXP}, {sEXP}, {SEG_STRIDE}')
    P(add(ACQ + 4, ACQ + 6)); P(add(ACQ + 5, ACQ + 7)); P(cvt(VX + 3, ACQ + 4, ACQ + 5))
    P(exp_.replace(vr(QE, 4), vr(VX, 4)))
    P(f's_branch {Lb("done")}')
    P.label(Lb('lastp'))
    P.c('a late chunk was fetched too early (every wave sees that): fetch again')
    P(f's_add_u32 {sTAG}, {sTAG}, 2\ns_cmp_ge_u32 {sTAG}, {SPIN_MAX}\ns_cbranch_scc1 {Lb("lastg")}\ns_barrier')
    for x in dmas: P(x)
    P(f's_waitcnt vmcnt(0)\ns_barrier\ns_branch {Lb("lastr")}')
    P.label(Lb('done'))
```

```python
S, D, H, DH, M, SEG, NSEG = 2048, 576, 32, 128, 8, 32, 64
MB = 1 << 20
WS_PART = 0
PART_DEST = 2048 + 128
PART_CHUNK = 32 * PART_DEST
CYC = [0]
WS_FO = 0x60000
WS_MEM = 0x58000
MEM_SLOT = 1 << 14
SEG_STRIDE = 0xA0000
WS_KVX = 0x100000
WS_KVM = WS_KVX + 0x80000
WS_O   = 44 * MB
WS_OA  = 60 * MB
WS_G   = 63 * MB
WS_STAMP = 102 * MB
WS_SIZE = 256 * MB
SX, SWS, SDBG, SWQ, SWK, SWV, SWO, SMEM0, SWQKV, SWOA, SGATE, SOUT = [f's[{4+4*i}:{7+4*i}]' for i in range(12)]
SRD_LIST = [
    (4, 0, S*D*2), (8, 104, WS_SIZE), (12, 96, 256), (16, 40, D*H*DH*2), (20, 48, D*H*DH*2), (24, 56, D*H*DH*2),
    (28, 64, D*H*DH*2), (32, 32, M*D*2), (36, 8, D*3*D*2), (40, 16, D*D*2), (44, 80, D*2), (48, 88, S*D*2)]
import math
CB = math.log2(math.e) / math.sqrt(128.0)
import struct
def f32bits(x): return struct.unpack('<I', struct.pack('<f', x))[0]

DB_MASK, DB_ARMED, DB_ADONE, DB_SUR, DB_P1 = 0, 32, 36, 40, 128
L_BC = 163832
sG, sVER, sXCC = 's0', 's1', 's2'
CA = math.log2(math.e) / math.sqrt(18.0)
SPIN_MAX = 0x20000
KV_EARLY = 2

def claim(P, v='v35'):
    P(f's_lshl_b32 s55, {sXCC}, 2\ns_or_b32 s56, s52, {sVER}\ns_cmp_eq_u32 s56, 0\ns_cselect_b32 s55, s55, 0x1000\ns_lshl_b32 s56, 1, {sG}\nv_mov_b32 {v}, s56')
    P(f's_mov_b64 exec, 1\nbuffer_atomic_or {v}, off, {SDBG}, s55 sc0\ns_mov_b64 exec, -1')
def verify(P, name, nvm, L_BC=L_BC, va='v33', vb='v32', vr_='v35'):
    P(f's_cmp_eq_u32 {sVER}, 1\ns_cbranch_scc1 {name}_ok\nv_mov_b32 {va}, {L_BC}\ns_cmp_eq_u32 s52, 0\ns_cbranch_scc0 {name}_b')
    P(f's_waitcnt vmcnt({nvm})\ns_mov_b64 exec, 1\nds_write_b32 {va}, {vr_}\ns_mov_b64 exec, -1\ns_waitcnt lgkmcnt(0)', nowait=True)
    P.label(name + '_b', keep=True)
    P(f's_barrier\nds_read_b32 {vb}, {va}\nv_readfirstlane_b32 s54, {vb}\ns_bitcmp1_b32 s54, {sG}\ns_cbranch_scc1 L_conf')
    P.label(name + '_ok', keep=True)

def part_inbox(P, h, w, dst, dstx, t0, t1):
    P(f's_and_b32 {t0}, {h}, 7\ns_lshl_b32 {t0}, {t0}, 12\ns_bfe_u32 {t1}, {h}, 0x10003\ns_lshl_b32 {t1}, {t1}, 11\ns_add_u32 {t0}, {t0}, {t1}')
    P(f's_add_u32 {dstx}, {t0}, {WS_PART + 8 * 32768}')
    P(f's_lshr_b32 {t1}, {h}, 4\ns_lshl_b32 {t1}, {t1}, 15\ns_add_u32 {t0}, {t0}, {t1}\ns_lshl_b32 {t1}, {w}, 16\ns_add_u32 {t0}, {t0}, {t1}\ns_add_u32 {dst}, {t0}, {WS_PART}')
```

```python
from asmgen import *
from layout import *

sW, sJ, sT0, sT1, sT2, sT3 = 's52', 's53', 's54', 's55', 's56', 's57'
sH, sSEG, sXS, sM, sB0, sB1, sO, sSPIN, sN, sXM, sU0, sU1, sU2, sU3 = ['s%d' % i for i in range(58, 72)]
MF32 = 'v_mfma_f32_32x32x16_bf16'
MF = 'v_mfma_f32_16x16x32_bf16'
XBUF = 36864
NTEAM = 2
NSET = 3
RING = 36864
L, A2, XD, XR, WD0, WD1, RP, RN, T0, T1, T2, T3, RA = 200, 201, 202, 203, 207, 208, 209, 210, 211, 212, 213, 214, 215
XO = 32
cvt = lambda d, a, b: f'v_cvt_pk_bf16_f32 v{d}, v{a}, v{b}'
def wreg(i):
    return ('a', 4 * i) if i < 64 else ('v', 224 + 4 * (i - 64))
def wq(i):
    k, r = wreg(i); return vr(r, 4, k)

def common(P):
    P.c('---- worker per-lane constants')
    P(f'''v_and_b32 v{L}, 63, v0
    v_lshlrev_b32 v{A2}, 4, v{L}
    v_lshrrev_b32 v{T0}, 3, v{L}
    s_lshl_b32 {sT0}, {sW}, 3
    v_add_u32 v{T0}, {sT0}, v{T0}
    v_bfe_u32 v{T1}, v{T0}, 1, 3
    v_and_b32 v{T2}, 7, v{L}
    v_xor_b32 v{T1}, v{T1}, v{T2}
    v_mul_u32_u24 v{T0}, 1152, v{T0}
    v_lshl_add_u32 v{XD}, v{T1}, 4, v{T0}
    s_mul_i32 {sXM}, {sW}, 9216
    v_and_b32 v{T0}, 31, v{L}
    v_lshrrev_b32 v{T1}, 3, v{T0}
    v_mul_u32_u24 v{T1}, 9216, v{T1}
    v_and_b32 v{T2}, 7, v{T0}
    v_lshl_add_u32 v{T1}, v{T2}, 7, v{T1}
    v_bfe_u32 v{T2}, v{T0}, 1, 3
    v_lshrrev_b32 v{T3}, 5, v{L}
    v_xor_b32 v{T2}, v{T2}, v{T3}
    v_lshl_add_u32 v{XR}, v{T2}, 4, v{T1}
    v_xor_b32 v{XR + 1}, 32, v{XR}
    v_xor_b32 v{XR + 2}, 64, v{XR}
    v_xor_b32 v{XR + 3}, 0x60, v{XR}
    v_bfe_u32 v{T0}, v{L}, 2, 2
    v_lshl_add_u32 v{T1}, v{T3}, 3, v{T0}
    v_lshlrev_b32 v{T1}, 8, v{T1}
    v_xor_b32 v{T0}, {sW}, v{T0}
    v_lshl_add_u32 v{T1}, v{T0}, 6, v{T1}
    v_bfe_u32 v{T2}, v{L}, 4, 1
    v_and_b32 v{T0}, 3, v{L}
    v_lshl_add_u32 v{RN}, v{T2}, 5, v{T1}
    v_lshl_add_u32 v{RN}, v{T0}, 3, v{RN}
    v_lshl_add_u32 v{RP}, v{T2}, 4, v{T1}
    v_and_b32 v{T2}, 1, v{T0}
    v_lshl_add_u32 v{RP}, v{T2}, 3, v{RP}
    v_lshrrev_b32 v{T2}, 1, v{T0}
    v_lshl_add_u32 v{RP}, v{T2}, 5, v{RP}
    s_mov_b32 {sSPIN}, 0''')

def xdma_ins(buf):
    return [f's_add_u32 m0, {sXM}, {buf * XBUF + 896 * c}\ns_nop 0\nbuffer_load_dwordx4 v{XD}, {SX}, {sXS} offen offset:{128 * c} lds' for c in range(9)]
def xdma(P, buf):
    for x in xdma_ins(buf): P(x)

def wload(P, mats, stride, after_issue=None, extra={}):
    blocks = [(m, t) for t in range(9) for m in mats]
    n = len(blocks); NS = 7
    P(f's_lshl_b32 {sM}, {sW}, 10\ns_add_u32 {sM}, {sM}, {RING}')
    cnt = [0]; marks = {}
    def dma(j):
        (srd, va, base, _, _), t = blocks[j]
        for y in range(4):
            P(f's_add_u32 m0, {sM}, {(j % NS) * 16384 + y * 4096}\ns_add_u32 {sT0}, {base}, {(64 * t + 16 * y) * stride}')
            P(f'buffer_load_dwordx4 v{va}, {srd}, {sT0} offen lds')
        cnt[0] += 4; marks[j] = cnt[0]
    for j in range(NS - 1): dma(j)
    if after_issue: after_issue()
    for j, ((srd, va, base, ra, q0), t) in enumerate(blocks):
        P(f's_waitcnt vmcnt({cnt[0] - marks[j]}) lgkmcnt(0)\ns_barrier')
        if j + NS - 1 < n: dma(j + NS - 1)
        if j in extra: extra[j](); cnt[0] += 1
        P(f'v_add_u32 v{RA}, {RING + (j % NS) * 16384}, v{ra}')
        for kk in range(4):
            k, r = wreg(q0 + 4 * t + kk)
            for u in range(2): P(f'ds_read_b64_tr_b16 {vr(r + 2 * u, 2, k)}, v{RA} offset:{(16 * kk + 4 * u) * 256}')
    P('s_waitcnt lgkmcnt(0)\ns_barrier')

def gemm(P, buf, tiles, side=()):
    rd = lambda k: f'ds_read_b128 {vr(XO + 4 * (k % 4), 4)}, v{XR + k % 4} offset:{buf * XBUF + (k // 4) * 1024}'
    for k in range(3): P(rd(k))
    side = list(side)
    for k in range(36):
        x = vr(XO + 4 * (k % 4), 4)
        for j, (acc, q0, wa) in enumerate(tiles):
            c = '0' if k == 0 else vr(acc, 16)
            P(f'{MF32} {vr(acc, 16)}, {wq(q0 + k)}, {x}, {c}' if wa else f'{MF32} {vr(acc, 16)}, {x}, {wq(q0 + k)}, {c}')
            if j == 0 and k + 3 < 36: P(rd(k + 3))
            if side: P(side.pop(0))
    assert not side

def poll(P, name, srd, va, soff, cmp_, exec_, sleep=2):
    P(f's_cmp_eq_u32 {sW}, 0\ns_cbranch_scc0 {name}_d\ns_mov_b32 exec_hi, 0\ns_mov_b32 exec_lo, {exec_}')
    P.label(name)
    P(f'buffer_load_dword v{T0}, v{va}, {srd}, {soff} offen sc1\ns_add_u32 {sSPIN}, {sSPIN}, 1\ns_waitcnt vmcnt(0)')
    P(cmp_)
    P(f's_cbranch_vccz {name}_x\ns_sleep {sleep}\ns_cmp_lt_u32 {sSPIN}, {SPIN_MAX}\ns_cbranch_scc1 {name}')
    P.label(name + '_x')
    P('s_mov_b64 exec, -1')
    P.label(name + '_d')
    P('s_barrier')

def signal_add(P, name, off, val=1):
    P(f's_waitcnt vmcnt(0)\ns_barrier\ns_cmp_eq_u32 {sW}, 0\ns_cbranch_scc0 {name}')
    P(f'v_mov_b32 v{T0}, {val}\nv_mov_b32 v{T1}, 0\ns_mov_b64 exec, 1\nbuffer_atomic_add v{T0}, v{T1}, {SDBG}, {off} offen\ns_mov_b64 exec, -1')
    P.label(name)

def kv_addr(P, KA, VA):
    P(f'''; K unit address: (tok>>3)*2048 + (4*(j>>1) + 2*hf + (j&1))*16, j = tok&7
    v_bfe_u32 v{T0}, v{L}, 3, 2
    v_lshlrev_b32 v{KA}, 11, v{T0}
    v_bfe_u32 v{T0}, v{L}, 1, 2
    v_lshl_add_u32 v{KA}, v{T0}, 6, v{KA}
    v_lshrrev_b32 v{T1}, 5, v{L}
    v_lshl_add_u32 v{KA}, v{T1}, 5, v{KA}
    v_and_b32 v{T0}, 1, v{L}
    v_lshl_add_u32 v{KA}, v{T0}, 4, v{KA}
    v_bfe_u32 v{T0}, v{L}, 4, 1
    v_lshlrev_b32 v{VA}, 10, v{T0}
    v_lshl_add_u32 v{VA}, v{T1}, 9, v{VA}
    v_and_b32 v{T0}, 15, v{L}
    v_lshl_add_u32 v{VA}, v{T0}, 4, v{VA}
    s_lshl_b32 {sT0}, {sW}, 11
    s_add_u32 {sT0}, {sT0}, 8192
    v_add_u32 v{VA}, {sT0}, v{VA}''')

KA, VA = 216, 217
def head_src(P):
    P(f'''v_lshrrev_b32 v{T0}, 4, v{L}
    v_lshlrev_b32 v{T1}, 2, v{T0}
    v_and_b32 v{T2}, 15, v{L}
    v_xor_b32 v{T1}, v{T1}, v{T2}
    v_lshlrev_b32 v{T1}, 4, v{T1}
    v_lshl_add_u32 v{WD0}, v{T0}, 13, v{T1}
    s_lshl_b32 {sB0}, {sH}, 8
    s_lshl_b32 {sT0}, {sW}, 15
    s_add_u32 {sB0}, {sB0}, {sT0}''')

def phase_kv(P):
    P.c('==== phase 1: k_x (scaled) and v_x of head j/7 for segments j%7, +7, ...')
    P(f'''s_mul_i32 {sH}, {sJ}, 9363
    s_lshr_b32 {sH}, {sH}, 16
    s_mul_i32 {sT0}, {sH}, 7
    s_sub_u32 {sSEG}, {sJ}, {sT0}
    s_mul_i32 {sXS}, {sSEG}, {XBUF}''')
    def pf(srd):
        def f0():
            P(f's_lshl_b32 {sT0}, {sJ}, 13\ns_lshr_b32 {sT1}, {sJ}, 6\ns_or_b32 {sT1}, {sT1}, {sW}\ns_cmp_eq_u32 {sT1}, 0\ns_cselect_b32 {sT0}, {sT0}, 0x10000000')
            P(f'v_lshlrev_b32 v{T0}, 3, v{A2}\ns_add_u32 {sT0}, {sT0}, {384 * 8192}\nbuffer_load_dword v196, v{T0}, {SWQ}, {sT0} offen')
        if srd is None: return f0
        def f():
            P.c('pull weights the recurrence needs later towards the memory-side cache with linear reads (speed only)')
            P(f'''s_mul_i32 {sT0}, {sJ}, 21120
            s_lshl_b32 {sT1}, {sW}, 13
            s_add_u32 {sT0}, {sT0}, {sT1}
            s_cmp_eq_u32 {sW}, 3
            s_cselect_b32 {sT0}, 0x10000000, {sT0}
            v_lshlrev_b32 v{T0}, 3, v{A2}
            buffer_load_dword v196, v{T0}, {srd}, {sT0} offen''')
        return f
    for j, m in P.pf.items():
        if j < 0: pf({'q': SWQ, 'o': SWO}[m])()
    xdma(P, 0)
    head_src(P)
    def after_issue():
        kv_addr(P, KA, VA)
    wload(P, [(SWK, WD0, sB0, RP, 0), (SWV, WD0, sB0, RN, 36)], 8192, after_issue, {P.wclj: lambda: claim(P, 'v197'), **{j: pf({'q': SWQ, 'o': SWO, 'q0': None}[m]) for j, m in P.pf.items()}})
    P(f's_mov_b32 {sU0}, {f32bits(CB)}\ns_lshl_b32 {sU1}, {sW}, 9\ns_lshl_b32 {sU2}, {sH}, 2\ns_add_u32 {sU2}, {sU2}, {DB_P1}')
    P.c('each finished segment also marks its k_m / v_m slot as not yet written')
    P(f's_mul_i32 {sN}, {sH}, {4096 - 16384}\ns_lshl_b32 {sT0}, {sW}, 10\ns_add_u32 {sN}, {sN}, {sT0}\ns_add_u32 {sN}, {sN}, {WS_KVM - WS_KVX}')
    for r in range(64, 68): P(f'v_mov_b32 v{r}, -1')
    P.stamp(1)
    ACCS = (0, 68)
    def epi(par):
        A_ = ACCS[par]; out = []
        for a in range(2):
            for h_ in range(2): out.append('\n'.join(f'v_mul_f32 v{A_ + 8 * a + 4 * h_ + r}, {sU0}, v{A_ + 8 * a + 4 * h_ + r}' for r in range(4)))
            out.append('\n'.join(cvt(48 + 4 * a + r, A_ + 8 * a + r, A_ + 8 * a + 4 + r) for r in range(4)))
            out += [f'buffer_store_dwordx4 {vr(48 + 4 * a, 4)}, v{KA}, {SWS}, s72 offen offset:{256 * a} sc1', '', '']
        for a in range(2):
            out.append('\n'.join(cvt(56 + 4 * a + r, A_ + 16 + 4 * r + 2 * a, A_ + 17 + 4 * r + 2 * a) for r in range(4)))
            out += [f'buffer_store_dwordx4 {vr(56 + 4 * a, 4)}, v{VA}, {SWS}, {sO} offen offset:{256 * a} sc1', '', '']
        return out + [f'buffer_store_dwordx4 v[64:67], v{A2}, {SWS}, s73 offen sc1']
    def tile(buf, prev):
        P(f's_add_u32 {sXS}, {sXS}, {7 * XBUF}')
        side = [x for d_ in xdma_ins(1 - buf) for x in (d_, '')] + (epi(1 - buf) if prev else [])
        gemm(P, buf, [(ACCS[buf], 0, True), (ACCS[buf] + 16, 36, False)], side)
        P(f"""s_mul_i32 {sO}, {sSEG}, {SEG_STRIDE}
        s_lshl_b32 {sT1}, {sH}, 14
        s_add_u32 {sO}, {sO}, {sT1}
        s_add_u32 {sO}, {sO}, {WS_KVX}
        s_add_u32 s72, {sO}, {sU1}
        s_add_u32 s73, {sO}, {sN}
        s_add_u32 {sSEG}, {sSEG}, 7""")
    tile(0, False)
    P('s_waitcnt vmcnt(0)\ns_barrier')
    verify(P, 'W_ver', 0, vr_='v197')
    P.c('the token-attention workgroups clear their own progress word before anyone can look at it')
    P(f'''s_lshr_b32 {sT1}, {sJ}, 1
    s_and_b32 {sT2}, {sJ}, 1
    s_lshl_b32 {sT2}, {sT2}, 13
    s_lshl_b32 {sT1}, {sT1}, 8
    s_add_u32 {sT1}, {sT1}, {sT2}
    s_add_u32 {sT1}, {sT1}, {WS_FO}
    s_cmp_lt_u32 {sJ}, 64
    s_cselect_b32 {sU3}, {sT1}, {WS_SIZE}
    v_mov_b32 v{T0}, 0
    s_mov_b64 exec, 1
    buffer_store_dword v{T0}, v{T0}, {SWS}, {sU3} offen sc1
    s_mov_b64 exec, -1''')
    P.c('the first team also arms the recurrence\'s hand-off buffers: the inbox of member h, and (heads 0, 1) the mem ring')
    P(f'''s_cmp_eq_u32 {sSEG}, 7
    s_cbranch_scc0 KV_na
    s_mul_i32 {sT0}, {sH}, {PART_DEST}
    s_mul_i32 {sT1}, {sW}, {PART_CHUNK}
    s_add_u32 {sT1}, {sT1}, {sT0}
    s_add_u32 {sT1}, {sT1}, {WS_PART}
    s_add_u32 {sT0}, {sT0}, {WS_PART + 4 * PART_CHUNK}
''')
    if CYC[0]: part_inbox(P, sH, sW, sT1, sT0, sT2, sT3)
    P(f'''s_lshl_b32 {sT2}, {sH}, 14
    s_mul_i32 {sT3}, {sW}, 3072
    s_add_u32 {sT2}, {sT2}, {sT3}
    s_add_u32 {sT2}, {sT2}, {WS_MEM}
    s_cmp_lt_u32 {sH}, 2
    s_cselect_b32 {sT2}, {sT2}, {WS_SIZE}
    s_cmp_eq_u32 {sW}, 0
    s_cselect_b32 {sT0}, {sT0}, {WS_SIZE}''')
    for sb_, o in ((sT1, 0), (sT1, 1024), (sT0, 0), (sT0, 1024), (sT2, 0), (sT2, 1024), (sT2, 2048)):
        P(f'buffer_store_dwordx4 v[64:67], v{A2}, {SWS}, {sb_} offen offset:{o} sc1')
    P.label('KV_na')
    P.label('KV_loop')
    for buf in (1, 0):
        tile(buf, True)
        P(f's_cmp_ge_u32 {sSEG}, {NSEG}\ns_cbranch_scc1 KV_done{buf}')
        if buf == KV_EARLY % 2:
            P(f's_sub_u32 {sT0}, {sSEG}, {7 * (KV_EARLY + 1)}\ns_cmp_lt_u32 {sT0}, 7\ns_cbranch_scc1 KV_early')
        P('s_waitcnt vmcnt(5)\ns_barrier')
        if buf == KV_EARLY % 2: P.label('KV_cont')
    P('s_branch KV_loop')
    P.label('KV_early')
    signal_add(P, 'KV_sig0', sU2)
    P('s_branch KV_cont')
    for buf in (1, 0):
        P.label(f'KV_done{buf}')
        P('s_nop 11')
        for x in epi(buf): P(x)
        if buf: P('s_branch KV_fin')
    P.label('KV_fin')
    signal_add(P, 'KV_sig', sU2, 0x100)

def phase_attn(P):
    P.c('==== token attention: head j/2, segments j%2, +2, ...')
    QL = 2 * XBUF
    MASK, SX_, SM_, QO, KO, VO, VMO, OA, KM, VMA = 48, 64, 80, 96, 128, 160, 168, 0, 218, 219
    P(f'''s_lshr_b32 {sH}, {sJ}, 1
    s_and_b32 {sSEG}, {sJ}, 1
    s_mul_i32 {sXS}, {sSEG}, {XBUF}''')
    xdma(P, 0)
    head_src(P)
    wload(P, [(SWQ, WD0, sB0, RP, 0)], 8192)
    P(f'''; causal mask as accumulator start: key = 8*(r>>2) + 4*hf + (r&3) > query -> -1e30
    v_and_b32 v{T0}, 31, v{L}
    v_lshrrev_b32 v{T1}, 5, v{L}
    v_lshlrev_b32 v{T2}, 2, v{T1}
    v_sub_u32 v{T0}, v{T0}, v{T2}
    v_mov_b32 v{T3}, 0xf149f2ca''')
    for r in range(16):
        P(f'v_cmp_gt_i32 vcc, {8 * (r // 4) + r % 4}, v{T0}\nv_cndmask_b32 v{MASK + r}, 0, v{T3}, vcc')
    KL, VL = QL + 8192, QL + 8192 + 2048
    KW, VW, PC, NEG = 220, 221, 172, 176
    P(f'''v_and_b32 v{KM}, 0xff, v{KA}
    v_add_u32 v{KM}, {KL}, v{KM}
    v_and_b32 v{T0}, 15, v{L}
    v_lshl_add_u32 v{T0}, v{T1}, 5, v{T0}
    v_lshlrev_b32 v{VMA}, 3, v{T0}
    v_bfe_u32 v{T0}, v{L}, 4, 1
    v_lshl_add_u32 v{VMA}, v{T0}, 2, v{VMA}
    s_lshl_b32 {sT0}, {sW}, 9
    s_add_u32 {sT0}, {sT0}, {VL}
    v_add_u32 v{VMA}, {sT0}, v{VMA}
    v_lshl_add_u32 v{VW}, v{L}, 3, {sT0}
    s_lshr_b32 {sT0}, {sW}, 1
    s_lshl_b32 {sT0}, {sT0}, 10
    s_and_b32 {sT1}, {sW}, 1
    s_lshl_b32 {sT1}, {sT1}, 3
    s_add_u32 {sT0}, {sT0}, {sT1}
    s_add_u32 {sT0}, {sT0}, {KL}
    v_add_u32 v{KW}, {sT0}, v{A2}
    s_lshl_b32 {sT0}, {sW}, 11
    s_add_u32 {sT0}, {sT0}, {QL}
    v_add_u32 v{RA}, {sT0}, v{A2}
    v_add_u32 v{WD1}, {QL}, v{A2}
    s_mov_b32 {sU0}, {f32bits(CB)}
    s_cmp_eq_u32 {sW}, 0
    s_cselect_b32 {sU3}, {sU3}, {WS_SIZE}
    s_lshl_b32 {sT2}, {sH}, 2
    s_add_u32 {sT2}, {sT2}, {DB_P1}''')
    for r in range(4): P(f'v_mov_b32 v{NEG + r}, -1')
    poll(P, 'AT_p1', SDBG, A2, sT2, f'v_cmp_gt_u32 vcc, 0x700, v{T0}', 1, 8)
    P.stamp(3)
    def xhalf(op, r):
        P(f'v_mov_b32 v{r + 1}, v{r}\nv_permlane32_swap_b32 v{r}, v{r + 1}\n{op} v{r}, v{r}, v{r + 1}')
    SETS = [dict(QO=('v', 96), OA=0, MX=180, LX=182, sO='s72', sP='s73', sS='s74'), dict(QO=('a', 144), OA=224, MX=184, LX=186, sO='s75', sP='s76', sS='s77')]
    PO, GA_ = 20, 240
    hld = f'buffer_load_dword v{PC}, off, {SWS}, {sU2} {P.T.get("hfl", "sc1")}'
    pld = lambda buf: f'buffer_load_dwordx4 {vr(PC, 4)}, v{A2}, {SWS}, {SETS[buf]["sP"]} offen sc1'
    def early(buf, look=True):
        R = SETS[buf]; qk, q0 = R['QO']; OA, MX, LX, sO_, sP = R['OA'], R['MX'], R['LX'], R['sO'], R['sP']
        P(f'''s_mov_b32 {R['sS']}, {sSEG}
        s_mul_i32 {sN}, {sSEG}, {SEG_STRIDE}
        s_lshl_b32 {sT1}, {sH}, 14
        s_add_u32 {sT1}, {sT1}, {sN}
        s_add_u32 {sT1}, {sT1}, {WS_KVX}
        s_lshl_b32 {sP}, {sH}, 2
        s_add_u32 {sP}, {sP}, {sW}
        s_lshl_b32 {sO_}, {sSEG}, 7
        s_add_u32 {sO_}, {sO_}, {sP}
        s_lshl_b32 {sO_}, {sO_}, 11
        s_add_u32 {sO_}, {sO_}, {WS_O}
        s_lshl_b32 {sP}, {sP}, 10
        s_add_u32 {sP}, {sP}, {sN}
        s_add_u32 {sP}, {sP}, {WS_KVM}
        s_add_u32 {sSEG}, {sSEG}, {NTEAM}''')
        for i in range(8): P(f'buffer_load_dwordx4 {vr(KO + 4 * i, 4)}, v{KA}, {SWS}, {sT1} offen offset:{256 * i} sc1')
        for a in range(2): P(f'buffer_load_dwordx4 {vr(VO + 4 * a, 4)}, v{VA}, {SWS}, {sT1} offen offset:{256 * a} sc1')
        if look: P(f's_or_b32 {sU2}, {SETS[1 - buf]["sP"]}, 0xc00'); P(hld)
        P(f's_add_u32 {sXS}, {sXS}, {NTEAM * XBUF}')
        P.c('(the two stores mark this segment\'s output slot as not yet written)')
        gemm(P, buf, [(GA_, 0, True)], [x for d_ in xdma_ins(1 - buf) + [f'buffer_store_dwordx4 {vr(NEG, 4)}, v{A2}, {SWS}, {sO_} offen offset:{1024 * a} sc1' for a in range(2)] for x in (d_, '')])
        for a in range(2):
            for r in range(4): P(cvt(16 + 4 * a + r, GA_ + 8 * a + r, GA_ + 8 * a + 4 + r))
            P(f'ds_write_b128 v{RA}, {vr(16 + 4 * a, 4)} offset:{1024 * a}')
        P('s_waitcnt lgkmcnt(0)\ns_barrier')
        for i in range(8): P(f'ds_read_b128 {vr(q0 + 4 * i, 4, qk)}, v{WD1} offset:{1024 * i}')
        if look:
            P.c('the awaited export is already there: fetch it now')
            P(f'v_cmp_eq_u32 vcc, -1, v{PC}\ns_mov_b32 {sU1}, 0\ns_cbranch_vccnz AT_e{buf}\ns_mov_b32 {sU1}, 1')
            snap = P.snapshot()
            P(pld(1 - buf))
            P.label(f'AT_e{buf}', keep=True); P.restore(snap)
        for i in range(8): P(f'{MF32} {vr(SX_, 16)}, {vr(KO + 4 * i, 4)}, {vr(q0 + 4 * i, 4, qk)}, {vr(MASK if i == 0 else SX_, 16)}')
        P.c('token keys first (running max), memory keys when they arrive')
        P(f'v_max3_f32 v{MX}, v{SX_}, v{SX_ + 1}, v{SX_ + 2}')
        for r in range(3, 15, 2): P(f'v_max3_f32 v{MX}, v{MX}, v{SX_ + r}, v{SX_ + r + 1}')
        P(f'v_max_f32 v{MX}, v{MX}, v{SX_ + 15}')
        xhalf('v_max_f32', MX)
        for r in range(16): P(f'v_sub_f32 v{SX_ + r}, v{SX_ + r}, v{MX}')
        for r in range(16): P(f'v_exp_f32 v{SX_ + r}, v{SX_ + r}')
        for a in range(2):
            for r in range(4): P(cvt(PO + 4 * a + r, SX_ + 4 * r + 2 * a, SX_ + 4 * r + 2 * a + 1))
        P(f'{MF32} {vr(OA, 16)}, {vr(VO, 4)}, {vr(PO, 4)}, 0')
        P(f'v_add_f32 v{LX}, v{SX_}, v{SX_ + 1}')
        for r in range(2, 8): P(f'v_add_f32 v{LX}, v{LX}, v{SX_ + r}')
        P(f'{MF32} {vr(OA, 16)}, {vr(VO + 4, 4)}, {vr(PO + 4, 4)}, {vr(OA, 16)}')
        for r in range(8, 16): P(f'v_add_f32 v{LX}, v{LX}, v{SX_ + r}')
    def late(buf):
        R = SETS[buf]; qk, q0 = R['QO']; OA, MX, LX, sO_, sP, sS = R['OA'], R['MX'], R['LX'], R['sO'], R['sP'], R['sS']
        P.c('watch one word of the export before fetching it (polling whole lines would slow their writer down)')
        fin = P.T.get('fin', 2)
        P(f's_cmp_eq_u32 {sU1}, 1\ns_cbranch_scc1 AT_v{buf}')
        if fin:
            P(f's_or_b32 {sU2}, {sP}, 0xc00\ns_cmp_eq_u32 {sS}, {NSEG - 1}\ns_cselect_b32 {sT0}, {SEG_STRIDE}, 0\ns_sub_u32 {sU2}, {sU2}, {sT0}')
        if fin < 2: P(f'{"s_cmp_eq_u32" if fin else "s_cmp_ge_u32"} {sS}, {NSEG - 2}\ns_cbranch_scc1 AT_k{buf}')
        P(f's_branch AT_c{buf}')
        P.label(f'AT_h{buf}')
        P(f's_sleep {P.T.get("slp", 1)}')
        P.label(f'AT_c{buf}')
        P(hld)
        P(f's_add_u32 {sSPIN}, {sSPIN}, 1\ns_cmp_lt_u32 {sSPIN}, {SPIN_MAX}\ns_cselect_b32 {sT0}, -2, -1\ns_waitcnt vmcnt(0)\nv_cmp_lt_u32 vcc, {sT0}, v{PC}\ns_cbranch_vccnz AT_h{buf}')
        P.label(f'AT_k{buf}')
        P(pld(buf))
        P.label(f'AT_v{buf}')
        P(f'''s_mov_b32 {sU1}, 0
        s_add_u32 {sSPIN}, {sSPIN}, 1
        s_cmp_lt_u32 {sSPIN}, {SPIN_MAX}
        s_cselect_b32 {sT0}, -2, -1
        s_waitcnt vmcnt(0)
        ds_write_b64 v{KW}, {vr(PC, 2)} offset:{4096 * buf}
        ds_write_b64 v{VW}, {vr(PC + 2, 2)} offset:{4096 * buf}
        v_max3_u32 v{T2}, v{PC}, v{PC + 1}, v{PC + 2}
        v_max_u32 v{T2}, v{T2}, v{PC + 3}
        v_cmp_lt_u32 vcc, {sT0}, v{T2}
        s_cbranch_vccnz AT_k{buf}
        s_waitcnt lgkmcnt(0)
        s_barrier''')
        def hint(k):
            if k == P.T.get('hpos', 3):
                P.c('the progress word only says when to look (it travels slower than the data): readers check the data itself')
                P(f's_mov_b64 exec, 1\nbuffer_store_dword v{T1}, v{A2}, {SWS}, {sU3} offen sc1\ns_mov_b64 exec, -1')
        for i in range(8): P(f'ds_read_b128 {vr(KO + 4 * i, 4)}, v{KM} offset:{4096 * buf + 256 * i}')
        for b_ in range(2): P(f'ds_read_b32 v{VMO + b_}, v{VMA} offset:{4096 * buf + 128 * b_}')
        P(f's_add_u32 {sS}, {sS}, {NTEAM}\nv_mov_b32 v{T1}, {sS}')
        hint(4)
        for i in range(8):
            P(f'{MF32} {vr(SM_, 16)}, {vr(KO + 4 * i, 4)}, {vr(q0 + 4 * i, 4, qk)}, {"0" if i == 0 else vr(SM_, 16)}')
            if i == 3: hint(3)
        hint(2)
        M2, AL = SM_ + 4, SM_ + 6
        for r in range(4): P(f'v_mul_f32 v{SM_ + r}, {sU0}, v{SM_ + r}')
        P(f'v_max3_f32 v{M2}, v{MX}, v{SM_}, v{SM_ + 1}\nv_max3_f32 v{M2}, v{M2}, v{SM_ + 2}, v{SM_ + 3}')
        xhalf('v_max_f32', M2)
        P(f'v_sub_f32 v{AL}, v{MX}, v{M2}')
        for r in range(4): P(f'v_sub_f32 v{SM_ + r}, v{SM_ + r}, v{M2}')
        P(f'v_exp_f32 v{AL}, v{AL}')
        for r in range(4): P(f'v_exp_f32 v{SM_ + r}, v{SM_ + r}')
        P(f'''v_fma_f32 v{LX}, v{LX}, v{AL}, v{SM_}
        v_add_f32 v{M2}, v{SM_ + 1}, v{SM_ + 2}
        v_add_f32 v{LX}, v{LX}, v{SM_ + 3}
        v_add_f32 v{LX}, v{LX}, v{M2}''')
        xhalf('v_add_f32', LX)
        P(f'v_rcp_f32 v{LX}, v{LX}\nv_mul_f32 v{AL}, v{AL}, v{LX}')
        for r in range(4): P(f'v_mul_f32 v{SM_ + r}, v{LX}, v{SM_ + r}')
        P(cvt(PO + 8, SM_, SM_ + 1)); P(cvt(PO + 9, SM_ + 2, SM_ + 3))
        hint(1)
        for r in range(16): P(f'v_mul_f32 v{OA + r}, v{AL}, v{OA + r}')
        P(f'v_mfma_f32_32x32x8_bf16 {vr(OA, 16)}, {vr(VMO, 2)}, {vr(PO + 8, 2)}, {vr(OA, 16)}')
        for a in range(2):
            for r in range(4): P(cvt(PO + 4 * a + r, OA + 8 * a + 2 * r, OA + 8 * a + 2 * r + 1))
            P(f'buffer_store_dwordx4 {vr(PO + 4 * a, 4)}, v{A2}, {SWS}, {sO_} offen offset:{1024 * a} sc1')
        hint(0)
        P(f's_cmp_ge_u32 {sS}, {NSEG}\ns_cbranch_scc1 L_exit')
    early(0, False)
    P('s_waitcnt vmcnt(0)\ns_barrier')
    P.label('AT_loop')
    for buf in range(2):
        P(f's_cmp_ge_u32 {sSEG}, {NSEG}\ns_cbranch_scc1 AT_l{buf}')
        early(1 - buf)
        P.label(f'AT_l{buf}')
        late(buf)
    P('s_branch AT_loop')

def phase_a(P):
    P.c('==== branch A: 4 heads x 128 tokens (qkv projection, dilated local attention), and the gate of 16 tokens')
    RL, PA = 2 * XBUF, 516
    sG, sRUN = sU0, sU1
    P(f'''s_sub_u32 {sT0}, {sJ}, 64
    s_lshr_b32 {sG}, {sT0}, 4
    s_and_b32 {sRUN}, {sT0}, 15
    s_lshl_b32 {sXS}, {sRUN}, 2
    s_sub_u32 {sXS}, {sXS}, 1
    s_max_i32 {sXS}, {sXS}, 0
    s_mul_i32 {sXS}, {sXS}, {XBUF}''')
    xdma(P, 0)
    P.c('gate: 4 tokens per wave, 16 lanes per token, 72 B per lane')
    GX, GW = 48, 68
    P(f'''v_and_b32 v{T0}, 15, v{L}
    v_mul_u32_u24 v{T0}, 72, v{T0}
    v_lshrrev_b32 v{T1}, 4, v{L}
    v_mul_u32_u24 v{T2}, 1152, v{T1}
    v_add_u32 v{T2}, v{T2}, v{T0}
    s_lshl_b32 {sT0}, {sT0}, 2
    s_add_u32 {sU2}, {sT0}, {sW}
    s_mul_i32 {sT1}, {sU2}, {4 * 1152}''')
    for base, va, srd, so in ((GX, T2, SX, sT1), (GW, T0, SGATE, '0')):
        for i in range(4): P(f'buffer_load_dwordx4 {vr(base + 4 * i, 4)}, v{va}, {srd}, {so} offen offset:{16 * i}')
        P(f'buffer_load_dwordx2 {vr(base + 16, 2)}, v{va}, {srd}, {so} offen offset:64')
    P(f'v_mov_b32 v0, 0\nv_mov_b32 v1, 0x3f803f80')
    for i in range(18):
        P(f'''v_lshlrev_b32 v2, 16, v{GX + i}
        v_lshlrev_b32 v3, 16, v{GW + i}
        v_and_b32 v4, 0xffff0000, v{GX + i}
        v_and_b32 v5, 0xffff0000, v{GW + i}
        v_mul_f32 v2, v2, v3
        v_mul_f32 v4, v4, v5
        v_cvt_pk_bf16_f32 v2, v2, v4
        v_lshlrev_b32 v3, 16, v2
        v_and_b32 v4, 0xffff0000, v2
        v_add_f32 v0, v0, v3
        v_add_f32 v0, v0, v4''')
    for rot in (1, 2, 4, 8): P(f'v_add_f32_dpp v0, v0, v0 row_ror:{rot} row_mask:0xf bank_mask:0xf')
    P(f'''v_cvt_pk_bf16_f32 v0, v0, v0
    v_lshlrev_b32 v0, 16, v0
    v_mul_f32 v0, {f32bits(-math.log2(math.e))}, v0
    v_exp_f32 v0, v0
    v_add_f32 v0, 1.0, v0
    v_rcp_f32 v0, v0
    v_cvt_pk_bf16_f32 v0, v0, v0
    v_lshlrev_b32 v0, 16, v0
    v_lshlrev_b32 v{T1}, 2, v{T1}
    s_lshl_b32 {sT1}, {sU2}, 4
    s_add_u32 {sT1}, {sT1}, {WS_G}
    s_mov_b64 exec, 0x0001000100010001
    buffer_store_dword v0, v{T1}, {SWS}, {sT1} offen sc1
    s_mov_b64 exec, -1'''.replace('s_mov_b64 exec, 0x0001000100010001', 's_mov_b32 exec_lo, 0x00010001\ns_mov_b32 exec_hi, 0x00010001'))
    P.c('weight sources: virtual chunk cv = 16m + (p ^ 4r): 1152*(cv/9) + 16*(cv%9), cv >= 27 is padding')
    P(f'''v_lshrrev_b32 v{T0}, 4, v{L}
    v_lshlrev_b32 v{T1}, 2, v{T0}
    v_and_b32 v{T2}, 15, v{L}
    v_xor_b32 v{T1}, v{T1}, v{T2}
    v_mul_u32_u24 v{T0}, 3456, v{T0}
    v_mov_b32 v2, 0x40000000''')
    for m, wd in enumerate((WD0, WD1)):
        P(f'''v_add_u32 v{T2}, {16 * m}, v{T1}
        v_mul_u32_u24 v{T3}, 57, v{T2}
        v_lshrrev_b32 v{T3}, 9, v{T3}
        v_mul_u32_u24 v{T3}, 1008, v{T3}
        v_lshl_add_u32 v{T3}, v{T2}, 4, v{T3}
        v_add_u32 v{T3}, v{T3}, v{T0}
        v_cmp_lt_u32 vcc, 26, v{T2}
        v_cndmask_b32 v{wd}, v{T3}, v2, vcc''')
    P(f's_mul_i32 {sB0}, {sG}, 144\ns_mul_i32 {sT0}, {sW}, {4 * 3456}\ns_add_u32 {sB0}, {sB0}, {sT0}')
    P('s_waitcnt vmcnt(0)')
    wload(P, [(SWQKV, WD0, sB0, RN, 0), (SWQKV, WD1, sB0, RN, 36)], 3456)
    P.stamp(3)
    WA, RB_, OAD = 218, 219, 220
    P(f'''; qkv row write address: (l&31)*PA + 64w + 8*hf
    v_and_b32 v{T0}, 31, v{L}
    v_mul_u32_u24 v{WA}, {PA}, v{T0}
    v_lshrrev_b32 v{T1}, 5, v{L}
    v_lshl_add_u32 v{WA}, v{T1}, 3, v{WA}
    s_lshl_b32 {sT0}, {sW}, 6
    s_add_u32 {sT0}, {sT0}, {RL}
    v_add_u32 v{WA}, {sT0}, v{WA}
    s_lshl_b32 {sXS}, {sRUN}, 2
    s_mul_i32 {sXS}, {sXS}, {XBUF}''')
    for tile in range(5):
        buf = tile % 2
        gemm(P, buf, [(0, 0, True), (16, 36, True)], [x for d_ in xdma_ins(1 - buf) for x in (d_, '')] if tile < 4 else [])
        P(f's_add_u32 {sXS}, {sXS}, {XBUF}')
        for m in range(2):
            for qd in range(4):
                P(cvt(48, 16 * m + 4 * qd, 16 * m + 4 * qd + 1)); P(cvt(49, 16 * m + 4 * qd + 2, 16 * m + 4 * qd + 3))
                o = (256 * m + 16 * qd) // 4
                P(f'ds_write2_b32 v{WA}, v48, v49 offset0:{o} offset1:{o + 1}')
        P(f'v_add_u32 v{WA}, {32 * PA}, v{WA}')
        P('s_waitcnt vmcnt(0) lgkmcnt(0)\ns_barrier')
    if 'astamp' in P.opt: P.stamp(1)
    P.c('attention: wave = head, lane = token, two rounds of 64 tokens')
    Q, KV, SC, O = 0, 16, 100, 112
    P(f'''v_mul_u32_u24 v{RB_}, {PA}, v{L}
    s_mul_i32 {sT0}, {sW}, 36
    s_add_u32 {sT1}, {sT0}, {RL + (32 - 14) * PA}
    v_add_u32 v{RB_}, {sT1}, v{RB_}
    v_mul_u32_u24 v{OAD}, 144, v{L}
    v_add_u32 v{OAD}, {sT0}, v{OAD}
    s_mul_i32 {sT0}, {sW}, 3072
    v_add_u32 v{WA}, {sT0}, v{A2}
    s_lshl_b32 {sT1}, {sG}, 4
    s_add_u32 {sT1}, {sT1}, {sRUN}
    s_mul_i32 {sO}, {sT1}, {128 * 144}
    s_add_u32 {sO}, {sO}, {WS_OA}
    s_cmp_eq_u32 {sW}, 3
    s_cselect_b32 {sO}, {WS_SIZE}, {sO}
    s_lshl_b32 {sN}, {sRUN}, 7
    s_mov_b32 {sT3}, {f32bits(CA)}''')
    def rd9(dst, off):
        for i in range(9): P(f'ds_read_b32 v{dst + i}, v{RB_} offset:{off + 4 * i}')
    for rnd in range(2):
        rd9(Q, 14 * PA)
        for j in range(8): rd9(KV + 9 * j, (14 - 2 * j) * PA + 144)
        for j in range(8): P(f'v_mov_b32 v{SC + j}, 0')
        for i in range(9):
            for j in range(8): P(f'v_dot2c_f32_bf16 v{SC + j}, v{Q + i}, v{KV + 9 * j + i}')
        for j in range(8): rd9(KV + 9 * j, (14 - 2 * j) * PA + 288)
        P(f'v_add_u32 v{T0}, {sN}, v{L}\nv_mov_b32 v{T1}, 0xf149f2ca')
        for j in range(8): P(f'v_mul_f32 v{SC + j}, {sT3}, v{SC + j}')
        for j in range(1, 8): P(f'v_cmp_gt_u32 vcc, {2 * j}, v{T0}\nv_cndmask_b32 v{SC + j}, v{SC + j}, v{T1}, vcc')
        P(f'''v_max3_f32 v{T2}, v{SC}, v{SC + 1}, v{SC + 2}
        v_max3_f32 v{T2}, v{T2}, v{SC + 3}, v{SC + 4}
        v_max3_f32 v{T2}, v{T2}, v{SC + 5}, v{SC + 6}
        v_max_f32 v{T2}, v{T2}, v{SC + 7}''')
        for j in range(8): P(f'v_sub_f32 v{SC + j}, v{SC + j}, v{T2}')
        for j in range(8): P(f'v_exp_f32 v{SC + j}, v{SC + j}')
        P(f'v_add_f32 v{T2}, v{SC}, v{SC + 1}')
        for j in range(2, 8): P(f'v_add_f32 v{T2}, v{T2}, v{SC + j}')
        P(f'v_rcp_f32 v{T2}, v{T2}\nv_mov_b32 v{T3}, 0')
        for j in range(8): P(f'v_mul_f32 v{SC + j}, v{T2}, v{SC + j}')
        for i in range(18): P(f'v_mov_b32 v{O + i}, 0')
        for j in range(8):
            P(cvt(Q + 2 * (j % 2), SC + j, T3)); P(cvt(Q + 1 + 2 * (j % 2), T3, SC + j))
            for i in range(9):
                P(f'v_dot2c_f32_bf16 v{O + 2 * i}, v{KV + 9 * j + i}, v{Q + 2 * (j % 2)}')
                P(f'v_dot2c_f32_bf16 v{O + 2 * i + 1}, v{KV + 9 * j + i}, v{Q + 1 + 2 * (j % 2)}')
        for i in range(9): P(cvt(132 + i, O + 2 * i, O + 2 * i + 1))
        for i in range(9): P(f'ds_write_b32 v{OAD}, v{132 + i} offset:{16384 * rnd + 4 * i}')
        P('s_waitcnt lgkmcnt(0)\ns_barrier')
        for i in range(3): P(f'ds_read_b128 {vr(144 + 4 * i, 4)}, v{WA} offset:{16384 * rnd + 1024 * i}')
        for i in range(3): P(f'buffer_store_dwordx4 {vr(144 + 4 * i, 4)}, v{WA}, {SWS}, {sO} offen offset:{1024 * i} sc1')
        if rnd == 0:
            P(f'v_add_u32 v{RB_}, {64 * PA}, v{RB_}\ns_add_u32 {sN}, {sN}, 64\ns_add_u32 {sO}, {sO}, {64 * 144}')
    P(f's_mov_b32 {sT2}, {DB_ADONE}')
    signal_add(P, 'A_sig', sT2)

def phase_out(P):
    P.c('==== output projection + gated mix: 16 tokens x 32 columns per step, K split over the waves')
    def oreg(i):
        return ('a', 4 * i) if i < 64 else ('v', 216 + 4 * (i - 64))
    sSET, sHALF, sSL = sU0, sU1, sU2
    DAT, ACB, ACA, OB, OAA, GA, OUT, RO, AA = 0, 148, 156, 164, 165, 166, 167, 168, 176
    P.c('each set is spread over four dies: die pair = token half, die parity = column half')
    P(f'''s_and_b32 {sT0}, {sJ}, 31
    s_mul_i32 {sSET}, {sT0}, 57
    s_lshr_b32 {sSET}, {sSET}, 9
    s_mul_i32 {sT2}, {sSET}, 9
    s_sub_u32 {sSL}, {sT0}, {sT2}
    s_bfe_u32 {sT1}, {sJ}, 0x10005
    s_mul_i32 {sT1}, {sT1}, 9
    s_add_u32 {sSL}, {sSL}, {sT1}
    s_bfe_u32 {sHALF}, {sJ}, 0x10006
    s_lshr_b32 {sT1}, {sJ}, 5
    s_mul_i32 {sT2}, {sT1}, 5
    s_add_u32 {sT2}, {sT2}, {sT0}
    s_sub_u32 {sT2}, {sT2}, 37
    s_add_u32 {sT3}, {sT0}, 20
    s_cmp_eq_u32 {sT1}, 6
    s_cselect_b32 {sT2}, {sT3}, {sT2}
    s_cselect_b32 {sSET}, 3, {sSET}
    s_cmp_ge_u32 {sT2}, 18
    s_cselect_b32 {sT1}, 1, 0
    s_cselect_b32 {sT3}, 18, 0
    s_sub_u32 {sT2}, {sT2}, {sT3}
    s_cmp_eq_u32 {sSET}, 3
    s_cselect_b32 {sHALF}, {sT1}, {sHALF}
    s_cselect_b32 {sSL}, {sT2}, {sSL}
    v_lshrrev_b32 v{T0}, 2, v{L}
    v_mul_u32_u24 v{T0}, 1152, v{T0}
    v_and_b32 v{T1}, 3, v{L}
    v_lshl_add_u32 v{WD0}, v{T1}, 4, v{T0}
    s_lshl_b32 {sT0}, {sSL}, 6
    s_mul_i32 {sT1}, {sW}, {1024 * 1152}
    s_add_u32 {sB0}, {sT0}, {sT1}
    s_mul_i32 {sT1}, {sW}, {160 * 1152}
    s_add_u32 {sB1}, {sT0}, {sT1}
    s_mul_i32 {sM}, {sW}, 40960
    v_bfe_u32 v{T0}, v{L}, 2, 2
    v_lshlrev_b32 v{T1}, 4, v{T1}
    v_add_u32 v{T1}, {sM}, v{T1}
    v_lshl_add_u32 v{T1}, v{T0}, 6, v{T1}
    v_lshrrev_b32 v{T2}, 4, v{L}
    v_lshl_add_u32 v{RN}, v{T2}, 9, v{T1}
    v_lshrrev_b32 v{T3}, 5, v{L}
    v_lshl_add_u32 v{RP}, v{T3}, 10, v{T1}
    v_and_b32 v{T3}, 1, v{T2}
    v_lshl_add_u32 v{RP}, v{T3}, 8, v{RP}''')
    NS = 20
    def dma(k):
        for y in range(2):
            srd, base, row = (SWO, sB0, 32 * k) if k < 32 else (SWOA, sB1, 32 * (k - 32))
            P(f's_add_u32 m0, {sM}, {(k % NS) * 2048 + 1024 * y}\ns_add_u32 {sT0}, {base}, {(row + 16 * y) * 1152}')
            P(f'buffer_load_dwordx4 v{WD0}, {srd}, {sT0} offen lds')
    for k in range(NS - 1): dma(k)
    for k in range(37):
        P(f's_waitcnt vmcnt({2 * (min(37, k + NS - 1) - k - 1)}) lgkmcnt(0)')
        if k + NS - 1 < 37: dma(k + NS - 1)
        for t in range(2):
            kind, r = oreg(2 * k + t)
            for u in range(2):
                P(f'ds_read_b64_tr_b16 {vr(r + 2 * u, 2, kind)}, v{RP if k < 32 else RN} offset:{(k % NS) * 2048 + 8 * t + (512 if k < 32 else 256) * u}')
    P(f'''; operand addresses: O_B unit (g>>1)*1024 + ((g&1)*32 + 16*half + n)*16 ; O_A row (16*half + n)*1152 + 16g
    v_and_b32 v{T0}, 15, v{L}
    s_lshl_b32 {sT0}, {sHALF}, 4
    v_add_u32 v{T0}, {sT0}, v{T0}
    v_lshl_add_u32 v{T1}, v{T3}, 5, v{T0}
    v_lshlrev_b32 v{OB}, 4, v{T1}
    v_lshrrev_b32 v{T1}, 5, v{L}
    v_lshl_add_u32 v{OB}, v{T1}, 10, v{OB}
    v_mul_u32_u24 v{OUT}, 1152, v{T0}
    v_lshl_add_u32 v{OUT}, v{T2}, 4, v{OUT}
    v_lshlrev_b32 v{GA}, 2, v{T0}
    v_mul_u32_u24 v{T0}, 144, v{T0}
    s_mul_i32 {sT0}, {sW}, 20
    s_mov_b32 {sT1}, {S * 144 - 144}
    v_mov_b32 v{T3}, 0x40000000''')
    for k in range(5):
        P(f'''v_add_u32 v{T1}, {sT0}, v{T2}
        v_add_u32 v{T1}, {4 * k}, v{T1}
        v_mul_u32_u24 v{AA + k}, 57, v{T1}
        v_lshrrev_b32 v{AA + k}, 9, v{AA + k}
        v_mul_lo_u32 v{AA + k}, v{AA + k}, {sT1}
        v_lshl_add_u32 v{AA + k}, v{T1}, 4, v{AA + k}
        v_add_u32 v{AA + k}, v{AA + k}, v{T0}
        v_cmp_lt_u32 vcc, 71, v{T1}
        v_cndmask_b32 v{AA + k}, v{AA + k}, v{T3}, vcc''')
    P(f'''v_lshlrev_b32 v{WD1}, 2, v{L}
    s_lshl_b32 {sT0}, {sW}, 11
    v_add_u32 v{RO}, {sT0}, v{A2}
    s_mov_b32 {sT2}, {DB_P1}
    s_mov_b32 {sT3}, {DB_ADONE}
    s_waitcnt lgkmcnt(0)''')
    P.stamp(5)
    poll(P, 'O_p1', SDBG, WD1, sT2, f'v_cmp_gt_u32 vcc, 0x700, v{T0}', -1, 16)
    poll(P, 'O_a', SDBG, WD1, sT3, f'v_cmp_gt_u32 vcc, 0x80, v{T0}', 1, 16)
    P.stamp(6)
    FL, CKR, GN, OBQ, OUTQ, OST, ACO = 169, 170, 171, 172, 173, 174, 184
    sF1, sFIN = 's75', 's76'
    P.c('segments 0, 1 and 60..63 are shared by two sets: 8 tokens each, two k-steps per load (the other 8 lanes fetch the odd step)')
    P(f'''s_and_b32 {sT0}, {sSET}, 1
    v_bfe_u32 v{T0}, v{L}, 3, 1
    v_cmp_ne_u32 vcc, {sT0}, v{T0}
    v_xor_b32 v{T0}, 0x880, v{OB}
    v_mov_b32 v{T1}, 0x40000000
    v_cndmask_b32 v{OBQ}, v{OB}, v{T0}, vcc
    v_cndmask_b32 v{OUTQ}, v{OUT}, v{T1}, vcc
    s_lshr_b32 {sT0}, {sSET}, 1
    s_sub_u32 {sSEG}, 1, {sT0}
    s_sub_u32 {sFIN}, {NSEG - 3}, {sT0}
    s_lshl_b32 {sT0}, {sSET}, 3
    s_lshr_b32 {sF1}, 0x3e020403, {sT0}
    s_and_b32 {sF1}, {sF1}, 0xff''')
    def a_loads(seg):
        P(f's_mul_i32 {sT1}, {seg}, {32 * 144}\ns_add_u32 {sT1}, {sT1}, {WS_OA}')
        for k in range(5): P(f'buffer_load_dwordx4 {vr(DAT + 128 + 4 * k, 4)}, v{AA + k}, {SWS}, {sT1} offen sc1')
        P(f's_lshl_b32 {sT1}, {seg}, 7\ns_add_u32 {sT1}, {sT1}, {WS_G}\nbuffer_load_dword v{GN}, v{GA}, {SWS}, {sT1} offen sc1')
    def mm(acc, k, first, dk=None):
        for t in range(2):
            kind, r = oreg(2 * k + t)
            P(f'{MF} {vr(acc + 4 * t, 4)}, {vr(r, 4, kind)}, {vr(DAT + 4 * (k if dk is None else dk), 4)}, {"0" if first else vr(acc + 4 * t, 4)}')
    a_loads(sSEG)
    P(f'v_mov_b32 v{FL}, 0\nv_lshlrev_b32 v{WD1}, 8, v{L}\ns_mov_b32 {sN}, {WS_FO}\ns_waitcnt vmcnt(0)')
    P.label('O_loop')
    for k in range(32, 37): mm(ACA, k, k == 32)
    P(f'''s_mul_i32 {sO}, {sSEG}, {XBUF}
    s_lshl_b32 {sT0}, {sSL}, 6
    s_add_u32 {sO}, {sO}, {sT0}
    s_add_u32 {sU3}, {sSEG}, {NTEAM}
    s_lshl_b32 {sT1}, {sSEG}, 18
    s_lshl_b32 {sT0}, {sW}, 16
    s_add_u32 {sT1}, {sT1}, {sT0}
    s_add_u32 {sB1}, {sT1}, {WS_O}
    s_and_b32 {sT0}, {sSEG}, 1
    s_lshl_b32 {sT0}, {sT0}, 2
    s_add_u32 {sT0}, {sT0}, {sW}
    s_lshl_b32 {sT0}, {sT0}, 3
    s_lshl_b64 s[72:73], 0xff, {sT0}
    v_sub_f32 v{OAA}, 1.0, v{GN}
    v_cvt_pk_bf16_f32 v{OAA}, v{OAA}, v{OAA}
    v_lshlrev_b32 v{OAA}, 16, v{OAA}''')
    for r in range(8): P(f'v_mul_f32 v{ACA + r}, v{GN}, v{ACA + r}')
    P(f'''s_add_u32 {sT3}, {sSEG}, {NSET}
    s_cmp_lt_u32 {sSEG}, 2
    s_cselect_b32 {sT3}, {sF1}, {sT3}
    s_cmp_gt_u32 {sT3}, {NSEG - 5}
    s_cselect_b32 {sT3}, {sFIN}, {sT3}
    s_add_u32 s74, {sSEG}, 2
    s_cmp_ge_u32 {sSEG}, {NSEG - 4}
    s_cselect_b32 {sT3}, s74, {sT3}
    s_min_u32 s74, {sT3}, {NSEG - 1}
    s_sub_u32 s77, {sU3}, 6
    s_branch O_pc''')
    P.label('O_pl')
    P(f'v_cmp_gt_i32 vcc, s77, v{FL}\ns_and_b64 vcc, vcc, s[72:73]\ns_cbranch_scc0 O_pn\ns_sleep 24')
    P.label('O_pn')
    P(f's_sleep {P.T.get("oslp", 1)}\ns_mov_b64 exec, s[72:73]\nbuffer_load_dword v{FL}, v{WD1}, {SWS}, {sN} offen sc1\ns_mov_b64 exec, -1\ns_add_u32 {sSPIN}, {sSPIN}, 1\ns_cmp_ge_u32 {sSPIN}, {SPIN_MAX}\ns_cbranch_scc1 O_ld\ns_waitcnt vmcnt(0)')
    P.label('O_pc')
    P(f'v_cmp_gt_u32 vcc, {sU3}, v{FL}\ns_and_b64 vcc, vcc, s[72:73]\ns_cbranch_scc1 O_pl')
    if 'ostamp' in P.opt: P.stamp(3); P('s_mov_b32 s100, 0')
    P.label('O_ld')
    if 'ostamp' in P.opt: P('s_add_u32 s100, s100, 1')
    P(f's_mov_b32 {sB0}, {sB1}')
    chk = lambda k: f'v_max3_u32 v{CKR}, v{DAT + 4 * k}, v{DAT + 4 * k + 1}, v{CKR if k else DAT}\nv_max3_u32 v{CKR}, v{DAT + 4 * k + 2}, v{DAT + 4 * k + 3}, v{CKR}'
    P(f's_add_u32 {sSPIN}, {sSPIN}, 1\ns_cmp_lt_u32 {sSPIN}, {SPIN_MAX}\ns_cselect_b32 {sT2}, -2, -1')
    P(f's_sub_u32 {sT0}, {sSEG}, 2\ns_cmp_lt_u32 {sT0}, {NSEG - 6}\ns_cbranch_scc1 O_full')
    for k in range(16): P(f'buffer_load_dwordx4 {vr(DAT + 4 * k, 4)}, v{OBQ}, {SWS}, {sB0} offen sc1\ns_add_u32 {sB0}, {sB0}, 4096')
    a_loads('s74')
    P(f'v_mov_b32 v{OST}, v{OUTQ}')
    for k in range(16):
        mm(ACB, 2 * k, k == 0, k); mm(ACO, 2 * k + 1, k == 0, k); P(chk(k))
    P(f'v_cmp_lt_u32 vcc, {sT2}, v{CKR}\ns_cbranch_vccnz O_ld')
    for r in range(8): P(f'v_add_f32_dpp v{ACB + r}, v{ACO + r}, v{ACB + r} row_ror:8 row_mask:0xf bank_mask:0xf')
    P('s_branch O_mix')
    P.label('O_full')
    for k in range(32):
        P(f'buffer_load_dwordx4 {vr(DAT + 4 * k, 4)}, v{OB}, {SWS}, {sB0} offen offset:{2048 * (k % 2)} sc1')
        if k % 2: P(f's_add_u32 {sB0}, {sB0}, 4096')
    a_loads('s74')
    P(f'v_mov_b32 v{OST}, v{OUT}')
    for k in range(32):
        mm(ACB, k, k == 0); P(chk(k))
    P(f'v_cmp_lt_u32 vcc, {sT2}, v{CKR}\ns_cbranch_vccnz O_ld')
    P.label('O_mix', keep=True)
    if 'ostamp' in P.opt: P.stamp(4)
    for r in range(8): P(f'v_fmac_f32 v{ACA + r}, v{OAA}, v{ACB + r}')
    P(f'''ds_write_b128 v{RO}, {vr(ACA, 4)}
    ds_write_b128 v{RO}, {vr(ACA + 4, 4)} offset:1024
    v_xor_b32 v{RO}, 0x2000, v{RO}
    s_mov_b32 {sSEG}, {sT3}
    s_waitcnt lgkmcnt(0)
    s_barrier
    s_cmp_eq_u32 {sW}, 0
    s_cbranch_scc0 O_next
    v_xor_b32 v{T0}, 0x2000, v{RO}''')
    for i in range(6): P(f'ds_read_b128 {vr(DAT + 4 * i, 4)}, v{T0} offset:{2048 + 1024 * i}')
    for i in range(6):
        for r in range(4): P(f'v_add_f32 v{ACA + 4 * (i % 2) + r}, v{ACA + 4 * (i % 2) + r}, v{DAT + 4 * i + r}')
    for r in range(4): P(cvt(ACB + r, ACA + 2 * r, ACA + 2 * r + 1))
    P(f'buffer_store_dwordx4 {vr(ACB, 4)}, v{OST}, {SOUT}, {sO} offen {P.T.get("ofl", "sc1")}\ns_waitcnt vmcnt(1)\ns_branch O_nx2')
    P.label('O_next')
    P('s_waitcnt vmcnt(0)')
    P.label('O_nx2')
    P(f's_cmp_lt_u32 {sSEG}, {NSEG}\ns_cbranch_scc1 O_loop')

def worker(P):
    P.nextra = P.entry_extra()
    common(P)
    phase_kv(P)
    P.stamp(2)
    if P.plog or 'onlykv' in P.opt: P('s_branch L_exit')
    P(f's_cmp_ge_u32 {sJ}, 208\ns_cbranch_scc1 L_exit\ns_cmp_ge_u32 {sJ}, 192\ns_cbranch_scc1 W_o')
    P(f's_cmp_lt_u32 {sJ}, 64\ns_cbranch_scc1 W_h')
    if 'noA' in P.opt: P('s_branch L_exit')
    phase_a(P)
    P.stamp(4)
    if 'noO' in P.opt: P('s_branch L_exit')
    P.label('W_o')
    phase_out(P)
    P('s_branch L_exit')
    P.label('W_h')
    if 'noH' in P.opt: P('s_branch L_exit')
    phase_attn(P)
```
